```python
import torch

def _softmax(x, axis=-1):
    return torch.softmax(x, dim=axis)
def _gelu(x):
    return torch.nn.functional.gelu(x, approximate="tanh")
def _silu(x):
    return torch.nn.functional.silu(x)
def _sigmoid(x):
    return torch.sigmoid(x)
def _layernorm(x, axis=-1, eps=1e-5):
    m = x.mean(dim=axis, keepdim=True)
    v = x.var(dim=axis, keepdim=True, unbiased=False)
    return (x - m) / torch.sqrt(v + eps)
def _scatter_add(tgt, idx, src, axis=0):
    return tgt.clone().index_add_(axis, idx, src)
def _segment_sum(src, seg, n):
    out = torch.zeros((n,) + src.shape[1:], dtype=src.dtype)
    return out.index_add_(0, seg, src)
def _pad(x, pw):
    flat = tuple(v for pair in reversed(pw) for v in pair)
    return torch.nn.functional.pad(x, flat)

kernel_name = 'sequential_preLN__ssm_conv_s4__dense_activation_mish__prompt'

def setup_inputs():

    _w = (lambda a: (lambda t: t.to(torch.bfloat16) if t.is_floating_point() else t)(torch.as_tensor(a)))
    def _A_setup():
        B, L, D, N = 1, 2048, 640, 128
        A_re = -(lambda _x: torch.exp(torch.as_tensor(_x)))((lambda *s: torch.randn(*s, dtype=torch.bfloat16) * 6.4)(D, N))
        A_im = torch.pi * (lambda *s: torch.randn(*s, dtype=torch.bfloat16) * 0.05)(D, N)
        B_re = (lambda *s: torch.randn(*s, dtype=torch.bfloat16) * 0.1)(D, N)
        B_im = (lambda *s: torch.randn(*s, dtype=torch.bfloat16) * 0.1)(D, N)
        C_re = (lambda *s: torch.randn(*s, dtype=torch.bfloat16) * 0.1)(D, N)
        C_im = (lambda *s: torch.randn(*s, dtype=torch.bfloat16) * 0.1)(D, N)
        log_dt = (lambda *s: torch.randn(*s, dtype=torch.bfloat16) * 0.05)(D) * 0.5 - 4.0
        Dskip = (lambda *s: torch.randn(*s, dtype=torch.bfloat16) * 0.05)(D)
        return {
            "u": _w((lambda *s: torch.randn(*s, dtype=torch.bfloat16) * 0.05)(B, L, D)),
            "A_re": _w(A_re),
            "A_im": _w(A_im),
            "B_re": _w(B_re),
            "B_im": _w(B_im),
            "C_re": _w(C_re),
            "C_im": _w(C_im),
            "log_dt": _w(log_dt),
            "Dskip": _w(Dskip),
        }
    _A_in = _A_setup()

    def _B_setup():
        B, S, D, F = 1, 2048, 640, 1728
        return {
            "x": _w((lambda *s: torch.randn(*s, dtype=torch.bfloat16) * 0.05)(B, S, D)),
            "w1": _w((lambda *s: torch.randn(*s, dtype=torch.bfloat16) * 0.8)(D, F) * (D ** -0.5)),
            "b1": _w((lambda *s: torch.randn(*s, dtype=torch.bfloat16) * 0.2)(F)),
            "w2": _w((lambda *s: torch.randn(*s, dtype=torch.bfloat16) * 0.2)(F, D) * (F ** -0.5)),
        }
    _B_in = _B_setup()

    return {
        "A_u": _A_in["u"],
        "A_A_re": _A_in["A_re"],
        "A_A_im": _A_in["A_im"],
        "A_B_re": _A_in["B_re"],
        "A_B_im": _A_in["B_im"],
        "A_C_re": _A_in["C_re"],
        "A_C_im": _A_in["C_im"],
        "A_log_dt": _A_in["log_dt"],
        "A_Dskip": _A_in["Dskip"],
        "B_x": _B_in["x"],
        "B_w1": _B_in["w1"],
        "B_b1": _B_in["b1"],
        "B_w2": _B_in["w2"],
    }

def reference(A_u, A_A_re, A_A_im, A_B_re, A_B_im, A_C_re, A_C_im, A_log_dt, A_Dskip, B_x, B_w1, B_b1, B_w2):
    def _A_ref(u, A_re, A_im, B_re, B_im, C_re, C_im, log_dt, Dskip):
        Bsz, L, D = u.shape
        dt = torch.exp(log_dt)[:, None]
        A = A_re + 1j * A_im
        Bc = B_re + 1j * B_im
        Cc = C_re + 1j * C_im
        logdA = dt * A
        dB = dt * Bc
        l = (lambda x, dt: x.to(dt))(torch.arange(L), A_re.dtype)
        P = torch.exp(logdA[:, :, None] * l[None, None, :])
        K = torch.einsum("dn,dnl,dn->dl", Cc, P, dB).real
        L2 = 2 * L
        Kp = _pad(K, ((0, 0), (0, L)))
        up = (lambda x, *d: x.permute(*d))(u, 0, 2, 1)
        up = _pad(up, ((0, 0), (0, 0), (0, L)))
        Kf = (lambda x, axes=(-2,-1): torch.fft.rfft2(x.float(), dim=axes))(Kp[:, None, :], axes=(-2, -1))
        Uf = (lambda x, axes=(-2,-1): torch.fft.rfft2(x.float(), dim=axes))(up[:, :, None, :], axes=(-2, -1))
        Yf = Uf * Kf[None, :, :, :]
        y = (lambda x, s, axes=(-2,-1): torch.fft.irfft2(x, s=s, dim=axes).to(torch.bfloat16))(Yf, (1, L2), axes=(-2, -1))[:, :, 0, :L]
        y = (lambda x, *d: x.permute(*d))(y, 0, 2, 1) + u * Dskip[None, None, :]
        return y

    def _B_ref(x, w1, b1, w2):
        h = torch.einsum("bsd,df->bsf", x, w1) + b1
        sp = torch.log1p(torch.exp(-torch.abs(h))) + torch.where(h > 0, h, torch.zeros_like(h))
        act = h * torch.tanh(sp)
        return torch.einsum("bsf,fd->bsd", act, w2)

    x = A_u
    h = x + _A_ref(_layernorm(x, axis=-1), A_A_re, A_A_im, A_B_re, A_B_im, A_C_re, A_C_im, A_log_dt, A_Dskip)
    h2 = h + _B_ref(_layernorm(h, axis=-1), B_w1, B_b1, B_w2)
    return h2
```

```python
from lib import *
from layout import *

def ln_stats_finish(k, s_sum_sq_ready=None):
    pass

def gen_k1():
    k = K("prep_kernel")
    k("s_cmp_ge_u32 s2, 256")
    Lend = "prep_end"
    k(f"s_cbranch_scc1 {Lend}")
    k("s_load_dwordx2 s[4:5], s[0:1], 0")
    k("s_load_dwordx2 s[6:7], s[0:1], 80")
    k("s_load_dwordx2 s[8:9], s[0:1], 96")
    k("s_load_dwordx2 s[10:11], s[0:1], 120")
    k("v_lshrrev_b32 v1, 6, v0")
    k("v_and_b32 v2, 63, v0")
    k("s_nop 0")
    k("v_readfirstlane_b32 s12, v1")
    k("v_and_b32 v10, 15, v2")
    k("v_lshrrev_b32 v11, 4, v2")
    k("s_waitcnt lgkmcnt(0)")
    srd(k, 16, 4, 5, L*D*2)
    srd(k, 20, 6, 7, D*F*2)
    srd(k, 24, 8, 9, F*D*2)
    srd(k, 28, 10, 11, WS_END)
    k("s_lshl_b32 s13, s2, 3")
    k("s_add_u32 s13, s13, s12")
    k("s_mul_i32 s14, s13, 1280")
    k("v_lshlrev_b32 v3, 4, v2")
    k("v_lshlrev_b32 v9, 2, v2")
    k("buffer_load_dwordx4 v[4:7], v3, s[16:19], s14 offen")
    k("buffer_load_dword v8, v9, s[16:19], s14 offen offset:1024")
    k("s_lshl_b32 s15, s12, 8")
    k("s_add_u32 s15, s15, s2")
    k("s_cmp_lt_u32 s15, 432")
    k("s_cbranch_scc1 prep_w1")
    k("s_cmp_lt_u32 s15, 864")
    k("s_cbranch_scc1 prep_w2")
    k("s_waitcnt vmcnt(0)")
    k("s_mov_b32 s40, 0")
    k("s_branch prep_stats")
    k.label("prep_w1")
    k("s_lshr_b32 s32, s15, 2")
    k("s_and_b32 s33, s15, 3")
    k("v_mul_u32_u24 v12, 27648, v11")
    k("v_lshl_add_u32 v12, v10, 1, v12")
    for e in range(1, 8):
        k(f"v_add_u32 v{12+e}, {e*3456}, v12")
    k("s_mul_i32 s34, s33, %d" % (5*110592))
    k("s_lshl_b32 s35, s32, 5")
    k("s_add_u32 s34, s34, s35")
    for j in range(5):
        for e in range(8):
            k(f"buffer_load_ushort v{64 + 8*j + e}, v{12+e}, s[20:23], s34 offen")
        if j < 4: k("s_add_u32 s34, s34, 110592")
    k("s_mov_b32 s40, 1")
    k("s_waitcnt vmcnt(40)")
    k("s_branch prep_stats")
    k.label("prep_w2")
    k("s_sub_u32 s32, s15, 432")
    k("s_mul_i32 s32, s32, 5")
    k("v_lshrrev_b32 v12, 2, v10")
    k("v_lshlrev_b32 v12, 3, v12")
    k("v_and_b32 v13, 3, v10")
    k("v_add_u32 v12, v12, v13")
    k("v_lshlrev_b32 v12, 1, v12")
    k("v_lshlrev_b32 v13, 1, v10")
    k("v_mul_u32_u24 v14, 5120, v11")
    k("v_add_u32 v12, v12, v14")
    k("v_add_u32 v13, v13, v14")
    for j in range(5):
        k(f"s_add_u32 s33, s32, {j}")
        k("s_mul_i32 s34, s33, 1214")
        k("s_lshr_b32 s34, s34, 16")
        k("s_mul_i32 s35, s34, 54")
        k("s_sub_u32 s35, s33, s35")
        k("s_mul_i32 s36, s34, 52429")
        k("s_lshr_b32 s36, s36, 18")
        k("s_mul_i32 s37, s36, 5")
        k("s_sub_u32 s37, s34, s37")
        k("s_lshr_b32 s38, s37, 1")
        k("s_lshl_b32 s38, s38, 5")
        k("s_and_b32 s39, s37, 1")
        k("s_lshl_b32 s39, s39, 2")
        k("s_add_u32 s38, s38, s39")
        k("s_mul_i32 s39, s36, 80")
        k("s_add_u32 s38, s38, s39")
        k("s_lshl_b32 s38, s38, 1")
        k("s_mul_i32 s39, s35, %d" % (32*1280))
        k("s_add_u32 s38, s38, s39")
        k("s_cmp_eq_u32 s37, 4")
        k("s_cselect_b64 s[42:43], -1, 0")
        k(f"v_cndmask_b32 v{14+2*j}, v12, v13, s[42:43]")
        k(f"v_add_u32 v{15+2*j}, 20480, v{14+2*j}")
        for e in range(8):
            k(f"buffer_load_ushort v{64 + 8*j + e}, v{14+2*j + e//4}, s[24:27], s38 offen offset:{(e&3)*1280}")
    k("s_mov_b32 s40, 2")
    k("s_waitcnt vmcnt(40)")
    k.label("prep_stats")
    for i in range(5):
        k(f"v_lshlrev_b32 v{44+2*i}, 16, v{4+i}")
        k(f"v_and_b32 v{45+2*i}, 0xffff0000, v{4+i}")
    k("v_add_f32 v54, v44, v45")
    for i in range(2, 10):
        k(f"v_add_f32 v54, v54, v{44+i}")
    wave_sum_to_sgpr(k, 54, 55, 44)
    k("s_nop 1")
    k("v_mov_b32 v54, s44")
    k(f"v_mul_f32 v54, {1.0/640!r}, v54") if False else k("v_mul_f32 v54, 0x3acccccd, v54")
    for i in range(10):
        k(f"v_sub_f32 v{44+i}, v{44+i}, v54")
    k("v_mul_f32 v56, v44, v44")
    for i in range(1, 10):
        k(f"v_fmac_f32 v56, v{44+i}, v{44+i}")
    wave_sum_to_sgpr(k, 56, 55, 45)
    k("s_nop 1")
    k("v_mov_b32 v56, s45")
    k("v_mul_f32 v56, 0x3acccccd, v56")
    k("v_cvt_pk_bf16_f32 v56, v56, v56")
    k("v_lshlrev_b32 v56, 16, v56")
    k("v_add_f32 v56, 0x3727c5ac, v56")
    k("v_cvt_pk_bf16_f32 v56, v56, v56")
    k("v_lshlrev_b32 v56, 16, v56")
    k("v_sqrt_f32 v56, v56")
    k("s_nop 0")
    k("v_cvt_pk_bf16_f32 v56, v56, v56")
    k("v_lshlrev_b32 v56, 16, v56")
    k("v_rcp_f32 v59, v56")
    k("v_cvt_pk_bf16_f32 v58, v54, v54")
    k("v_lshlrev_b32 v58, 16, v58")
    k("s_lshl_b32 s46, s13, 3")
    k(f"s_add_u32 s46, s46, {WS_STATS1}")
    k("v_mov_b32 v57, 0")
    k("v_cmp_eq_u32 vcc, 0, v2")
    k("s_and_saveexec_b64 s[48:49], vcc")
    k("buffer_store_dwordx2 v[58:59], v57, s[28:31], s46 offen")
    k("s_mov_b64 exec, s[48:49]")
    k("s_cmp_eq_u32 s40, 0")
    k(f"s_cbranch_scc1 {Lend}")
    k("s_waitcnt vmcnt(1)")
    for i in range(20):
        k(f"v_lshl_or_b32 v{24+i}, v{65+2*i}, 16, v{64+2*i}")
    k("s_cmp_eq_u32 s40, 2")
    k("s_cbranch_scc1 prep_w2_store")
    k("s_mul_i32 s34, s32, 20")
    k("s_mul_i32 s35, s33, 5")
    k("s_add_u32 s34, s34, s35")
    k("s_lshl_b32 s34, s34, 10")
    k(f"s_add_u32 s34, s34, {WS_WF1}")
    for j in range(5):
        k(f"buffer_store_dwordx4 v[{24+4*j}:{27+4*j}], v3, s[28:31], s34 offen offset:{0}")
        if j < 4: k("s_add_u32 s34, s34, 1024")
    k("v_mov_b32 v60, 0")
    for i in range(20):
        k(f"v_lshlrev_b32 v61, 16, v{24+i}")
        k(f"v_and_b32 v62, 0xffff0000, v{24+i}")
        k("v_add_f32 v60, v60, v61")
        k("v_add_f32 v60, v60, v62")
    k("v_mov_b32 v61, v60")
    k("s_nop 1")
    k("v_permlane32_swap_b32 v60, v61")
    k("s_nop 1")
    k("v_add_f32 v60, v60, v61")
    k("v_mov_b32 v61, v60")
    k("s_nop 1")
    k("v_permlane16_swap_b32 v60, v61")
    k("s_nop 1")
    k("v_add_f32 v60, v60, v61")
    k("s_mul_i32 s34, s33, %d" % (F*4))
    k("s_lshl_b32 s35, s32, 6")
    k("s_add_u32 s34, s34, s35")
    k(f"s_add_u32 s34, s34, {WS_CS1}")
    k("v_lshlrev_b32 v61, 2, v10")
    k("v_cmp_gt_u32 vcc, 16, v2")
    k("s_and_saveexec_b64 s[48:49], vcc")
    k("buffer_store_dword v60, v61, s[28:31], s34 offen")
    k("s_mov_b64 exec, s[48:49]")
    k(f"s_branch {Lend}")
    k.label("prep_w2_store")
    k("s_lshl_b32 s34, s32, 10")
    k(f"s_add_u32 s34, s34, {WS_WF2}")
    for j in range(5):
        k(f"buffer_store_dwordx4 v[{24+4*j}:{27+4*j}], v3, s[28:31], s34 offen")
        if j < 4: k("s_add_u32 s34, s34, 1024")
    k.label(Lend)
    return dict(name="prep_kernel", grid=256, block=512, lds=0, k=k, vgpr=104)
```

```python
from lib import *
from layout import *

T_OFF = 0
T_WAVE = 8704
T_SLOT = 4352
T_ROW = 272
PX_OFF = 69632
KC_OFF = 81920
KC_CH = 1536
KEO_OFF = 88064
KEO_CH = 8320
O_REL = 4160
U_OFF = KEO_OFF + 4*KEO_CH
U_CH = 4608
K2_LDS = U_OFF + 4*U_CH
YX_OFF = 0
YT_OFF = 32768

LOG2E = 0x3fb8aa3b
INV2PI = 0x3e22f983

def cmul_inplace(k, ar, ai, br, bi, t, t2):
    k(f"v_mul_f32 v{t}, v{ar}, v{br}")
    k(f"v_mul_f32 v{t2}, v{ar}, v{bi}")
    k(f"v_fma_f32 v{ar}, -v{ai}, v{bi}, v{t}")
    k(f"v_fma_f32 v{ai}, v{ai}, v{br}, v{t2}")
def cmul(k, dr, di, ar, ai, br, bi, t, t2):
    k(f"v_mul_f32 v{t}, v{ar}, v{br}")
    k(f"v_mul_f32 v{t2}, v{ar}, v{bi}")
    k(f"v_fma_f32 v{dr}, -v{ai}, v{bi}, v{t}")
    k(f"v_fma_f32 v{di}, v{ai}, v{br}, v{t2}")
def csq(k, dr, di, ar, ai, t):
    k(f"v_mul_f32 v{t}, v{ai}, v{ai}")
    k(f"v_add_f32 v{di}, v{ar}, v{ar}")
    k(f"v_fma_f32 v{dr}, v{ar}, v{ar}, -v{t}")
    k(f"v_mul_f32 v{di}, v{di}, v{ai}")

def gen_k2():
    k = K("conv_kernel")
    k("s_cmp_ge_u32 s2, 160")
    k("s_cbranch_scc1 conv_end")
    k("s_load_dwordx4 s[4:7], s[0:1], 0")
    k("s_load_dwordx4 s[8:11], s[0:1], 16")
    k("s_load_dwordx4 s[12:15], s[0:1], 32")
    k("s_load_dwordx4 s[16:19], s[0:1], 48")
    k("s_load_dwordx2 s[20:21], s[0:1], 64")
    k("s_load_dwordx2 s[22:23], s[0:1], 120")
    k("v_and_b32 v1, 63, v0")
    k("v_lshrrev_b32 v4, 6, v0")
    k("v_and_b32 v2, 15, v1")
    k("v_lshrrev_b32 v3, 4, v1")
    k("v_readfirstlane_b32 s24, v4")
    k("s_waitcnt lgkmcnt(0)")
    k("s_lshr_b32 s25, s24, 1")
    k("s_and_b32 s26, s24, 1")
    k("s_lshl_b32 s27, s2, 3")
    k("s_add_u32 s18, s18, s27\n s_addc_u32 s19, s19, 0")
    k("s_add_u32 s20, s20, s27\n s_addc_u32 s21, s21, 0")
    k("s_load_dwordx2 s[28:29], s[18:19], 0")
    k("s_load_dwordx2 s[30:31], s[20:21], 0")
    k("s_lshl_b32 s32, s2, 2")
    k("s_add_u32 s32, s32, s25")
    k("s_lshl_b32 s32, s32, 8")
    k("s_lshl_b32 s33, s26, 7")
    k("s_add_u32 s32, s32, s33")
    k("v_lshlrev_b32 v5, 1, v1")
    k("v_add_u32 v5, s32, v5")
    k("global_load_ushort v24, v5, s[6:7]")
    k("global_load_ushort v25, v5, s[8:9]")
    k("global_load_ushort v26, v5, s[10:11]")
    k("global_load_ushort v27, v5, s[12:13]")
    k("global_load_ushort v28, v5, s[14:15]")
    k("global_load_ushort v29, v5, s[16:17]")
    srd(k, 36, 4, 5, L*D*2)
    srd(k, 40, 22, 23, WS_END)
    k("v_mul_u32_u24 v6, 5120, v0")
    for tt in range(4):
        k(f"buffer_load_dwordx2 v[{8+2*tt}:{9+2*tt}], v6, s[36:39], s27 offen offset:{1280*tt}")
    k("v_lshlrev_b32 v7, 5, v0")
    k(f"buffer_load_dwordx4 v[16:19], v7, s[40:43], 0 offen offset:{WS_STATS1}")
    k(f"buffer_load_dwordx4 v[20:23], v7, s[40:43], 0 offen offset:{WS_STATS1+16}")
    k("v_mov_b32 v30, 0\n v_mov_b32 v31, 0\n v_mov_b32 v32, 0\n v_mov_b32 v33, 0")
    k("v_lshrrev_b32 v34, 5, v0")
    k(f"v_mul_u32_u24 v34, {U_CH}, v34")
    k("v_and_b32 v35, 31, v0")
    k("v_lshl_add_u32 v34, v35, 4, v34")
    k(f"v_add_u32 v34, {U_OFF}, v34")
    k("v_cmp_gt_u32 vcc, 128, v0")
    k("s_and_saveexec_b64 s[44:45], vcc")
    k("s_cbranch_execz conv_z1")
    k("ds_write_b128 v34, v[30:33]")
    k.label("conv_z1")
    k("s_mov_b64 exec, s[44:45]")
    k("v_subrev_u32 v34, 128, v0")
    k("v_lshrrev_b32 v35, 4, v34")
    k(f"v_mul_u32_u24 v35, {KEO_CH}, v35")
    k("v_bfe_u32 v36, v34, 3, 1")
    k(f"v_mul_u32_u24 v36, {O_REL}, v36")
    k("v_add_u32 v35, v35, v36")
    k("v_and_b32 v36, 7, v34")
    k("v_lshl_add_u32 v35, v36, 2, v35")
    k(f"v_add_u32 v35, {KEO_OFF + 4096}, v35")
    k("v_cmp_gt_u32 vcc, 64, v34")
    k("s_and_saveexec_b64 s[44:45], vcc")
    k("s_cbranch_execz conv_z2")
    k("ds_write_b32 v35, v30")
    k.label("conv_z2")
    k("s_mov_b64 exec, s[44:45]")
    k("s_waitcnt lgkmcnt(0)")
    k("s_cmp_ge_u32 s25, 2")
    k("s_cselect_b32 s34, s29, s28")
    k("s_and_b32 s35, s25, 1")
    k("s_lshl_b32 s35, s35, 4")
    k("s_lshr_b32 s34, s34, s35")
    k("s_lshl_b32 s34, s34, 16")
    k(f"v_mov_b32 v30, {LOG2E:#x}")
    k("v_mul_f32 v30, s34, v30")
    k("v_exp_f32 v30, v30")
    k("s_nop 0")
    k("v_cvt_pk_bf16_f32 v30, v30, v30")
    k("v_lshlrev_b32 v30, 16, v30")
    k("s_waitcnt vmcnt(6)")
    for i in range(6):
        k(f"v_lshlrev_b32 v{24+i}, 16, v{24+i}")
    k("v_mul_f32 v24, v30, v24")
    k("v_mul_f32 v25, v30, v25")
    k(f"v_mul_f32 v24, {LOG2E:#x}, v24")
    k(f"v_mul_f32 v25, {INV2PI:#x}, v25")
    k("v_mul_f32 v26, v30, v26")
    k("v_mul_f32 v27, v30, v27")
    cmul(k, 32, 33, 28, 29, 26, 27, 30, 31)
    def direct(dr, di, e):
        k(f"v_mul_f32 v30, {float(e)}, v24" if e in (1,) else f"v_mul_f32 v30, 0x{int.from_bytes(__import__('struct').pack('<f', float(e)), 'little'):08x}, v24")
        k(f"v_mul_f32 v31, 0x{int.from_bytes(__import__('struct').pack('<f', float(e)), 'little'):08x}, v25")
        k("v_exp_f32 v30, v30")
        k("v_fract_f32 v31, v31")
        k(f"v_cos_f32 v{dr}, v31")
        k(f"v_sin_f32 v{di}, v31")
        k("s_nop 0")
        k(f"v_mul_f32 v{dr}, v30, v{dr}")
        k(f"v_mul_f32 v{di}, v30, v{di}")
    direct(34, 35, 1)
    direct(36, 37, 16)
    direct(38, 39, 256)
    csq(k, 40, 41, 34, 35, 30)
    csq(k, 42, 43, 40, 41, 30)
    csq(k, 44, 45, 42, 43, 30)
    k(f"s_mul_i32 s34, s24, {T_WAVE}")
    k("v_lshlrev_b32 v46, 2, v1")
    k("v_add_u32 v46, s34, v46")
    k(f"v_mul_u32_u24 v47, {T_ROW}, v2")
    k("v_lshl_add_u32 v47, v3, 4, v47")
    k("v_add_u32 v47, s34, v47")
    pk = [48, 49, 50, 51]
    cnt = [0]
    def put(slot, row, re, im, neg_im=False):
        p = pk[cnt[0] % 4]; cnt[0] += 1
        k(f"v_cvt_pk_bf16_f32 v{p}, v{re}, {'-' if neg_im else ''}v{im}")
        k(f"ds_write_b32 v46, v{p} offset:{slot*T_SLOT + row*T_ROW}")
    k("v_mov_b32 v52, 1.0\n v_mov_b32 v53, 0")
    put(0, 0, 52, 53, True)
    k("v_mov_b32 v52, v36\n v_mov_b32 v53, v37")
    k("v_mov_b32 v54, v32\n v_mov_b32 v55, v33")
    put(0, 1, 52, 53, True)
    put(1, 0, 54, 55)
    for i in range(1, 16):
        cmul_inplace(k, 54, 55, 34, 35, 30, 31)
        if i >= 2:
            cmul_inplace(k, 52, 53, 36, 37, 56, 57)
        put(1, i, 54, 55)
        if i >= 2:
            put(0, i, 52, 53, True)
    for ks in range(4):
        k(f"ds_read_b128 v[{60+4*ks}:{63+4*ks}], v47 offset:{64*ks}")
    for ks in range(4):
        k(f"ds_read_b128 v[{76+4*ks}:{79+4*ks}], v47 offset:{T_SLOT + 64*ks}")
    cmul(k, 52, 53, 32, 33, 38, 39, 30, 31)
    k("v_mov_b32 v54, v52\n v_mov_b32 v55, v53")
    put(0, 0, 54, 55)
    for r in range(1, 8):
        cmul_inplace(k, 54, 55, 40, 41, 30, 31)
        put(0, r, 54, 55)
    for j in (2, 3):
        cmul_inplace(k, 52, 53, 38, 39, 56, 57)
        k("v_mov_b32 v54, v52\n v_mov_b32 v55, v53")
        put(0, 8 + 4*(j-2), 54, 55)
        for r in range(1, 4):
            cmul_inplace(k, 54, 55, 42, 43, 30, 31)
            put(0, 8 + 4*(j-2) + r, 54, 55)
    for j in range(4):
        cmul_inplace(k, 52, 53, 38, 39, 56, 57)
        put(1, 2*j, 52, 53)
        cmul(k, 54, 55, 52, 53, 44, 45, 30, 31)
        put(1, 2*j+1, 54, 55)
    cmul_inplace(k, 52, 53, 38, 39, 56, 57)
    put(1, 8, 52, 53)
    k("v_mov_b32 v58, 0")
    for r in range(9, 16):
        k(f"ds_write_b32 v46, v58 offset:{T_SLOT + r*T_ROW}")
    k("s_waitcnt lgkmcnt(0)")
    for ks in range(4):
        c = "0" if ks == 0 else "v[92:95]"
        k(f"v_mfma_f32_16x16x32_bf16 v[92:95], v[{76+4*ks}:{79+4*ks}], v[{60+4*ks}:{63+4*ks}], {c}")
    for ks in range(4):
        k(f"ds_read_b128 v[{104+4*ks}:{107+4*ks}], v47 offset:{64*ks}")
    for ks in range(4):
        k(f"ds_read_b128 v[{120+4*ks}:{123+4*ks}], v47 offset:{T_SLOT + 64*ks}")
    k("s_waitcnt lgkmcnt(4)")
    for ks in range(4):
        c = "0" if ks == 0 else "v[96:99]"
        k(f"v_mfma_f32_16x16x32_bf16 v[96:99], v[{104+4*ks}:{107+4*ks}], v[{60+4*ks}:{63+4*ks}], {c}")
    k("s_waitcnt lgkmcnt(0)")
    for ks in range(4):
        c = "0" if ks == 0 else "v[100:103]"
        k(f"v_mfma_f32_16x16x32_bf16 v[100:103], v[{120+4*ks}:{123+4*ks}], v[{60+4*ks}:{63+4*ks}], {c}")
    k(f"s_mul_i32 s34, s25, 3072")
    k(f"s_add_u32 s34, s34, {PX_OFF}")
    k("v_lshlrev_b32 v48, 4, v1")
    k("v_add_u32 v48, s34, v48")
    k("s_nop 7")
    k("s_cmp_eq_u32 s26, 0")
    k("s_cbranch_scc1 conv_px_even")
    k("ds_write_b128 v48, v[92:95]")
    k("ds_write_b128 v48, v[96:99] offset:1024")
    k("ds_write_b128 v48, v[100:103] offset:2048")
    k("s_waitcnt lgkmcnt(0)")
    k.label("conv_px_even")
    k("s_barrier")
    k("s_cmp_eq_u32 s26, 1")
    k("s_cbranch_scc1 conv_kc_done")
    k("ds_read_b128 v[104:107], v48")
    k("ds_read_b128 v[108:111], v48 offset:1024")
    k("ds_read_b128 v[112:115], v48 offset:2048")
    k(f"s_mul_i32 s34, s25, {KC_CH}")
    k(f"s_add_u32 s34, s34, {KC_OFF}")
    k("v_lshlrev_b32 v49, 5, v2")
    k("v_lshl_add_u32 v49, v3, 3, v49")
    k("v_add_u32 v49, s34, v49")
    k("v_lshlrev_b32 v50, 4, v2")
    k("v_lshl_add_u32 v50, v3, 3, v50")
    k("v_add_u32 v50, 512, v50")
    k("v_lshlrev_b32 v51, 3, v2")
    k("v_lshl_add_u32 v51, v3, 7, v51")
    k("v_add_u32 v51, %d, v51" % (768 - 256))
    k("v_cmp_gt_u32 vcc, 2, v3")
    k("s_nop 1")
    k("v_cndmask_b32 v50, v51, v50, vcc")
    k("v_add_u32 v50, s34, v50")
    k("v_lshlrev_b32 v51, 2, v2")
    k("v_lshl_add_u32 v51, v3, 7, v51")
    k("v_add_u32 v51, 1024, v51")
    k("v_add_u32 v51, s34, v51")
    k("s_waitcnt lgkmcnt(0)")
    for i in range(12):
        k(f"v_add_f32 v{92+i}, v{92+i}, v{104+i}")
    for t in range(3):
        k(f"v_cvt_pk_bf16_f32 v{104+2*t}, v{92+4*t}, v{93+4*t}")
        k(f"v_cvt_pk_bf16_f32 v{105+2*t}, v{94+4*t}, v{95+4*t}")
    k("ds_write_b64 v49, v[104:105]")
    k("ds_write_b64 v50, v[106:107]")
    k("ds_write_b32 v51, v108")
    k("ds_write_b32 v51, v109 offset:64")
    k("s_waitcnt lgkmcnt(0)")
    k.label("conv_kc_done")
    k("s_waitcnt vmcnt(0)")
    for tt in range(4):
        for h in range(2):
            k(f"v_lshlrev_b32 v{60+4*tt+2*h}, 16, v{8+2*tt+h}")
            k(f"v_and_b32 v{61+4*tt+2*h}, 0xffff0000, v{8+2*tt+h}")
    for tt in range(4):
        for c in range(4):
            k(f"v_sub_f32 v{76+4*tt+c}, v{60+4*tt+c}, v{16+2*tt}")
            k(f"v_mul_f32 v{76+4*tt+c}, v{76+4*tt+c}, v{17+2*tt}")
    for c in range(4):
        k(f"v_cvt_pk_bf16_f32 v{176+2*c}, v{76+c}, v{80+c}")
        k(f"v_cvt_pk_bf16_f32 v{177+2*c}, v{84+c}, v{88+c}")
    k("v_lshlrev_b32 v48, 3, v0")
    k(f"v_add_u32 v48, {U_OFF + 512}, v48")
    for c in range(4):
        k(f"ds_write_b64 v48, v[{176+2*c}:{177+2*c}] offset:{c*U_CH}")
    for j in range(5):
        k(f"v_lshlrev_b32 v58, 2, v0")
        k(f"v_sub_u32 v58, {2047 - j}, v58")
        k("v_cvt_f32_i32 v59, v58")
        k("v_cvt_pk_bf16_f32 v59, v59, v59")
        k("v_and_b32 v59, 0xffff, v59")
        k("v_subrev_u32 v59, 17024, v59")
        k("v_cmp_gt_i32 vcc, 128, v58")
        k("s_nop 1")
        k("v_cndmask_b32 v59, v59, v58, vcc")
        if j == 4:
            k("v_cmp_gt_i32 vcc, 0, v58")
            k("v_mov_b32 v57, 641")
            k("s_nop 0")
            k("v_cndmask_b32 v59, v59, v57, vcc")
        k(f"v_lshlrev_b32 v{52+j}, 1, v59")
        k(f"v_add_u32 v{52+j}, {KC_OFF}, v{52+j}")
    k("s_waitcnt lgkmcnt(0)")
    k("s_barrier")
    k(f"v_lshlrev_b32 v48, 3, v0")
    k(f"v_add_u32 v48, {KEO_OFF}, v48")
    for c in range(4):
        for j in range(5):
            k(f"ds_read_u16 v{60+5*c+j}, v{52+j} offset:{c*KC_CH}")
    for c in range(4):
        k(f"s_waitcnt lgkmcnt({15 - 5*c})")
        b = 60 + 5*c
        k(f"v_lshl_or_b32 v{84+4*c}, v{b+1}, 16, v{b}")
        k(f"v_lshl_or_b32 v{85+4*c}, v{b+3}, 16, v{b+2}")
        k(f"v_lshl_or_b32 v{86+4*c}, v{b+2}, 16, v{b+1}")
        k(f"v_lshl_or_b32 v{87+4*c}, v{b+4}, 16, v{b+3}")
    for c in range(4):
        k(f"ds_write_b64 v48, v[{84+4*c}:{85+4*c}] offset:{c*KEO_CH}")
        k(f"ds_write_b64 v48, v[{86+4*c}:{87+4*c}] offset:{c*KEO_CH + O_REL}")
    k("v_lshlrev_b32 v50, 1, v2")
    k("v_sub_u32 v50, 4062, v50")
    k("v_lshl_add_u32 v50, v3, 4, v50")
    k("v_and_b32 v51, 1, v2")
    k("v_cmp_eq_u32 vcc, 0, v51")
    k("v_mov_b32 v51, 4158")
    k("s_nop 0")
    k("v_cndmask_b32 v51, 0, v51, vcc")
    k("v_add_u32 v50, v50, v51")
    k(f"s_mul_i32 s34, s25, {KEO_CH}")
    k(f"s_add_u32 s34, s34, {KEO_OFF}")
    k("s_lshl_b32 s35, s26, 8")
    k("s_sub_u32 s34, s34, s35")
    for p in range(4):
        k(f"s_sub_u32 s35, s34, {512*(2*p+1)}")
        k(f"v_add_u32 v{184+p}, s35, v50")
    k(f"s_mul_i32 s34, s25, {U_CH}")
    k(f"s_add_u32 s34, s34, {U_OFF + 480}")
    k("s_lshl_b32 s35, s26, 8")
    k("s_sub_u32 s34, s34, s35")
    k("v_lshlrev_b32 v188, 5, v2")
    k("v_lshl_add_u32 v188, v3, 4, v188")
    k("v_add_u32 v188, s34, v188")
    for i in range(32):
        k(f"v_mov_b32 v{80+i}, 0") if False else None
    k("s_waitcnt lgkmcnt(0)")
    k("s_barrier")
    for i in range(32):
        k(f"v_mov_b32 v{192+i}, 0")
    ACC = 192
    BF = 112
    AF = 144
    k("s_mov_b32 s34, 0")
    k.label("conv_loop")
    for J in range(8):
        k(f"ds_read_b128 v[{BF+4*J}:{BF+4*J+3}], v188 offset:{512*J}")
    def loadA(a):
        p = a // 2
        off = 128 if a % 2 == 0 else 0
        k(f"ds_read2_b32 v[{AF+4*a}:{AF+4*a+1}], v{184+p} offset0:{off} offset1:{off+1}")
        k(f"ds_read2_b32 v[{AF+4*a+2}:{AF+4*a+3}], v{184+p} offset0:{off+2} offset1:{off+3}")
    for a in range(3): loadA(a)
    k("s_waitcnt lgkmcnt(4)")
    def mf(a):
        for J in range(a, 8):
            k(f"v_mfma_f32_16x16x32_bf16 v[{ACC+4*J}:{ACC+4*J+3}], v[{AF+4*a}:{AF+4*a+3}], v[{BF+4*(J-a)}:{BF+4*(J-a)+3}], v[{ACC+4*J}:{ACC+4*J+3}]")
    for a in range(3, 8): loadA(a)
    mf(0)
    k("s_waitcnt lgkmcnt(12)")
    mf(1)
    k("s_waitcnt lgkmcnt(10)")
    mf(2)
    k("s_waitcnt lgkmcnt(8)")
    mf(3)
    k("s_waitcnt lgkmcnt(6)")
    mf(4)
    k("s_waitcnt lgkmcnt(4)")
    mf(5)
    k("s_waitcnt lgkmcnt(2)")
    mf(6)
    k("s_waitcnt lgkmcnt(0)")
    mf(7)
    for p in range(4):
        k(f"v_subrev_u32 v{184+p}, 64, v{184+p}")
    k("v_subrev_u32 v188, 64, v188")
    k("s_add_u32 s34, s34, 1")
    k("s_cmp_lt_u32 s34, 4")
    k("s_cbranch_scc1 conv_loop")
    k("s_lshl_b32 s34, s24, 12")
    k("v_lshlrev_b32 v48, 4, v1")
    k(f"v_add_u32 v49, s34, v48")
    k("s_xor_b32 s35, s24, 1")
    k("s_lshl_b32 s35, s35, 12")
    k("v_add_u32 v50, s35, v48")
    k("s_nop 7")
    k("s_cmp_eq_u32 s26, 0")
    k("s_cbranch_scc1 conv_yx_h0")
    for J in range(4):
        k(f"ds_write_b128 v49, v[{ACC+4*J}:{ACC+4*J+3}] offset:{YX_OFF + 1024*J}")
    for i in range(16):
        k(f"v_mov_b32 v{112+i}, v{ACC+16+i}")
    k("s_branch conv_yx_join")
    k.label("conv_yx_h0")
    for J in range(4):
        k(f"ds_write_b128 v49, v[{ACC+16+4*J}:{ACC+16+4*J+3}] offset:{YX_OFF + 1024*J}")
    for i in range(16):
        k(f"v_mov_b32 v{112+i}, v{ACC+i}")
    k.label("conv_yx_join")
    k("s_waitcnt lgkmcnt(0)")
    k("s_barrier")
    for J in range(4):
        k(f"ds_read_b128 v[{128+4*J}:{131+4*J}], v50 offset:{YX_OFF + 1024*J}")
    k("s_lshl_b32 s34, s25, 13")
    k("s_lshl_b32 s35, s26, 12")
    k("s_add_u32 s34, s34, s35")
    k(f"s_add_u32 s34, s34, {YT_OFF}")
    k("v_lshlrev_b32 v51, 6, v2")
    k("v_lshl_add_u32 v51, v3, 4, v51")
    k("v_add_u32 v51, s34, v51")
    k("s_waitcnt lgkmcnt(0)")
    for i in range(16):
        k(f"v_add_f32 v{112+i}, v{112+i}, v{128+i}")
    for J in range(4):
        k(f"ds_write_b128 v51, v[{112+4*J}:{115+4*J}] offset:{1024*J}")
    k("s_waitcnt lgkmcnt(0)")
    k("s_barrier")
    k("v_lshlrev_b32 v48, 4, v0")
    for c in range(4):
        k(f"ds_read_b128 v[{112+4*c}:{115+4*c}], v48 offset:{YT_OFF + 8192*c}")
    k("s_lshl_b32 s48, s30, 16")
    k("s_and_b32 s49, s30, 0xffff0000")
    k("s_lshl_b32 s50, s31, 16")
    k("s_and_b32 s51, s31, 0xffff0000")
    for tt in range(4):
        for h in range(2):
            k(f"v_lshlrev_b32 v{60+4*tt+2*h}, 16, v{8+2*tt+h}")
            k(f"v_and_b32 v{61+4*tt+2*h}, 0xffff0000, v{8+2*tt+h}")
    for c in range(4):
        for h in range(2):
            k(f"v_lshlrev_b32 v{76+4*c+2*h}, 16, v{176+2*c+h}")
            k(f"v_and_b32 v{77+4*c+2*h}, 0xffff0000, v{176+2*c+h}")
    k("s_waitcnt lgkmcnt(0)")
    for c in range(4):
        for tt in range(4):
            k(f"v_fma_f32 v{112+4*c+tt}, v{76+4*c+tt}, s{48+c}, v{112+4*c+tt}")
            k(f"v_add_f32 v{60+4*tt+c}, v{60+4*tt+c}, v{112+4*c+tt}")
    for tt in range(4):
        k(f"v_cvt_pk_bf16_f32 v{128+2*tt}, v{60+4*tt}, v{61+4*tt}")
        k(f"v_cvt_pk_bf16_f32 v{129+2*tt}, v{62+4*tt}, v{63+4*tt}")
    k("v_lshrrev_b32 v48, 2, v0")
    k("v_mul_u32_u24 v48, 20480, v48")
    k("v_and_b32 v49, 3, v0")
    k("v_lshl_add_u32 v48, v49, 5, v48")
    k("s_lshr_b32 s34, s2, 3")
    k("s_lshl_b32 s34, s34, 10")
    k("s_and_b32 s35, s2, 1")
    k("s_lshl_b32 s35, s35, 9")
    k("s_add_u32 s34, s34, s35")
    k("s_lshr_b32 s35, s2, 1")
    k("s_and_b32 s35, s35, 3")
    k("s_lshl_b32 s35, s35, 7")
    k("s_add_u32 s34, s34, s35")
    k(f"s_add_u32 s34, s34, {WS_HF}")
    k("buffer_store_dwordx4 v[128:131], v48, s[40:43], s34 offen")
    k("buffer_store_dwordx4 v[132:135], v48, s[40:43], s34 offen offset:16")
    k.label("conv_end")
    return dict(name="conv_kernel", grid=160, block=512, lds=K2_LDS, k=k, vgpr=224)
```

```python
from lib import *
from layout import *

LOG2E = 0x3fb8aa3b
W_LDS = 143360
CB_OFF = W_LDS
K3_LDS = W_LDS + 1024

def gen_k3():
    k = K("gemm1_kernel")
    k("s_cmp_ge_u32 s2, 256")
    k("s_cbranch_scc1 g1_end")
    k("s_load_dwordx2 s[4:5], s[0:1], 120")
    k("s_load_dwordx2 s[6:7], s[0:1], 88")
    k("v_and_b32 v1, 63, v0")
    k("v_lshrrev_b32 v4, 6, v0")
    k("v_and_b32 v2, 15, v1")
    k("v_lshrrev_b32 v3, 4, v1")
    k("v_readfirstlane_b32 s8, v4")
    k("s_and_b32 s9, s2, 7\n s_lshr_b32 s9, s9, 1\n s_lshl_b32 s9, s9, 2")
    k("s_lshr_b32 s10, s2, 3\n s_and_b32 s10, s10, 3\n s_add_u32 s9, s9, s10")
    k("s_and_b32 s10, s2, 1\n s_lshl_b32 s10, s10, 3\n s_lshr_b32 s11, s2, 5\n s_add_u32 s10, s10, s11")
    k("s_mul_i32 s10, s10, 7\n s_min_u32 s10, s10, 101")
    k("s_waitcnt lgkmcnt(0)")
    srd(k, 12, 4, 5, WS_END)
    srd(k, 16, 6, 7, F*2)
    k("v_lshlrev_b32 v5, 4, v1")
    k("v_lshlrev_b32 v6, 3, v1")
    k("s_lshl_b32 s20, s9, 3\n s_lshl_b32 s21, s8, 1\n s_add_u32 s20, s20, s21")
    k(f"s_mul_i32 s21, s20, 20480\n s_add_u32 s21, s21, {WS_HF}")
    k(f"s_mul_i32 s22, s10, 20480\n s_add_u32 s22, s22, {WS_WF1}")
    def issue_stage(c):
        for jj in range(7):
            j = 7*c + jj
            k(f"s_add_u32 s23, s8, {4*j}")
            k("s_mul_i32 s24, s23, 9363\n s_lshr_b32 s24, s24, 16")
            k("s_mul_i32 s25, s24, 7\n s_sub_u32 s25, s23, s25")
            k("s_mul_i32 s25, s25, 20480")
            k("s_lshl_b32 s24, s24, 10")
            k("s_add_u32 s25, s25, s24\n s_add_u32 s25, s25, s22")
            k("s_lshl_b32 m0, s23, 10")
            k("s_nop 0")
            k("buffer_load_dwordx4 v5, s[12:15], s25 offen lds")
        for sl in range(4):
            s = 4*c + sl
            for tt in range(2):
                k(f"s_add_u32 s26, s21, {tt*20480 + s*1024}")
                a0 = (tt*20 + s)*4
                k(f"buffer_load_dwordx2 a[{a0}:{a0+1}], v6, s[12:15], s26 offen")
                k(f"buffer_load_dwordx2 a[{a0+2}:{a0+3}], v6, s[12:15], s26 offen offset:512")
    k("v_lshlrev_b32 v7, 2, v0")
    k(f"s_lshl_b32 s27, s10, 6\n s_add_u32 s27, s27, {WS_CS1}")
    k("v_lshlrev_b32 v8, 1, v0")
    k("s_lshl_b32 s28, s10, 5")
    for q in range(4):
        k(f"buffer_load_dword v{10+q}, v7, s[12:15], s27 offen")
        if q < 3: k(f"s_add_u32 s27, s27, {F*4}")
    k("buffer_load_ushort v14, v8, s[16:19], s28 offen")
    issue_stage(0)
    issue_stage(1)
    for i in range(4):
        k(f"v_mov_b32 v{20+i}, 0x3f803f80")
    ACC = 24
    S1 = 80
    S2 = 88
    AFR = 96
    for i in range(72):
        k(f"v_mov_b32 v{ACC+i}, 0")
    k("s_waitcnt vmcnt(46)")
    k("v_add_f32 v10, v10, v11\n v_add_f32 v12, v12, v13\n v_add_f32 v10, v10, v12")
    k("v_lshlrev_b32 v14, 16, v14")
    k(f"v_add_u32 v9, {CB_OFF}, v7")
    k("v_cmp_gt_u32 vcc, 112, v0")
    k("s_and_saveexec_b64 s[30:31], vcc")
    k("s_cbranch_execz g1_cb")
    k("ds_write_b32 v9, v10")
    k("ds_write_b32 v9, v14 offset:448")
    k.label("g1_cb")
    k("s_mov_b64 exec, s[30:31]")
    def readA(s, buf):
        for ftl in range(7):
            k(f"ds_read_b128 v[{AFR+28*buf+4*ftl}:{AFR+28*buf+4*ftl+3}], v5 offset:{(s*7+ftl)*1024 % 65536}" if (s*7+ftl)*1024 < 65536 else
              f"ds_read_b128 v[{AFR+28*buf+4*ftl}:{AFR+28*buf+4*ftl+3}], v{152 + (s*7+ftl)*1024 // 65536} offset:{(s*7+ftl)*1024 % 65536}")
    k("v_add_u32 v153, 0x10000, v5\n v_add_u32 v154, 0x20000, v5")
    def mfmas(s, buf):
        for tt in range(2):
            b0 = (tt*20 + s)*4
            k(f"v_mfma_f32_16x16x32_bf16 v[{S1+4*tt}:{S1+4*tt+3}], v[20:23], a[{b0}:{b0+3}], v[{S1+4*tt}:{S1+4*tt+3}]")
            k(f"v_mfma_f32_16x16x32_bf16 v[{S2+4*tt}:{S2+4*tt+3}], a[{b0}:{b0+3}], a[{b0}:{b0+3}], v[{S2+4*tt}:{S2+4*tt+3}]")
        for ftl in range(7):
            for tt in range(2):
                b0 = (tt*20 + s)*4
                c = ACC + 4*(ftl*2+tt)
                k(f"v_mfma_f32_16x16x32_bf16 v[{c}:{c+3}], v[{AFR+28*buf+4*ftl}:{AFR+28*buf+4*ftl+3}], a[{b0}:{b0+3}], v[{c}:{c+3}]")
    for c in range(5):
        k(f"s_waitcnt vmcnt({23 if c < 4 else 0})")
        k("s_waitcnt lgkmcnt(0)")
        k("s_barrier")
        if c + 2 < 5: issue_stage(c + 2)
        readA(4*c, 0)
        for sl in range(4):
            s = 4*c + sl
            if sl < 3:
                readA(s + 1, (sl + 1) % 2)
                k("s_waitcnt lgkmcnt(7)")
            else:
                k("s_waitcnt lgkmcnt(0)")
            mfmas(s, sl % 2)
    k("v_and_b32 v10, 3, v2")
    k("v_lshrrev_b32 v11, 2, v2")
    k("v_lshl_add_u32 v11, v11, 4, v2")
    k("v_lshlrev_b32 v11, 2, v11")
    k("s_nop 7")
    for tt in range(2):
        b = S2 + 4*tt
        k(f"v_cmp_eq_u32 vcc, 1, v10\n s_nop 1\n v_cndmask_b32 v{b}, v{b}, v{b+1}, vcc")
        k(f"v_cmp_eq_u32 vcc, 2, v10\n s_nop 1\n v_cndmask_b32 v{b}, v{b}, v{b+2}, vcc")
        k(f"v_cmp_eq_u32 vcc, 3, v10\n s_nop 1\n v_cndmask_b32 v{b}, v{b}, v{b+3}, vcc")
        k(f"ds_bpermute_b32 v{b+1}, v11, v{b}")
    k("s_waitcnt lgkmcnt(0)")
    for tt in range(2):
        m = S1 + 4*tt; q = S2 + 4*tt + 1
        k(f"v_mul_f32 v{m}, 0x3acccccd, v{m}")
        k(f"v_mul_f32 v{q}, 0x3acccccd, v{q}")
        k(f"v_fma_f32 v{q}, -v{m}, v{m}, v{q}")
        k(f"v_max_f32 v{q}, 0, v{q}")
        k(f"v_cvt_pk_bf16_f32 v{q}, v{q}, v{q}\n v_lshlrev_b32 v{q}, 16, v{q}")
        k(f"v_add_f32 v{q}, 0x3727c5ac, v{q}")
        k(f"v_cvt_pk_bf16_f32 v{q}, v{q}, v{q}\n v_lshlrev_b32 v{q}, 16, v{q}")
        k(f"v_sqrt_f32 v{q}, v{q}\n s_nop 0")
        k(f"v_cvt_pk_bf16_f32 v{q}, v{q}, v{q}\n v_lshlrev_b32 v{q}, 16, v{q}")
        k(f"v_rcp_f32 v{m+1}, v{q}")
        k(f"v_cvt_pk_bf16_f32 v{m}, v{m}, v{m}\n v_lshlrev_b32 v{m}, 16, v{m}")
        k(f"v_mul_f32 v{m+2}, v{m}, v{m+1}")
    k(f"v_lshlrev_b32 v12, 4, v3\n v_add_u32 v12, {CB_OFF}, v12")
    k(f"s_mul_i32 s23, s20, {108*512}\n s_lshl_b32 s24, s10, 9\n s_add_u32 s23, s23, s24\n s_add_u32 s23, s23, {WS_ACT}")
    k("v_mov_b32 v13, 0x422c0000")
    for ftl in range(7):
        k(f"ds_read_b128 v[96:99], v12 offset:{64*ftl}")
        k(f"ds_read_b128 v[100:103], v12 offset:{448 + 64*ftl}")
        k("s_waitcnt lgkmcnt(0)")
        for tt in range(2):
            c = ACC + 4*(ftl*2+tt)
            r = S1 + 4*tt + 1; rm = S1 + 4*tt + 2
            for i in range(4):
                k(f"v_fma_f32 v{104+i}, -v{rm}, v{96+i}, v{100+i}")
            for i in range(4):
                k(f"v_fma_f32 v{c+i}, v{r}, v{c+i}, v{104+i}")
            for i in range(4):
                k(f"v_mul_f32 v{104+i}, {LOG2E:#x}, v{c+i}")
            for i in range(4):
                k(f"v_min_f32 v{104+i}, v{104+i}, v13")
            for i in range(4):
                k(f"v_exp_f32 v{104+i}, v{104+i}")
            k("s_nop 0")
            for i in range(4):
                k(f"v_add_f32 v{108+i}, 2.0, v{104+i}")
            for i in range(4):
                k(f"v_mul_f32 v{104+i}, v{104+i}, v{108+i}")
            for i in range(4):
                k(f"v_add_f32 v{108+i}, 2.0, v{104+i}")
            for i in range(4):
                k(f"v_rcp_f32 v{108+i}, v{108+i}")
            for i in range(4):
                k(f"v_mul_f32 v{104+i}, v{104+i}, v{c+i}")
            for i in range(4):
                k(f"v_mul_f32 v{104+i}, v{104+i}, v{108+i}")
            d = 112 + 2*((ftl*2+tt) % 4)
            k(f"v_cvt_pk_bf16_f32 v{d}, v104, v105")
            k(f"v_cvt_pk_bf16_f32 v{d+1}, v106, v107")
            k(f"s_add_u32 s24, s23, {tt*108*512 + ftl*512}")
            k(f"buffer_store_dwordx2 v[{d}:{d+1}], v6, s[12:15], s24 offen")
    k.label("g1_end")
    return dict(name="gemm1_kernel", grid=256, block=256, lds=K3_LDS, k=k, vgpr=160+160, accum=160)
```

```python
from lib import *
from layout import *

K4_LDS = 4*4*5*1024

def gen_k4():
    k = K("gemm2_kernel")
    k("s_cmp_ge_u32 s2, 256")
    k("s_cbranch_scc1 g2_end")
    k("s_load_dwordx2 s[4:5], s[0:1], 120")
    k("s_load_dwordx2 s[6:7], s[0:1], 104")
    k("v_and_b32 v1, 63, v0")
    k("v_lshrrev_b32 v4, 6, v0")
    k("v_and_b32 v2, 15, v1")
    k("v_lshrrev_b32 v3, 4, v1")
    k("v_readfirstlane_b32 s8, v4")
    k("s_and_b32 s9, s2, 7\n s_lshr_b32 s9, s9, 1\n s_lshl_b32 s9, s9, 3")
    k("s_lshr_b32 s10, s2, 3\n s_and_b32 s10, s10, 7\n s_add_u32 s9, s9, s10")
    k("s_and_b32 s10, s2, 1\n s_lshl_b32 s10, s10, 2\n s_lshr_b32 s11, s2, 6\n s_add_u32 s10, s10, s11")
    k("s_waitcnt lgkmcnt(0)")
    srd(k, 12, 4, 5, WS_END)
    srd(k, 16, 6, 7, L*D*2)
    k("v_lshlrev_b32 v5, 4, v1")
    k("v_lshlrev_b32 v6, 3, v1")
    k("s_mul_i32 s20, s8, 14")
    k("s_cmp_eq_u32 s8, 3\n s_cselect_b32 s21, 1, 0\n s_sub_u32 s20, s20, s21")
    k("s_mul_i32 s22, s10, 270\n s_add_u32 s22, s22, s20\n s_lshl_b32 s22, s22, 10")
    k(f"s_add_u32 s22, s22, {WS_WF2}")
    k("s_mul_i32 s23, s9, 432\n s_lshl_b32 s24, s20, 1\n s_add_u32 s23, s23, s24\n s_lshl_b32 s23, s23, 9")
    k(f"s_add_u32 s23, s23, {WS_ACT}")
    k("s_cmp_ge_u32 s8, 2\n s_cselect_b32 s25, 0x40000000, 0")
    ACC = 24
    ST = 104
    def issue(i):
        st = ST + 36*(i % 4)
        for p in range(5):
            k(f"s_add_u32 s26, s22, {p*54*1024 + i*1024}")
            if i == 13: k("s_add_u32 s26, s26, s25")
            k(f"buffer_load_dwordx4 v[{st+4*p}:{st+4*p+3}], v5, s[12:15], s26 offen")
        for tt in range(4):
            k(f"s_add_u32 s26, s23, {tt*108*512 + i*1024}")
            if i == 13: k("s_add_u32 s26, s26, s25")
            b = st + 20 + 4*tt
            k(f"buffer_load_dwordx2 v[{b}:{b+1}], v6, s[12:15], s26 offen")
            k(f"buffer_load_dwordx2 v[{b+2}:{b+3}], v6, s[12:15], s26 offen offset:512")
    k("s_lshl_b32 s27, s9, 2\n s_add_u32 s27, s27, s8")
    k(f"s_mul_i32 s28, s27, 20480\n s_add_u32 s28, s28, {WS_HF}")
    k("s_mul_i32 s29, s10, 20")
    for p in range(5):
        if p < 4:
            k(f"v_lshlrev_b32 v18, 1, v3\n v_add_u32 v18, {8*(p>>1) + (p&1)}, v18")
        else:
            k("v_add_u32 v18, 16, v3")
        k("v_add_u32 v18, s29, v18")
        k("v_lshrrev_b32 v19, 3, v18\n v_lshlrev_b32 v19, 10, v19")
        k("v_and_b32 v20, 1, v18\n v_lshl_add_u32 v19, v20, 9, v19")
        k("v_bfe_u32 v20, v18, 1, 2\n v_lshl_add_u32 v19, v20, 7, v19")
        k("v_lshl_add_u32 v19, v2, 3, v19")
        k(f"buffer_load_dwordx2 v[{8+2*p}:{9+2*p}], v19, s[12:15], s28 offen")
    for i in range(4): issue(i)
    for i in range(80):
        k(f"v_mov_b32 v{ACC+i}, 0")
    for i in range(14):
        later = min(3, 13 - i)
        k(f"s_waitcnt vmcnt({13*later})")
        st = ST + 36*(i % 4)
        for p in range(5):
            for tt in range(4):
                c = ACC + 4*(p*4+tt)
                k(f"v_mfma_f32_16x16x32_bf16 v[{c}:{c+3}], v[{st+4*p}:{st+4*p+3}], v[{st+20+4*tt}:{st+20+4*tt+3}], v[{c}:{c+3}]")
        if i + 4 < 14: issue(i + 4)
    k("s_mul_i32 s26, s8, 20480")
    k("v_add_u32 v18, s26, v5")
    k("s_nop 7")
    for tt in range(4):
        lab = k.newlab("skipw")
        k(f"s_cmp_eq_u32 s8, {tt}\n s_cbranch_scc1 {lab}")
        for p in range(5):
            c = ACC + 4*(p*4+tt)
            k(f"ds_write_b128 v18, v[{c}:{c+3}] offset:{tt*5120 + p*1024}")
        k.label(lab)
    for tt in range(4):
        lab = k.newlab("skipm")
        k(f"s_cmp_lg_u32 s8, {tt}\n s_cbranch_scc1 {lab}")
        for p in range(5):
            c = ACC + 4*(p*4+tt)
            for i in range(4):
                k(f"v_mov_b32 v{104+4*p+i}, v{c+i}")
        k.label(lab)
    k("s_waitcnt lgkmcnt(0)")
    k("s_barrier")
    for j in range(1, 4):
        k(f"s_add_u32 s26, s8, {j}\n s_and_b32 s26, s26, 3\n s_mul_i32 s26, s26, 20480\n s_mul_i32 s27, s8, 5120\n s_add_u32 s26, s26, s27")
        k(f"v_add_u32 v18, s26, v5")
        for p in range(5):
            d = 124 + 20*(j-1) + 4*p
            k(f"ds_read_b128 v[{d}:{d+3}], v18 offset:{p*1024}")
    k("s_waitcnt lgkmcnt(0)")
    for j in range(3):
        for i in range(20):
            k(f"v_add_f32 v{104+i}, v{104+i}, v{124+20*j+i}")
    for p in range(5):
        for h in range(2):
            k(f"v_lshlrev_b32 v18, 16, v{8+2*p+h}\n v_and_b32 v19, 0xffff0000, v{8+2*p+h}")
            k(f"v_add_f32 v{104+4*p+2*h}, v{104+4*p+2*h}, v18\n v_add_f32 v{105+4*p+2*h}, v{105+4*p+2*h}, v19")
    for p in range(5):
        k(f"v_cvt_pk_bf16_f32 v{24+2*p}, v{104+4*p}, v{105+4*p}")
        k(f"v_cvt_pk_bf16_f32 v{25+2*p}, v{106+4*p}, v{107+4*p}")
    k("s_lshl_b32 s27, s9, 2\n s_add_u32 s27, s27, s8\n s_mul_i32 s27, s27, 20480\n s_mul_i32 s26, s10, 160\n s_add_u32 s27, s27, s26")
    k("v_mul_u32_u24 v18, 1280, v2")
    k("v_lshl_add_u32 v19, v3, 4, v18")
    k("v_lshl_add_u32 v20, v3, 3, v18")
    k("buffer_store_dwordx4 v[24:27], v19, s[16:19], s27 offen")
    k("buffer_store_dwordx4 v[28:31], v19, s[16:19], s27 offen offset:64")
    k("buffer_store_dwordx2 v[32:33], v20, s[16:19], s27 offen offset:128")
    k.label("g2_end")
    return dict(name="gemm2_kernel", grid=256, block=256, lds=K4_LDS, k=k, vgpr=248)
```

```python
class K:
    def __init__(self, name):
        self.name = name
        self.L = []
        self.nlab = 0
    def __call__(self, s):
        for line in s.split("\n"):
            line = line.strip()
            if line: self.L.append("  " + line)
    def label(self, l):
        self.L.append(l + ":")
    def newlab(self, base):
        self.nlab += 1
        return f"{self.name}_{base}_{self.nlab}"
    def c(self, s):
        self.L.append("  ; " + s)
    def text(self):
        return "\n".join(self.L)

def vr(a, n=1):
    return f"v{a}" if n == 1 else f"v[{a}:{a+n-1}]"
def sr(a, n=1):
    return f"s{a}" if n == 1 else f"s[{a}:{a+n-1}]"
def ar(a, n=1):
    return f"a{a}" if n == 1 else f"a[{a}:{a+n-1}]"

def srd(k, s, base_lo, base_hi, nbytes, off=0):
    if off:
        k(f"s_add_u32 s{s}, s{base_lo}, {off}")
        k(f"s_addc_u32 s{s+1}, s{base_hi}, 0")
    else:
        k(f"s_mov_b32 s{s}, s{base_lo}")
        k(f"s_mov_b32 s{s+1}, s{base_hi}")
    k(f"s_mov_b32 s{s+2}, {nbytes}")
    k(f"s_mov_b32 s{s+3}, 0x00020000")

def kdesc(name, vgpr, sgpr=96, accum=None):
    if accum is None: accum = (vgpr + 3) // 4 * 4
    return f""".p2align 6
.amdhsa_kernel {name}
  .amdhsa_next_free_vgpr {vgpr}
  .amdhsa_next_free_sgpr {sgpr}
  .amdhsa_accum_offset {accum}
  .amdhsa_group_segment_fixed_size 0
  .amdhsa_kernarg_size 128
  .amdhsa_user_sgpr_count 2
  .amdhsa_user_sgpr_kernarg_segment_ptr 1
  .amdhsa_system_sgpr_workgroup_id_x 1
.end_amdhsa_kernel
"""

def assemble_file(header, kernels):
    s = header
    for kk in kernels:
        s += f"; @launch kernel={kk['name']} grid=({kk['grid']},1,1) block=({kk['block']},1,1) lds={kk['lds']}\n"
    s += '.amdgcn_target "amdgcn-amd-amdhsa--gfx950"\n.text\n'
    seen = set()
    for kk in kernels:
        if kk['name'] in seen: continue
        seen.add(kk['name'])
        s += f".globl {kk['name']}\n.p2align 8\n.type {kk['name']},@function\n{kk['name']}:\n"
        s += kk['k'].text() + "\n  s_endpgm\n"
    s += '.section .rodata,"a"\n'
    seen = set()
    for kk in kernels:
        if kk['name'] in seen: continue
        seen.add(kk['name'])
        s += kdesc(kk['name'], kk['vgpr'], kk.get('sgpr', 96), kk.get('accum'))
    return s

def wave_sum_to_sgpr(k, v, t, sdst):
    k(f"s_nop 1")
    k(f"v_add_f32_dpp {vr(t)}, {vr(v)}, {vr(v)} quad_perm:[1,0,3,2] row_mask:0xf bank_mask:0xf")
    k(f"s_nop 1")
    k(f"v_add_f32_dpp {vr(v)}, {vr(t)}, {vr(t)} quad_perm:[2,3,0,1] row_mask:0xf bank_mask:0xf")
    k(f"s_nop 1")
    k(f"v_add_f32_dpp {vr(t)}, {vr(v)}, {vr(v)} row_half_mirror row_mask:0xf bank_mask:0xf")
    k(f"s_nop 1")
    k(f"v_add_f32_dpp {vr(v)}, {vr(t)}, {vr(t)} row_mirror row_mask:0xf bank_mask:0xf")
    k(f"s_nop 1")
    k(f"v_add_f32_dpp {vr(v)}, {vr(v)}, {vr(v)} row_bcast:15 row_mask:0xa bank_mask:0xf")
    k(f"s_nop 1")
    k(f"v_add_f32_dpp {vr(v)}, {vr(v)}, {vr(v)} row_bcast:31 row_mask:0xc bank_mask:0xf")
    k(f"s_nop 1")
    k(f"v_readlane_b32 s{sdst}, {vr(v)}, 63")
```

```python
import sys
from lib import *
from layout import *
from k1 import gen_k1
from k2 import gen_k2
from k3 import gen_k3
from k4 import gen_k4
HEADER = open("sequential_preLN__ssm_conv_s4__dense_activation_mish__prompt.s.ref").read().split("; Override launch")[0]
def main(out):
    ks = [gen_k1(), gen_k2(), gen_k3(), gen_k4()]
    open(out, "w").write(assemble_file(HEADER, ks))
if __name__ == "__main__":
    if "--prof" in sys.argv:
        import lib; lib.PROFILE = True; sys.argv.remove("--prof")
    main(sys.argv[1] if len(sys.argv) > 1 else "sequential_preLN__ssm_conv_s4__dense_activation_mish__prompt.s")
```

```python
import sys
from gen import *
def empty(name, grid=256, block=256):
    k = K(name); k("s_nop 0")
    return dict(name=name, grid=grid, block=block, lds=0, k=k, vgpr=8)
base = lambda: [gen_k1(), gen_k2(), gen_k3(), gen_k4()]
open("var_a.s", "w").write(assemble_file(HEADER, base()))
open("var_b.s", "w").write(assemble_file(HEADER, base() + [empty("e_kernel")]*4))
open("var_c.s", "w").write(assemble_file(HEADER, [empty("e_kernel")]*4 + base()))
```

```python
from lib import *
from layout import *

def ln_stats_finish(k, s_sum_sq_ready=None):
    pass

def gen_k1():
    k = K("prep_kernel")
    k("s_cmp_ge_u32 s2, 256")
    Lend = "prep_end"
    k(f"s_cbranch_scc1 {Lend}")
    stamp(k)
    k("s_load_dwordx2 s[4:5], s[0:1], 0")
    k("s_load_dwordx2 s[6:7], s[0:1], 80")
    k("s_load_dwordx2 s[8:9], s[0:1], 96")
    k("s_load_dwordx2 s[10:11], s[0:1], 120")
    k("v_lshrrev_b32 v1, 6, v0")
    k("v_and_b32 v2, 63, v0")
    k("s_nop 0")
    k("v_readfirstlane_b32 s12, v1")
    k("v_and_b32 v10, 15, v2")
    k("v_lshrrev_b32 v11, 4, v2")
    k("s_waitcnt lgkmcnt(0)")
    srd(k, 16, 4, 5, L*D*2)
    srd(k, 20, 6, 7, D*F*2)
    srd(k, 24, 8, 9, F*D*2)
    srd(k, 28, 10, 11, WS_END)
    k("s_lshl_b32 s13, s2, 3")
    k("s_add_u32 s13, s13, s12")
    k("s_mul_i32 s14, s13, 1280")
    k("v_lshlrev_b32 v3, 4, v2")
    k("v_lshlrev_b32 v9, 2, v2")
    k("buffer_load_dwordx4 v[4:7], v3, s[16:19], s14 offen")
    k("buffer_load_dword v8, v9, s[16:19], s14 offen offset:1024")
    k("s_lshl_b32 s15, s12, 8")
    k("s_add_u32 s15, s15, s2")
    k("s_cmp_lt_u32 s15, 432")
    k("s_cbranch_scc1 prep_w1")
    k("s_cmp_lt_u32 s15, 864")
    k("s_cbranch_scc1 prep_w2")
    k("s_waitcnt vmcnt(0)")
    k("s_mov_b32 s40, 0")
    k("s_branch prep_stats")
    k.label("prep_w1")
    k("s_lshr_b32 s32, s15, 2")
    k("s_and_b32 s33, s15, 3")
    k("v_mul_u32_u24 v12, 27648, v11")
    k("v_lshl_add_u32 v12, v10, 1, v12")
    for e in range(1, 8):
        k(f"v_add_u32 v{12+e}, {e*3456}, v12")
    k("s_mul_i32 s34, s33, %d" % (5*110592))
    k("s_lshl_b32 s35, s32, 5")
    k("s_add_u32 s34, s34, s35")
    for j in range(5):
        for e in range(8):
            k(f"buffer_load_ushort v{64 + 8*j + e}, v{12+e}, s[20:23], s34 offen")
        if j < 4: k("s_add_u32 s34, s34, 110592")
    k("s_mov_b32 s40, 1")
    k("s_waitcnt vmcnt(40)")
    k("s_branch prep_stats")
    k.label("prep_w2")
    k("s_sub_u32 s32, s15, 432")
    k("s_mul_i32 s32, s32, 5")
    k("v_lshrrev_b32 v12, 2, v10")
    k("v_lshlrev_b32 v12, 3, v12")
    k("v_and_b32 v13, 3, v10")
    k("v_add_u32 v12, v12, v13")
    k("v_lshlrev_b32 v12, 1, v12")
    k("v_lshlrev_b32 v13, 1, v10")
    k("v_mul_u32_u24 v14, 5120, v11")
    k("v_add_u32 v12, v12, v14")
    k("v_add_u32 v13, v13, v14")
    for j in range(5):
        k(f"s_add_u32 s33, s32, {j}")
        k("s_mul_i32 s34, s33, 1214")
        k("s_lshr_b32 s34, s34, 16")
        k("s_mul_i32 s35, s34, 54")
        k("s_sub_u32 s35, s33, s35")
        k("s_mul_i32 s36, s34, 52429")
        k("s_lshr_b32 s36, s36, 18")
        k("s_mul_i32 s37, s36, 5")
        k("s_sub_u32 s37, s34, s37")
        k("s_lshr_b32 s38, s37, 1")
        k("s_lshl_b32 s38, s38, 5")
        k("s_and_b32 s39, s37, 1")
        k("s_lshl_b32 s39, s39, 2")
        k("s_add_u32 s38, s38, s39")
        k("s_mul_i32 s39, s36, 80")
        k("s_add_u32 s38, s38, s39")
        k("s_lshl_b32 s38, s38, 1")
        k("s_mul_i32 s39, s35, %d" % (32*1280))
        k("s_add_u32 s38, s38, s39")
        k("s_cmp_eq_u32 s37, 4")
        k("s_cselect_b64 s[42:43], -1, 0")
        k(f"v_cndmask_b32 v{14+2*j}, v12, v13, s[42:43]")
        k(f"v_add_u32 v{15+2*j}, 20480, v{14+2*j}")
        for e in range(8):
            k(f"buffer_load_ushort v{64 + 8*j + e}, v{14+2*j + e//4}, s[24:27], s38 offen offset:{(e&3)*1280}")
    k("s_mov_b32 s40, 2")
    k("s_waitcnt vmcnt(40)")
    k.label("prep_stats")
    stamp(k)
    for i in range(5):
        k(f"v_lshlrev_b32 v{44+2*i}, 16, v{4+i}")
        k(f"v_and_b32 v{45+2*i}, 0xffff0000, v{4+i}")
    k("v_add_f32 v54, v44, v45")
    for i in range(2, 10):
        k(f"v_add_f32 v54, v54, v{44+i}")
    wave_sum_to_sgpr(k, 54, 55, 44)
    k("s_nop 1")
    k("v_mov_b32 v54, s44")
    k(f"v_mul_f32 v54, {1.0/640!r}, v54") if False else k("v_mul_f32 v54, 0x3acccccd, v54")
    for i in range(10):
        k(f"v_sub_f32 v{44+i}, v{44+i}, v54")
    k("v_mul_f32 v56, v44, v44")
    for i in range(1, 10):
        k(f"v_fmac_f32 v56, v{44+i}, v{44+i}")
    wave_sum_to_sgpr(k, 56, 55, 45)
    k("s_nop 1")
    k("v_mov_b32 v56, s45")
    k("v_mul_f32 v56, 0x3acccccd, v56")
    k("v_cvt_pk_bf16_f32 v56, v56, v56")
    k("v_lshlrev_b32 v56, 16, v56")
    k("v_add_f32 v56, 0x3727c5ac, v56")
    k("v_cvt_pk_bf16_f32 v56, v56, v56")
    k("v_lshlrev_b32 v56, 16, v56")
    k("v_sqrt_f32 v56, v56")
    k("s_nop 0")
    k("v_cvt_pk_bf16_f32 v56, v56, v56")
    k("v_lshlrev_b32 v56, 16, v56")
    k("v_rcp_f32 v59, v56")
    k("v_cvt_pk_bf16_f32 v58, v54, v54")
    k("v_lshlrev_b32 v58, 16, v58")
    k("s_lshl_b32 s46, s13, 3")
    k(f"s_add_u32 s46, s46, {WS_STATS1}")
    k("v_mov_b32 v57, 0")
    k("v_cmp_eq_u32 vcc, 0, v2")
    k("s_and_saveexec_b64 s[48:49], vcc")
    k("buffer_store_dwordx2 v[58:59], v57, s[28:31], s46 offen")
    k("s_mov_b64 exec, s[48:49]")
    stamp(k)
    k("s_cmp_eq_u32 s40, 0")
    k(f"s_cbranch_scc1 prep_fin")
    k("s_waitcnt vmcnt(1)")
    for i in range(20):
        k(f"v_lshl_or_b32 v{24+i}, v{65+2*i}, 16, v{64+2*i}")
    k("s_cmp_eq_u32 s40, 2")
    k("s_cbranch_scc1 prep_w2_store")
    k("s_mul_i32 s34, s32, 20")
    k("s_mul_i32 s35, s33, 5")
    k("s_add_u32 s34, s34, s35")
    k("s_lshl_b32 s34, s34, 10")
    k(f"s_add_u32 s34, s34, {WS_WF1}")
    for j in range(5):
        k(f"buffer_store_dwordx4 v[{24+4*j}:{27+4*j}], v3, s[28:31], s34 offen offset:{0}")
        if j < 4: k("s_add_u32 s34, s34, 1024")
    k("v_mov_b32 v60, 0")
    for i in range(20):
        k(f"v_lshlrev_b32 v61, 16, v{24+i}")
        k(f"v_and_b32 v62, 0xffff0000, v{24+i}")
        k("v_add_f32 v60, v60, v61")
        k("v_add_f32 v60, v60, v62")
    k("v_mov_b32 v61, v60")
    k("s_nop 1")
    k("v_permlane32_swap_b32 v60, v61")
    k("s_nop 1")
    k("v_add_f32 v60, v60, v61")
    k("v_mov_b32 v61, v60")
    k("s_nop 1")
    k("v_permlane16_swap_b32 v60, v61")
    k("s_nop 1")
    k("v_add_f32 v60, v60, v61")
    k("s_mul_i32 s34, s33, %d" % (F*4))
    k("s_lshl_b32 s35, s32, 6")
    k("s_add_u32 s34, s34, s35")
    k(f"s_add_u32 s34, s34, {WS_CS1}")
    k("v_lshlrev_b32 v61, 2, v10")
    k("v_cmp_gt_u32 vcc, 16, v2")
    k("s_and_saveexec_b64 s[48:49], vcc")
    k("buffer_store_dword v60, v61, s[28:31], s34 offen")
    k("s_mov_b64 exec, s[48:49]")
    k(f"s_branch prep_fin")
    k.label("prep_w2_store")
    k("s_lshl_b32 s34, s32, 10")
    k(f"s_add_u32 s34, s34, {WS_WF2}")
    for j in range(5):
        k(f"buffer_store_dwordx4 v[{24+4*j}:{27+4*j}], v3, s[28:31], s34 offen")
        if j < 4: k("s_add_u32 s34, s34, 1024")
    k.label("prep_fin")
    stamp_flush(k, waves=(0, 7))
    k.label(Lend)
    return dict(name="prep_kernel", grid=256, block=512, lds=0, k=k, vgpr=104)
```

```python
from lib import *
from layout import *

T_OFF = 0
T_WAVE = 8704
T_SLOT = 4352
T_ROW = 272
PX_OFF = 69632
KC_OFF = 81920
KC_CH = 1536
KEO_OFF = 88064
KEO_CH = 8320
O_REL = 4160
U_OFF = KEO_OFF + 4*KEO_CH
U_CH = 4608
K2_LDS = U_OFF + 4*U_CH
YX_OFF = 0
YT_OFF = 32768

LOG2E = 0x3fb8aa3b
INV2PI = 0x3e22f983

def cmul_inplace(k, ar, ai, br, bi, t, t2):
    k(f"v_mul_f32 v{t}, v{ar}, v{br}")
    k(f"v_mul_f32 v{t2}, v{ar}, v{bi}")
    k(f"v_fma_f32 v{ar}, -v{ai}, v{bi}, v{t}")
    k(f"v_fma_f32 v{ai}, v{ai}, v{br}, v{t2}")
def cmul(k, dr, di, ar, ai, br, bi, t, t2):
    k(f"v_mul_f32 v{t}, v{ar}, v{br}")
    k(f"v_mul_f32 v{t2}, v{ar}, v{bi}")
    k(f"v_fma_f32 v{dr}, -v{ai}, v{bi}, v{t}")
    k(f"v_fma_f32 v{di}, v{ai}, v{br}, v{t2}")
def csq(k, dr, di, ar, ai, t):
    k(f"v_mul_f32 v{t}, v{ai}, v{ai}")
    k(f"v_add_f32 v{di}, v{ar}, v{ar}")
    k(f"v_fma_f32 v{dr}, v{ar}, v{ar}, -v{t}")
    k(f"v_mul_f32 v{di}, v{di}, v{ai}")

def gen_k2():
    k = K("conv_kernel")
    k("s_cmp_ge_u32 s2, 160")
    k("s_cbranch_scc1 conv_end")
    stamp(k)
    k("s_load_dwordx4 s[4:7], s[0:1], 0")
    k("s_load_dwordx4 s[8:11], s[0:1], 16")
    k("s_load_dwordx4 s[12:15], s[0:1], 32")
    k("s_load_dwordx4 s[16:19], s[0:1], 48")
    k("s_load_dwordx2 s[20:21], s[0:1], 64")
    k("s_load_dwordx2 s[22:23], s[0:1], 120")
    k("v_and_b32 v1, 63, v0")
    k("v_lshrrev_b32 v4, 6, v0")
    k("v_and_b32 v2, 15, v1")
    k("v_lshrrev_b32 v3, 4, v1")
    k("v_readfirstlane_b32 s24, v4")
    k("s_waitcnt lgkmcnt(0)")
    k("s_lshr_b32 s25, s24, 1")
    k("s_and_b32 s26, s24, 1")
    k("s_lshl_b32 s27, s2, 3")
    k("s_add_u32 s18, s18, s27\n s_addc_u32 s19, s19, 0")
    k("s_add_u32 s20, s20, s27\n s_addc_u32 s21, s21, 0")
    k("s_load_dwordx2 s[28:29], s[18:19], 0")
    k("s_load_dwordx2 s[30:31], s[20:21], 0")
    k("s_lshl_b32 s32, s2, 2")
    k("s_add_u32 s32, s32, s25")
    k("s_lshl_b32 s32, s32, 8")
    k("s_lshl_b32 s33, s26, 7")
    k("s_add_u32 s32, s32, s33")
    k("v_lshlrev_b32 v5, 1, v1")
    k("v_add_u32 v5, s32, v5")
    k("global_load_ushort v24, v5, s[6:7]")
    k("global_load_ushort v25, v5, s[8:9]")
    k("global_load_ushort v26, v5, s[10:11]")
    k("global_load_ushort v27, v5, s[12:13]")
    k("global_load_ushort v28, v5, s[14:15]")
    k("global_load_ushort v29, v5, s[16:17]")
    srd(k, 36, 4, 5, L*D*2)
    srd(k, 40, 22, 23, WS_END)
    k("v_mul_u32_u24 v6, 5120, v0")
    for tt in range(4):
        k(f"buffer_load_dwordx2 v[{8+2*tt}:{9+2*tt}], v6, s[36:39], s27 offen offset:{1280*tt}")
    k("v_lshlrev_b32 v7, 5, v0")
    k(f"buffer_load_dwordx4 v[16:19], v7, s[40:43], 0 offen offset:{WS_STATS1}")
    k(f"buffer_load_dwordx4 v[20:23], v7, s[40:43], 0 offen offset:{WS_STATS1+16}")
    k("v_mov_b32 v30, 0\n v_mov_b32 v31, 0\n v_mov_b32 v32, 0\n v_mov_b32 v33, 0")
    k("v_lshrrev_b32 v34, 5, v0")
    k(f"v_mul_u32_u24 v34, {U_CH}, v34")
    k("v_and_b32 v35, 31, v0")
    k("v_lshl_add_u32 v34, v35, 4, v34")
    k(f"v_add_u32 v34, {U_OFF}, v34")
    k("v_cmp_gt_u32 vcc, 128, v0")
    k("s_and_saveexec_b64 s[44:45], vcc")
    k("s_cbranch_execz conv_z1")
    k("ds_write_b128 v34, v[30:33]")
    k.label("conv_z1")
    k("s_mov_b64 exec, s[44:45]")
    k("v_subrev_u32 v34, 128, v0")
    k("v_lshrrev_b32 v35, 4, v34")
    k(f"v_mul_u32_u24 v35, {KEO_CH}, v35")
    k("v_bfe_u32 v36, v34, 3, 1")
    k(f"v_mul_u32_u24 v36, {O_REL}, v36")
    k("v_add_u32 v35, v35, v36")
    k("v_and_b32 v36, 7, v34")
    k("v_lshl_add_u32 v35, v36, 2, v35")
    k(f"v_add_u32 v35, {KEO_OFF + 4096}, v35")
    k("v_cmp_gt_u32 vcc, 64, v34")
    k("s_and_saveexec_b64 s[44:45], vcc")
    k("s_cbranch_execz conv_z2")
    k("ds_write_b32 v35, v30")
    k.label("conv_z2")
    k("s_mov_b64 exec, s[44:45]")
    k("s_waitcnt lgkmcnt(0)")
    k("s_cmp_ge_u32 s25, 2")
    k("s_cselect_b32 s34, s29, s28")
    k("s_and_b32 s35, s25, 1")
    k("s_lshl_b32 s35, s35, 4")
    k("s_lshr_b32 s34, s34, s35")
    k("s_lshl_b32 s34, s34, 16")
    k(f"v_mov_b32 v30, {LOG2E:#x}")
    k("v_mul_f32 v30, s34, v30")
    k("v_exp_f32 v30, v30")
    k("s_nop 0")
    k("v_cvt_pk_bf16_f32 v30, v30, v30")
    k("v_lshlrev_b32 v30, 16, v30")
    k("s_waitcnt vmcnt(6)")
    stamp(k)
    for i in range(6):
        k(f"v_lshlrev_b32 v{24+i}, 16, v{24+i}")
    k("v_mul_f32 v24, v30, v24")
    k("v_mul_f32 v25, v30, v25")
    k(f"v_mul_f32 v24, {LOG2E:#x}, v24")
    k(f"v_mul_f32 v25, {INV2PI:#x}, v25")
    k("v_mul_f32 v26, v30, v26")
    k("v_mul_f32 v27, v30, v27")
    cmul(k, 32, 33, 28, 29, 26, 27, 30, 31)
    def direct(dr, di, e):
        k(f"v_mul_f32 v30, {float(e)}, v24" if e in (1,) else f"v_mul_f32 v30, 0x{int.from_bytes(__import__('struct').pack('<f', float(e)), 'little'):08x}, v24")
        k(f"v_mul_f32 v31, 0x{int.from_bytes(__import__('struct').pack('<f', float(e)), 'little'):08x}, v25")
        k("v_exp_f32 v30, v30")
        k("v_fract_f32 v31, v31")
        k(f"v_cos_f32 v{dr}, v31")
        k(f"v_sin_f32 v{di}, v31")
        k("s_nop 0")
        k(f"v_mul_f32 v{dr}, v30, v{dr}")
        k(f"v_mul_f32 v{di}, v30, v{di}")
    direct(34, 35, 1)
    direct(36, 37, 16)
    direct(38, 39, 256)
    csq(k, 40, 41, 34, 35, 30)
    csq(k, 42, 43, 40, 41, 30)
    csq(k, 44, 45, 42, 43, 30)
    k(f"s_mul_i32 s34, s24, {T_WAVE}")
    k("v_lshlrev_b32 v46, 2, v1")
    k("v_add_u32 v46, s34, v46")
    k(f"v_mul_u32_u24 v47, {T_ROW}, v2")
    k("v_lshl_add_u32 v47, v3, 4, v47")
    k("v_add_u32 v47, s34, v47")
    pk = [48, 49, 50, 51]
    cnt = [0]
    def put(slot, row, re, im, neg_im=False):
        p = pk[cnt[0] % 4]; cnt[0] += 1
        k(f"v_cvt_pk_bf16_f32 v{p}, v{re}, {'-' if neg_im else ''}v{im}")
        k(f"ds_write_b32 v46, v{p} offset:{slot*T_SLOT + row*T_ROW}")
    k("v_mov_b32 v52, 1.0\n v_mov_b32 v53, 0")
    put(0, 0, 52, 53, True)
    k("v_mov_b32 v52, v36\n v_mov_b32 v53, v37")
    k("v_mov_b32 v54, v32\n v_mov_b32 v55, v33")
    put(0, 1, 52, 53, True)
    put(1, 0, 54, 55)
    for i in range(1, 16):
        cmul_inplace(k, 54, 55, 34, 35, 30, 31)
        if i >= 2:
            cmul_inplace(k, 52, 53, 36, 37, 56, 57)
        put(1, i, 54, 55)
        if i >= 2:
            put(0, i, 52, 53, True)
    for ks in range(4):
        k(f"ds_read_b128 v[{60+4*ks}:{63+4*ks}], v47 offset:{64*ks}")
    for ks in range(4):
        k(f"ds_read_b128 v[{76+4*ks}:{79+4*ks}], v47 offset:{T_SLOT + 64*ks}")
    cmul(k, 52, 53, 32, 33, 38, 39, 30, 31)
    k("v_mov_b32 v54, v52\n v_mov_b32 v55, v53")
    put(0, 0, 54, 55)
    for r in range(1, 8):
        cmul_inplace(k, 54, 55, 40, 41, 30, 31)
        put(0, r, 54, 55)
    for j in (2, 3):
        cmul_inplace(k, 52, 53, 38, 39, 56, 57)
        k("v_mov_b32 v54, v52\n v_mov_b32 v55, v53")
        put(0, 8 + 4*(j-2), 54, 55)
        for r in range(1, 4):
            cmul_inplace(k, 54, 55, 42, 43, 30, 31)
            put(0, 8 + 4*(j-2) + r, 54, 55)
    for j in range(4):
        cmul_inplace(k, 52, 53, 38, 39, 56, 57)
        put(1, 2*j, 52, 53)
        cmul(k, 54, 55, 52, 53, 44, 45, 30, 31)
        put(1, 2*j+1, 54, 55)
    cmul_inplace(k, 52, 53, 38, 39, 56, 57)
    put(1, 8, 52, 53)
    k("v_mov_b32 v58, 0")
    for r in range(9, 16):
        k(f"ds_write_b32 v46, v58 offset:{T_SLOT + r*T_ROW}")
    k("s_waitcnt lgkmcnt(0)")
    for ks in range(4):
        c = "0" if ks == 0 else "v[92:95]"
        k(f"v_mfma_f32_16x16x32_bf16 v[92:95], v[{76+4*ks}:{79+4*ks}], v[{60+4*ks}:{63+4*ks}], {c}")
    for ks in range(4):
        k(f"ds_read_b128 v[{104+4*ks}:{107+4*ks}], v47 offset:{64*ks}")
    for ks in range(4):
        k(f"ds_read_b128 v[{120+4*ks}:{123+4*ks}], v47 offset:{T_SLOT + 64*ks}")
    k("s_waitcnt lgkmcnt(4)")
    for ks in range(4):
        c = "0" if ks == 0 else "v[96:99]"
        k(f"v_mfma_f32_16x16x32_bf16 v[96:99], v[{104+4*ks}:{107+4*ks}], v[{60+4*ks}:{63+4*ks}], {c}")
    k("s_waitcnt lgkmcnt(0)")
    for ks in range(4):
        c = "0" if ks == 0 else "v[100:103]"
        k(f"v_mfma_f32_16x16x32_bf16 v[100:103], v[{120+4*ks}:{123+4*ks}], v[{60+4*ks}:{63+4*ks}], {c}")
    stamp(k)
    k(f"s_mul_i32 s34, s25, 3072")
    k(f"s_add_u32 s34, s34, {PX_OFF}")
    k("v_lshlrev_b32 v48, 4, v1")
    k("v_add_u32 v48, s34, v48")
    k("s_nop 7")
    k("s_cmp_eq_u32 s26, 0")
    k("s_cbranch_scc1 conv_px_even")
    k("ds_write_b128 v48, v[92:95]")
    k("ds_write_b128 v48, v[96:99] offset:1024")
    k("ds_write_b128 v48, v[100:103] offset:2048")
    k("s_waitcnt lgkmcnt(0)")
    k.label("conv_px_even")
    k("s_barrier")
    k("s_cmp_eq_u32 s26, 1")
    k("s_cbranch_scc1 conv_kc_done")
    k("ds_read_b128 v[104:107], v48")
    k("ds_read_b128 v[108:111], v48 offset:1024")
    k("ds_read_b128 v[112:115], v48 offset:2048")
    k(f"s_mul_i32 s34, s25, {KC_CH}")
    k(f"s_add_u32 s34, s34, {KC_OFF}")
    k("v_lshlrev_b32 v49, 5, v2")
    k("v_lshl_add_u32 v49, v3, 3, v49")
    k("v_add_u32 v49, s34, v49")
    k("v_lshlrev_b32 v50, 4, v2")
    k("v_lshl_add_u32 v50, v3, 3, v50")
    k("v_add_u32 v50, 512, v50")
    k("v_lshlrev_b32 v51, 3, v2")
    k("v_lshl_add_u32 v51, v3, 7, v51")
    k("v_add_u32 v51, %d, v51" % (768 - 256))
    k("v_cmp_gt_u32 vcc, 2, v3")
    k("s_nop 1")
    k("v_cndmask_b32 v50, v51, v50, vcc")
    k("v_add_u32 v50, s34, v50")
    k("v_lshlrev_b32 v51, 2, v2")
    k("v_lshl_add_u32 v51, v3, 7, v51")
    k("v_add_u32 v51, 1024, v51")
    k("v_add_u32 v51, s34, v51")
    k("s_waitcnt lgkmcnt(0)")
    for i in range(12):
        k(f"v_add_f32 v{92+i}, v{92+i}, v{104+i}")
    for t in range(3):
        k(f"v_cvt_pk_bf16_f32 v{104+2*t}, v{92+4*t}, v{93+4*t}")
        k(f"v_cvt_pk_bf16_f32 v{105+2*t}, v{94+4*t}, v{95+4*t}")
    k("ds_write_b64 v49, v[104:105]")
    k("ds_write_b64 v50, v[106:107]")
    k("ds_write_b32 v51, v108")
    k("ds_write_b32 v51, v109 offset:64")
    k("s_waitcnt lgkmcnt(0)")
    k.label("conv_kc_done")
    stamp(k)
    k("s_waitcnt vmcnt(0)")
    for tt in range(4):
        for h in range(2):
            k(f"v_lshlrev_b32 v{60+4*tt+2*h}, 16, v{8+2*tt+h}")
            k(f"v_and_b32 v{61+4*tt+2*h}, 0xffff0000, v{8+2*tt+h}")
    for tt in range(4):
        for c in range(4):
            k(f"v_sub_f32 v{76+4*tt+c}, v{60+4*tt+c}, v{16+2*tt}")
            k(f"v_mul_f32 v{76+4*tt+c}, v{76+4*tt+c}, v{17+2*tt}")
    for c in range(4):
        k(f"v_cvt_pk_bf16_f32 v{176+2*c}, v{76+c}, v{80+c}")
        k(f"v_cvt_pk_bf16_f32 v{177+2*c}, v{84+c}, v{88+c}")
    k("v_lshlrev_b32 v48, 3, v0")
    k(f"v_add_u32 v48, {U_OFF + 512}, v48")
    for c in range(4):
        k(f"ds_write_b64 v48, v[{176+2*c}:{177+2*c}] offset:{c*U_CH}")
    for j in range(5):
        k(f"v_lshlrev_b32 v58, 2, v0")
        k(f"v_sub_u32 v58, {2047 - j}, v58")
        k("v_cvt_f32_i32 v59, v58")
        k("v_cvt_pk_bf16_f32 v59, v59, v59")
        k("v_and_b32 v59, 0xffff, v59")
        k("v_subrev_u32 v59, 17024, v59")
        k("v_cmp_gt_i32 vcc, 128, v58")
        k("s_nop 1")
        k("v_cndmask_b32 v59, v59, v58, vcc")
        if j == 4:
            k("v_cmp_gt_i32 vcc, 0, v58")
            k("v_mov_b32 v57, 641")
            k("s_nop 0")
            k("v_cndmask_b32 v59, v59, v57, vcc")
        k(f"v_lshlrev_b32 v{52+j}, 1, v59")
        k(f"v_add_u32 v{52+j}, {KC_OFF}, v{52+j}")
    k("s_waitcnt lgkmcnt(0)")
    k("s_barrier")
    stamp(k)
    k(f"v_lshlrev_b32 v48, 3, v0")
    k(f"v_add_u32 v48, {KEO_OFF}, v48")
    for c in range(4):
        for j in range(5):
            k(f"ds_read_u16 v{60+5*c+j}, v{52+j} offset:{c*KC_CH}")
    for c in range(4):
        k(f"s_waitcnt lgkmcnt({15 - 5*c})")
        b = 60 + 5*c
        k(f"v_lshl_or_b32 v{84+4*c}, v{b+1}, 16, v{b}")
        k(f"v_lshl_or_b32 v{85+4*c}, v{b+3}, 16, v{b+2}")
        k(f"v_lshl_or_b32 v{86+4*c}, v{b+2}, 16, v{b+1}")
        k(f"v_lshl_or_b32 v{87+4*c}, v{b+4}, 16, v{b+3}")
    for c in range(4):
        k(f"ds_write_b64 v48, v[{84+4*c}:{85+4*c}] offset:{c*KEO_CH}")
        k(f"ds_write_b64 v48, v[{86+4*c}:{87+4*c}] offset:{c*KEO_CH + O_REL}")
    k("v_lshlrev_b32 v50, 1, v2")
    k("v_sub_u32 v50, 4062, v50")
    k("v_lshl_add_u32 v50, v3, 4, v50")
    k("v_and_b32 v51, 1, v2")
    k("v_cmp_eq_u32 vcc, 0, v51")
    k("v_mov_b32 v51, 4158")
    k("s_nop 0")
    k("v_cndmask_b32 v51, 0, v51, vcc")
    k("v_add_u32 v50, v50, v51")
    k(f"s_mul_i32 s34, s25, {KEO_CH}")
    k(f"s_add_u32 s34, s34, {KEO_OFF}")
    k("s_lshl_b32 s35, s26, 8")
    k("s_sub_u32 s34, s34, s35")
    for p in range(4):
        k(f"s_sub_u32 s35, s34, {512*(2*p+1)}")
        k(f"v_add_u32 v{184+p}, s35, v50")
    k(f"s_mul_i32 s34, s25, {U_CH}")
    k(f"s_add_u32 s34, s34, {U_OFF + 480}")
    k("s_lshl_b32 s35, s26, 8")
    k("s_sub_u32 s34, s34, s35")
    k("v_lshlrev_b32 v188, 5, v2")
    k("v_lshl_add_u32 v188, v3, 4, v188")
    k("v_add_u32 v188, s34, v188")
    for i in range(32):
        k(f"v_mov_b32 v{80+i}, 0") if False else None
    k("s_waitcnt lgkmcnt(0)")
    k("s_barrier")
    stamp(k)
    for i in range(32):
        k(f"v_mov_b32 v{192+i}, 0")
    ACC = 192
    BF = 112
    AF = 144
    k("s_mov_b32 s34, 0")
    k.label("conv_loop")
    for J in range(8):
        k(f"ds_read_b128 v[{BF+4*J}:{BF+4*J+3}], v188 offset:{512*J}")
    def loadA(a):
        p = a // 2
        off = 128 if a % 2 == 0 else 0
        k(f"ds_read2_b32 v[{AF+4*a}:{AF+4*a+1}], v{184+p} offset0:{off} offset1:{off+1}")
        k(f"ds_read2_b32 v[{AF+4*a+2}:{AF+4*a+3}], v{184+p} offset0:{off+2} offset1:{off+3}")
    for a in range(3): loadA(a)
    k("s_waitcnt lgkmcnt(4)")
    def mf(a):
        for J in range(a, 8):
            k(f"v_mfma_f32_16x16x32_bf16 v[{ACC+4*J}:{ACC+4*J+3}], v[{AF+4*a}:{AF+4*a+3}], v[{BF+4*(J-a)}:{BF+4*(J-a)+3}], v[{ACC+4*J}:{ACC+4*J+3}]")
    for a in range(3, 8): loadA(a)
    mf(0)
    k("s_waitcnt lgkmcnt(12)")
    mf(1)
    k("s_waitcnt lgkmcnt(10)")
    mf(2)
    k("s_waitcnt lgkmcnt(8)")
    mf(3)
    k("s_waitcnt lgkmcnt(6)")
    mf(4)
    k("s_waitcnt lgkmcnt(4)")
    mf(5)
    k("s_waitcnt lgkmcnt(2)")
    mf(6)
    k("s_waitcnt lgkmcnt(0)")
    mf(7)
    for p in range(4):
        k(f"v_subrev_u32 v{184+p}, 64, v{184+p}")
    k("v_subrev_u32 v188, 64, v188")
    k("s_add_u32 s34, s34, 1")
    k("s_cmp_lt_u32 s34, 4")
    k("s_cbranch_scc1 conv_loop")
    stamp(k)
    k("s_lshl_b32 s34, s24, 12")
    k("v_lshlrev_b32 v48, 4, v1")
    k(f"v_add_u32 v49, s34, v48")
    k("s_xor_b32 s35, s24, 1")
    k("s_lshl_b32 s35, s35, 12")
    k("v_add_u32 v50, s35, v48")
    k("s_nop 7")
    k("s_cmp_eq_u32 s26, 0")
    k("s_cbranch_scc1 conv_yx_h0")
    for J in range(4):
        k(f"ds_write_b128 v49, v[{ACC+4*J}:{ACC+4*J+3}] offset:{YX_OFF + 1024*J}")
    for i in range(16):
        k(f"v_mov_b32 v{112+i}, v{ACC+16+i}")
    k("s_branch conv_yx_join")
    k.label("conv_yx_h0")
    for J in range(4):
        k(f"ds_write_b128 v49, v[{ACC+16+4*J}:{ACC+16+4*J+3}] offset:{YX_OFF + 1024*J}")
    for i in range(16):
        k(f"v_mov_b32 v{112+i}, v{ACC+i}")
    k.label("conv_yx_join")
    k("s_waitcnt lgkmcnt(0)")
    k("s_barrier")
    for J in range(4):
        k(f"ds_read_b128 v[{128+4*J}:{131+4*J}], v50 offset:{YX_OFF + 1024*J}")
    k("s_lshl_b32 s34, s25, 13")
    k("s_lshl_b32 s35, s26, 12")
    k("s_add_u32 s34, s34, s35")
    k(f"s_add_u32 s34, s34, {YT_OFF}")
    k("v_lshlrev_b32 v51, 6, v2")
    k("v_lshl_add_u32 v51, v3, 4, v51")
    k("v_add_u32 v51, s34, v51")
    k("s_waitcnt lgkmcnt(0)")
    for i in range(16):
        k(f"v_add_f32 v{112+i}, v{112+i}, v{128+i}")
    for J in range(4):
        k(f"ds_write_b128 v51, v[{112+4*J}:{115+4*J}] offset:{1024*J}")
    k("s_waitcnt lgkmcnt(0)")
    k("s_barrier")
    stamp(k)
    k("v_lshlrev_b32 v48, 4, v0")
    for c in range(4):
        k(f"ds_read_b128 v[{112+4*c}:{115+4*c}], v48 offset:{YT_OFF + 8192*c}")
    k("s_lshl_b32 s48, s30, 16")
    k("s_and_b32 s49, s30, 0xffff0000")
    k("s_lshl_b32 s50, s31, 16")
    k("s_and_b32 s51, s31, 0xffff0000")
    for tt in range(4):
        for h in range(2):
            k(f"v_lshlrev_b32 v{60+4*tt+2*h}, 16, v{8+2*tt+h}")
            k(f"v_and_b32 v{61+4*tt+2*h}, 0xffff0000, v{8+2*tt+h}")
    for c in range(4):
        for h in range(2):
            k(f"v_lshlrev_b32 v{76+4*c+2*h}, 16, v{176+2*c+h}")
            k(f"v_and_b32 v{77+4*c+2*h}, 0xffff0000, v{176+2*c+h}")
    k("s_waitcnt lgkmcnt(0)")
    for c in range(4):
        for tt in range(4):
            k(f"v_fma_f32 v{112+4*c+tt}, v{76+4*c+tt}, s{48+c}, v{112+4*c+tt}")
            k(f"v_add_f32 v{60+4*tt+c}, v{60+4*tt+c}, v{112+4*c+tt}")
    for tt in range(4):
        k(f"v_cvt_pk_bf16_f32 v{128+2*tt}, v{60+4*tt}, v{61+4*tt}")
        k(f"v_cvt_pk_bf16_f32 v{129+2*tt}, v{62+4*tt}, v{63+4*tt}")
    k("v_lshrrev_b32 v48, 2, v0")
    k("v_mul_u32_u24 v48, 20480, v48")
    k("v_and_b32 v49, 3, v0")
    k("v_lshl_add_u32 v48, v49, 5, v48")
    k("s_lshr_b32 s34, s2, 3")
    k("s_lshl_b32 s34, s34, 10")
    k("s_and_b32 s35, s2, 1")
    k("s_lshl_b32 s35, s35, 9")
    k("s_add_u32 s34, s34, s35")
    k("s_lshr_b32 s35, s2, 1")
    k("s_and_b32 s35, s35, 3")
    k("s_lshl_b32 s35, s35, 7")
    k("s_add_u32 s34, s34, s35")
    k(f"s_add_u32 s34, s34, {WS_HF}")
    k("buffer_store_dwordx4 v[128:131], v48, s[40:43], s34 offen")
    k("buffer_store_dwordx4 v[132:135], v48, s[40:43], s34 offen offset:16")
    stamp_flush(k, waves=(0, 7))
    k.label("conv_end")
    return dict(name="conv_kernel", grid=160, block=512, lds=K2_LDS, k=k, vgpr=224)
```

```python
from lib import *
from layout import *

LOG2E = 0x3fb8aa3b
W_LDS = 143360
CB_OFF = W_LDS
K3_LDS = W_LDS + 1024

def gen_k3():
    k = K("gemm1_kernel")
    k("s_cmp_ge_u32 s2, 256")
    k("s_cbranch_scc1 g1_end")
    stamp(k)
    k("s_load_dwordx2 s[4:5], s[0:1], 120")
    k("s_load_dwordx2 s[6:7], s[0:1], 88")
    k("v_and_b32 v1, 63, v0")
    k("v_lshrrev_b32 v4, 6, v0")
    k("v_and_b32 v2, 15, v1")
    k("v_lshrrev_b32 v3, 4, v1")
    k("v_readfirstlane_b32 s8, v4")
    k("s_and_b32 s9, s2, 7\n s_lshr_b32 s9, s9, 1\n s_lshl_b32 s9, s9, 2")
    k("s_lshr_b32 s10, s2, 3\n s_and_b32 s10, s10, 3\n s_add_u32 s9, s9, s10")
    k("s_and_b32 s10, s2, 1\n s_lshl_b32 s10, s10, 3\n s_lshr_b32 s11, s2, 5\n s_add_u32 s10, s10, s11")
    k("s_mul_i32 s10, s10, 7\n s_min_u32 s10, s10, 101")
    k("s_waitcnt lgkmcnt(0)")
    srd(k, 12, 4, 5, WS_END)
    srd(k, 16, 6, 7, F*2)
    k("v_lshlrev_b32 v5, 4, v1")
    k("v_lshlrev_b32 v6, 3, v1")
    k("s_lshl_b32 s20, s9, 3\n s_lshl_b32 s21, s8, 1\n s_add_u32 s20, s20, s21")
    k(f"s_mul_i32 s21, s20, 20480\n s_add_u32 s21, s21, {WS_HF}")
    k(f"s_mul_i32 s22, s10, 20480\n s_add_u32 s22, s22, {WS_WF1}")
    def issue_stage(c):
        for jj in range(7):
            j = 7*c + jj
            k(f"s_add_u32 s23, s8, {4*j}")
            k("s_mul_i32 s24, s23, 9363\n s_lshr_b32 s24, s24, 16")
            k("s_mul_i32 s25, s24, 7\n s_sub_u32 s25, s23, s25")
            k("s_mul_i32 s25, s25, 20480")
            k("s_lshl_b32 s24, s24, 10")
            k("s_add_u32 s25, s25, s24\n s_add_u32 s25, s25, s22")
            k("s_lshl_b32 m0, s23, 10")
            k("s_nop 0")
            k("buffer_load_dwordx4 v5, s[12:15], s25 offen lds")
        for sl in range(4):
            s = 4*c + sl
            for tt in range(2):
                k(f"s_add_u32 s26, s21, {tt*20480 + s*1024}")
                a0 = (tt*20 + s)*4
                k(f"buffer_load_dwordx2 a[{a0}:{a0+1}], v6, s[12:15], s26 offen")
                k(f"buffer_load_dwordx2 a[{a0+2}:{a0+3}], v6, s[12:15], s26 offen offset:512")
    k("v_lshlrev_b32 v7, 2, v0")
    k(f"s_lshl_b32 s27, s10, 6\n s_add_u32 s27, s27, {WS_CS1}")
    k("v_lshlrev_b32 v8, 1, v0")
    k("s_lshl_b32 s28, s10, 5")
    for q in range(4):
        k(f"buffer_load_dword v{10+q}, v7, s[12:15], s27 offen")
        if q < 3: k(f"s_add_u32 s27, s27, {F*4}")
    k("buffer_load_ushort v14, v8, s[16:19], s28 offen")
    issue_stage(0)
    issue_stage(1)
    for i in range(4):
        k(f"v_mov_b32 v{20+i}, 0x3f803f80")
    ACC = 24
    S1 = 80
    S2 = 88
    AFR = 96
    for i in range(72):
        k(f"v_mov_b32 v{ACC+i}, 0")
    k("s_waitcnt vmcnt(46)")
    k("v_add_f32 v10, v10, v11\n v_add_f32 v12, v12, v13\n v_add_f32 v10, v10, v12")
    k("v_lshlrev_b32 v14, 16, v14")
    k(f"v_add_u32 v9, {CB_OFF}, v7")
    k("v_cmp_gt_u32 vcc, 112, v0")
    k("s_and_saveexec_b64 s[30:31], vcc")
    k("s_cbranch_execz g1_cb")
    k("ds_write_b32 v9, v10")
    k("ds_write_b32 v9, v14 offset:448")
    k.label("g1_cb")
    k("s_mov_b64 exec, s[30:31]")
    def readA(s, buf):
        for ftl in range(7):
            k(f"ds_read_b128 v[{AFR+28*buf+4*ftl}:{AFR+28*buf+4*ftl+3}], v5 offset:{(s*7+ftl)*1024 % 65536}" if (s*7+ftl)*1024 < 65536 else
              f"ds_read_b128 v[{AFR+28*buf+4*ftl}:{AFR+28*buf+4*ftl+3}], v{152 + (s*7+ftl)*1024 // 65536} offset:{(s*7+ftl)*1024 % 65536}")
    k("v_add_u32 v153, 0x10000, v5\n v_add_u32 v154, 0x20000, v5")
    def mfmas(s, buf):
        for tt in range(2):
            b0 = (tt*20 + s)*4
            k(f"v_mfma_f32_16x16x32_bf16 v[{S1+4*tt}:{S1+4*tt+3}], v[20:23], a[{b0}:{b0+3}], v[{S1+4*tt}:{S1+4*tt+3}]")
            k(f"v_mfma_f32_16x16x32_bf16 v[{S2+4*tt}:{S2+4*tt+3}], a[{b0}:{b0+3}], a[{b0}:{b0+3}], v[{S2+4*tt}:{S2+4*tt+3}]")
        for ftl in range(7):
            for tt in range(2):
                b0 = (tt*20 + s)*4
                c = ACC + 4*(ftl*2+tt)
                k(f"v_mfma_f32_16x16x32_bf16 v[{c}:{c+3}], v[{AFR+28*buf+4*ftl}:{AFR+28*buf+4*ftl+3}], a[{b0}:{b0+3}], v[{c}:{c+3}]")
    for c in range(5):
        k(f"s_waitcnt vmcnt({23 if c < 4 else 0})")
        k("s_waitcnt lgkmcnt(0)")
        k("s_barrier")
        stamp(k)
        if c + 2 < 5: issue_stage(c + 2)
        readA(4*c, 0)
        for sl in range(4):
            s = 4*c + sl
            if sl < 3:
                readA(s + 1, (sl + 1) % 2)
                k("s_waitcnt lgkmcnt(7)")
            else:
                k("s_waitcnt lgkmcnt(0)")
            mfmas(s, sl % 2)
    stamp(k)
    k("v_and_b32 v10, 3, v2")
    k("v_lshrrev_b32 v11, 2, v2")
    k("v_lshl_add_u32 v11, v11, 4, v2")
    k("v_lshlrev_b32 v11, 2, v11")
    k("s_nop 7")
    for tt in range(2):
        b = S2 + 4*tt
        k(f"v_cmp_eq_u32 vcc, 1, v10\n s_nop 1\n v_cndmask_b32 v{b}, v{b}, v{b+1}, vcc")
        k(f"v_cmp_eq_u32 vcc, 2, v10\n s_nop 1\n v_cndmask_b32 v{b}, v{b}, v{b+2}, vcc")
        k(f"v_cmp_eq_u32 vcc, 3, v10\n s_nop 1\n v_cndmask_b32 v{b}, v{b}, v{b+3}, vcc")
        k(f"ds_bpermute_b32 v{b+1}, v11, v{b}")
    k("s_waitcnt lgkmcnt(0)")
    for tt in range(2):
        m = S1 + 4*tt; q = S2 + 4*tt + 1
        k(f"v_mul_f32 v{m}, 0x3acccccd, v{m}")
        k(f"v_mul_f32 v{q}, 0x3acccccd, v{q}")
        k(f"v_fma_f32 v{q}, -v{m}, v{m}, v{q}")
        k(f"v_max_f32 v{q}, 0, v{q}")
        k(f"v_cvt_pk_bf16_f32 v{q}, v{q}, v{q}\n v_lshlrev_b32 v{q}, 16, v{q}")
        k(f"v_add_f32 v{q}, 0x3727c5ac, v{q}")
        k(f"v_cvt_pk_bf16_f32 v{q}, v{q}, v{q}\n v_lshlrev_b32 v{q}, 16, v{q}")
        k(f"v_sqrt_f32 v{q}, v{q}\n s_nop 0")
        k(f"v_cvt_pk_bf16_f32 v{q}, v{q}, v{q}\n v_lshlrev_b32 v{q}, 16, v{q}")
        k(f"v_rcp_f32 v{m+1}, v{q}")
        k(f"v_cvt_pk_bf16_f32 v{m}, v{m}, v{m}\n v_lshlrev_b32 v{m}, 16, v{m}")
        k(f"v_mul_f32 v{m+2}, v{m}, v{m+1}")
    stamp(k)
    k(f"v_lshlrev_b32 v12, 4, v3\n v_add_u32 v12, {CB_OFF}, v12")
    k(f"s_mul_i32 s23, s20, {108*512}\n s_lshl_b32 s24, s10, 9\n s_add_u32 s23, s23, s24\n s_add_u32 s23, s23, {WS_ACT}")
    k("v_mov_b32 v13, 0x422c0000")
    for ftl in range(7):
        k(f"ds_read_b128 v[96:99], v12 offset:{64*ftl}")
        k(f"ds_read_b128 v[100:103], v12 offset:{448 + 64*ftl}")
        k("s_waitcnt lgkmcnt(0)")
        for tt in range(2):
            c = ACC + 4*(ftl*2+tt)
            r = S1 + 4*tt + 1; rm = S1 + 4*tt + 2
            for i in range(4):
                k(f"v_fma_f32 v{104+i}, -v{rm}, v{96+i}, v{100+i}")
            for i in range(4):
                k(f"v_fma_f32 v{c+i}, v{r}, v{c+i}, v{104+i}")
            for i in range(4):
                k(f"v_mul_f32 v{104+i}, {LOG2E:#x}, v{c+i}")
            for i in range(4):
                k(f"v_min_f32 v{104+i}, v{104+i}, v13")
            for i in range(4):
                k(f"v_exp_f32 v{104+i}, v{104+i}")
            k("s_nop 0")
            for i in range(4):
                k(f"v_add_f32 v{108+i}, 2.0, v{104+i}")
            for i in range(4):
                k(f"v_mul_f32 v{104+i}, v{104+i}, v{108+i}")
            for i in range(4):
                k(f"v_add_f32 v{108+i}, 2.0, v{104+i}")
            for i in range(4):
                k(f"v_rcp_f32 v{108+i}, v{108+i}")
            for i in range(4):
                k(f"v_mul_f32 v{104+i}, v{104+i}, v{c+i}")
            for i in range(4):
                k(f"v_mul_f32 v{104+i}, v{104+i}, v{108+i}")
            d = 112 + 2*((ftl*2+tt) % 4)
            k(f"v_cvt_pk_bf16_f32 v{d}, v104, v105")
            k(f"v_cvt_pk_bf16_f32 v{d+1}, v106, v107")
            k(f"s_add_u32 s24, s23, {tt*108*512 + ftl*512}")
            k(f"buffer_store_dwordx2 v[{d}:{d+1}], v6, s[12:15], s24 offen")
    stamp_flush(k, waves=(0, 3))
    k.label("g1_end")
    return dict(name="gemm1_kernel", grid=256, block=256, lds=K3_LDS, k=k, vgpr=160+160, accum=160)
```

```python
from lib import *
from layout import *

K4_LDS = 4*4*5*1024

def gen_k4():
    k = K("gemm2_kernel")
    k("s_cmp_ge_u32 s2, 256")
    k("s_cbranch_scc1 g2_end")
    stamp(k)
    k("s_load_dwordx2 s[4:5], s[0:1], 120")
    k("s_load_dwordx2 s[6:7], s[0:1], 104")
    k("v_and_b32 v1, 63, v0")
    k("v_lshrrev_b32 v4, 6, v0")
    k("v_and_b32 v2, 15, v1")
    k("v_lshrrev_b32 v3, 4, v1")
    k("v_readfirstlane_b32 s8, v4")
    k("s_and_b32 s9, s2, 7\n s_lshr_b32 s9, s9, 1\n s_lshl_b32 s9, s9, 3")
    k("s_lshr_b32 s10, s2, 3\n s_and_b32 s10, s10, 7\n s_add_u32 s9, s9, s10")
    k("s_and_b32 s10, s2, 1\n s_lshl_b32 s10, s10, 2\n s_lshr_b32 s11, s2, 6\n s_add_u32 s10, s10, s11")
    k("s_waitcnt lgkmcnt(0)")
    srd(k, 12, 4, 5, WS_END)
    srd(k, 16, 6, 7, L*D*2)
    k("v_lshlrev_b32 v5, 4, v1")
    k("v_lshlrev_b32 v6, 3, v1")
    k("s_mul_i32 s20, s8, 14")
    k("s_cmp_eq_u32 s8, 3\n s_cselect_b32 s21, 1, 0\n s_sub_u32 s20, s20, s21")
    k("s_mul_i32 s22, s10, 270\n s_add_u32 s22, s22, s20\n s_lshl_b32 s22, s22, 10")
    k(f"s_add_u32 s22, s22, {WS_WF2}")
    k("s_mul_i32 s23, s9, 432\n s_lshl_b32 s24, s20, 1\n s_add_u32 s23, s23, s24\n s_lshl_b32 s23, s23, 9")
    k(f"s_add_u32 s23, s23, {WS_ACT}")
    k("s_cmp_ge_u32 s8, 2\n s_cselect_b32 s25, 0x40000000, 0")
    ACC = 24
    ST = 104
    def issue(i):
        st = ST + 36*(i % 4)
        for p in range(5):
            k(f"s_add_u32 s26, s22, {p*54*1024 + i*1024}")
            if i == 13: k("s_add_u32 s26, s26, s25")
            k(f"buffer_load_dwordx4 v[{st+4*p}:{st+4*p+3}], v5, s[12:15], s26 offen")
        for tt in range(4):
            k(f"s_add_u32 s26, s23, {tt*108*512 + i*1024}")
            if i == 13: k("s_add_u32 s26, s26, s25")
            b = st + 20 + 4*tt
            k(f"buffer_load_dwordx2 v[{b}:{b+1}], v6, s[12:15], s26 offen")
            k(f"buffer_load_dwordx2 v[{b+2}:{b+3}], v6, s[12:15], s26 offen offset:512")
    k("s_lshl_b32 s27, s9, 2\n s_add_u32 s27, s27, s8")
    k(f"s_mul_i32 s28, s27, 20480\n s_add_u32 s28, s28, {WS_HF}")
    k("s_mul_i32 s29, s10, 20")
    for p in range(5):
        if p < 4:
            k(f"v_lshlrev_b32 v18, 1, v3\n v_add_u32 v18, {8*(p>>1) + (p&1)}, v18")
        else:
            k("v_add_u32 v18, 16, v3")
        k("v_add_u32 v18, s29, v18")
        k("v_lshrrev_b32 v19, 3, v18\n v_lshlrev_b32 v19, 10, v19")
        k("v_and_b32 v20, 1, v18\n v_lshl_add_u32 v19, v20, 9, v19")
        k("v_bfe_u32 v20, v18, 1, 2\n v_lshl_add_u32 v19, v20, 7, v19")
        k("v_lshl_add_u32 v19, v2, 3, v19")
        k(f"buffer_load_dwordx2 v[{8+2*p}:{9+2*p}], v19, s[12:15], s28 offen")
    for i in range(4): issue(i)
    for i in range(80):
        k(f"v_mov_b32 v{ACC+i}, 0")
    for i in range(14):
        later = min(3, 13 - i)
        k(f"s_waitcnt vmcnt({13*later})")
        if i in (0, 1, 4, 8, 12): stamp(k)
        st = ST + 36*(i % 4)
        for p in range(5):
            for tt in range(4):
                c = ACC + 4*(p*4+tt)
                k(f"v_mfma_f32_16x16x32_bf16 v[{c}:{c+3}], v[{st+4*p}:{st+4*p+3}], v[{st+20+4*tt}:{st+20+4*tt+3}], v[{c}:{c+3}]")
        if i + 4 < 14: issue(i + 4)
    stamp(k)
    k("s_mul_i32 s26, s8, 20480")
    k("v_add_u32 v18, s26, v5")
    k("s_nop 7")
    for tt in range(4):
        lab = k.newlab("skipw")
        k(f"s_cmp_eq_u32 s8, {tt}\n s_cbranch_scc1 {lab}")
        for p in range(5):
            c = ACC + 4*(p*4+tt)
            k(f"ds_write_b128 v18, v[{c}:{c+3}] offset:{tt*5120 + p*1024}")
        k.label(lab)
    for tt in range(4):
        lab = k.newlab("skipm")
        k(f"s_cmp_lg_u32 s8, {tt}\n s_cbranch_scc1 {lab}")
        for p in range(5):
            c = ACC + 4*(p*4+tt)
            for i in range(4):
                k(f"v_mov_b32 v{104+4*p+i}, v{c+i}")
        k.label(lab)
    k("s_waitcnt lgkmcnt(0)")
    k("s_barrier")
    stamp(k)
    for j in range(1, 4):
        k(f"s_add_u32 s26, s8, {j}\n s_and_b32 s26, s26, 3\n s_mul_i32 s26, s26, 20480\n s_mul_i32 s27, s8, 5120\n s_add_u32 s26, s26, s27")
        k(f"v_add_u32 v18, s26, v5")
        for p in range(5):
            d = 124 + 20*(j-1) + 4*p
            k(f"ds_read_b128 v[{d}:{d+3}], v18 offset:{p*1024}")
    k("s_waitcnt lgkmcnt(0)")
    for j in range(3):
        for i in range(20):
            k(f"v_add_f32 v{104+i}, v{104+i}, v{124+20*j+i}")
    for p in range(5):
        for h in range(2):
            k(f"v_lshlrev_b32 v18, 16, v{8+2*p+h}\n v_and_b32 v19, 0xffff0000, v{8+2*p+h}")
            k(f"v_add_f32 v{104+4*p+2*h}, v{104+4*p+2*h}, v18\n v_add_f32 v{105+4*p+2*h}, v{105+4*p+2*h}, v19")
    for p in range(5):
        k(f"v_cvt_pk_bf16_f32 v{24+2*p}, v{104+4*p}, v{105+4*p}")
        k(f"v_cvt_pk_bf16_f32 v{25+2*p}, v{106+4*p}, v{107+4*p}")
    k("s_lshl_b32 s27, s9, 2\n s_add_u32 s27, s27, s8\n s_mul_i32 s27, s27, 20480\n s_mul_i32 s26, s10, 160\n s_add_u32 s27, s27, s26")
    k("v_mul_u32_u24 v18, 1280, v2")
    k("v_lshl_add_u32 v19, v3, 4, v18")
    k("v_lshl_add_u32 v20, v3, 3, v18")
    k("buffer_store_dwordx4 v[24:27], v19, s[16:19], s27 offen")
    k("buffer_store_dwordx4 v[28:31], v19, s[16:19], s27 offen offset:64")
    k("buffer_store_dwordx2 v[32:33], v20, s[16:19], s27 offen offset:128")
    stamp_flush(k, waves=(0, 3))
    k.label("g2_end")
    return dict(name="gemm2_kernel", grid=256, block=256, lds=K4_LDS, k=k, vgpr=248)
```

```python
class K:
    def __init__(self, name):
        self.name = name
        self.L = []
        self.nlab = 0
    def __call__(self, s):
        for line in s.split("\n"):
            line = line.strip()
            if line: self.L.append("  " + line)
    def label(self, l):
        self.L.append(l + ":")
    def newlab(self, base):
        self.nlab += 1
        return f"{self.name}_{base}_{self.nlab}"
    def c(self, s):
        self.L.append("  ; " + s)
    def text(self):
        return "\n".join(self.L)

def vr(a, n=1):
    return f"v{a}" if n == 1 else f"v[{a}:{a+n-1}]"
def sr(a, n=1):
    return f"s{a}" if n == 1 else f"s[{a}:{a+n-1}]"
def ar(a, n=1):
    return f"a{a}" if n == 1 else f"a[{a}:{a+n-1}]"

def srd(k, s, base_lo, base_hi, nbytes, off=0):
    if off:
        k(f"s_add_u32 s{s}, s{base_lo}, {off}")
        k(f"s_addc_u32 s{s+1}, s{base_hi}, 0")
    else:
        k(f"s_mov_b32 s{s}, s{base_lo}")
        k(f"s_mov_b32 s{s+1}, s{base_hi}")
    k(f"s_mov_b32 s{s+2}, {nbytes}")
    k(f"s_mov_b32 s{s+3}, 0x00020000")

def kdesc(name, vgpr, sgpr=96, accum=None):
    if accum is None: accum = (vgpr + 3) // 4 * 4
    return f""".p2align 6
.amdhsa_kernel {name}
  .amdhsa_next_free_vgpr {vgpr}
  .amdhsa_next_free_sgpr {sgpr}
  .amdhsa_accum_offset {accum}
  .amdhsa_group_segment_fixed_size 0
  .amdhsa_kernarg_size 128
  .amdhsa_user_sgpr_count 2
  .amdhsa_user_sgpr_kernarg_segment_ptr 1
  .amdhsa_system_sgpr_workgroup_id_x 1
.end_amdhsa_kernel
"""

def assemble_file(header, kernels):
    s = header
    for kk in kernels:
        s += f"; @launch kernel={kk['name']} grid=({kk['grid']},1,1) block=({kk['block']},1,1) lds={kk['lds']}\n"
    s += '.amdgcn_target "amdgcn-amd-amdhsa--gfx950"\n.text\n'
    seen = set()
    for kk in kernels:
        if kk['name'] in seen: continue
        seen.add(kk['name'])
        s += f".globl {kk['name']}\n.p2align 8\n.type {kk['name']},@function\n{kk['name']}:\n"
        s += kk['k'].text() + "\n  s_endpgm\n"
    s += '.section .rodata,"a"\n'
    seen = set()
    for kk in kernels:
        if kk['name'] in seen: continue
        seen.add(kk['name'])
        s += kdesc(kk['name'], kk['vgpr'], kk.get('sgpr', 102), kk.get('accum'))
    return s

def wave_sum_to_sgpr(k, v, t, sdst):
    k(f"s_nop 1")
    k(f"v_add_f32_dpp {vr(t)}, {vr(v)}, {vr(v)} quad_perm:[1,0,3,2] row_mask:0xf bank_mask:0xf")
    k(f"s_nop 1")
    k(f"v_add_f32_dpp {vr(v)}, {vr(t)}, {vr(t)} quad_perm:[2,3,0,1] row_mask:0xf bank_mask:0xf")
    k(f"s_nop 1")
    k(f"v_add_f32_dpp {vr(t)}, {vr(v)}, {vr(v)} row_half_mirror row_mask:0xf bank_mask:0xf")
    k(f"s_nop 1")
    k(f"v_add_f32_dpp {vr(v)}, {vr(t)}, {vr(t)} row_mirror row_mask:0xf bank_mask:0xf")
    k(f"s_nop 1")
    k(f"v_add_f32_dpp {vr(v)}, {vr(v)}, {vr(v)} row_bcast:15 row_mask:0xa bank_mask:0xf")
    k(f"s_nop 1")
    k(f"v_add_f32_dpp {vr(v)}, {vr(v)}, {vr(v)} row_bcast:31 row_mask:0xc bank_mask:0xf")
    k(f"s_nop 1")
    k(f"v_readlane_b32 s{sdst}, {vr(v)}, 63")

PROFILE = False
class Prof:
    n = 0
def stamp(k, force=False):
    import lib
    if not lib.PROFILE: return
    i = k.__dict__.setdefault("nstamp", 0)
    k(f"s_memtime s[98:99]")
    k("s_waitcnt lgkmcnt(0)")
    k(f"s_mov_b32 s{80+i}, s98")
    k.nstamp = i + 1
def stamp_flush(k, wg=100, waves=(0, 7)):
    import lib
    if not lib.PROFILE: return
    n = k.__dict__.get("nstamp", 0)
    lab = k.newlab("pf")
    k("s_load_dwordx2 s[96:97], s[0:1], 112")
    k("s_waitcnt vmcnt(0) lgkmcnt(0)")
    k(f"s_memtime s[98:99]")
    k("s_waitcnt lgkmcnt(0)")
    k(f"s_mov_b32 s{80+n}, s98")
    n += 1
    k(f"s_cmp_lg_u32 s2, {wg}")
    k(f"s_cbranch_scc1 {lab}")
    k(f"v_cmp_eq_u32 vcc, {64*waves[0]}, v0")
    k(f"v_cmp_eq_u32 s[76:77], {64*waves[1]}, v0") if 64*waves[1] <= 64 else (k(f"v_mov_b32 v1, {64*waves[1]}"), k("v_cmp_eq_u32 s[76:77], v1, v0"))
    k("s_nop 1")
    k("v_cndmask_b32 v1, 0, 1, s[76:77]")
    k("v_lshlrev_b32 v1, 7, v1")
    k("s_or_b64 vcc, vcc, s[76:77]")
    k("s_and_saveexec_b64 s[76:77], vcc")
    k(f"s_cbranch_execz {lab}")
    for i in range(n):
        k(f"v_mov_b32 v2, s{80+i}")
        k(f"global_store_dword v1, v2, s[96:97] offset:{4*i}")
    k("s_waitcnt vmcnt(0)")
    k.label(lab)
```

```python
import sys
from gen import *
def straight(name, n, grid=256, block=256, wide=False):
    k = K(name)
    for j in range(n):
        if wide: k(f"v_add3_u32 v{1 + j % 6}, v0, v0, v0")
        else: k(f"v_mov_b32 v{1 + j % 6}, v0")
    return dict(name=name, grid=grid, block=block, lds=0, k=k, vgpr=8)
def looped(name, n, reps, wide=False):
    k = K(name)
    k("s_mov_b32 s4, 0")
    k.label(name + "_l")
    for j in range(n):
        if wide: k(f"v_add3_u32 v{1 + j % 6}, v0, v0, v0")
        else: k(f"v_mov_b32 v{1 + j % 6}, v0")
    k(f"s_add_u32 s4, s4, 1\n s_cmp_lt_u32 s4, {reps}\n s_cbranch_scc1 {name}_l")
    return dict(name=name, grid=256, block=256, lds=0, k=k, vgpr=8)
base = lambda: [gen_k1(), gen_k2(), gen_k3(), gen_k4()]
open("var_a.s", "w").write(assemble_file(HEADER, base()))
open("var_d.s", "w").write(assemble_file(HEADER, base() + [straight("d_kernel", 4096, wide=True)]))
open("var_e.s", "w").write(assemble_file(HEADER, base() + [looped("e_kernel", 256, 16, wide=True)]))
open("var_f.s", "w").write(assemble_file(HEADER, base() + [straight("f_kernel", 1)]))
```

```python
L = 2048; D = 640; N = 128; F = 1728
WS_STATS1 = 0
WS_CS1 = 16384
WS_WF2 = 65536
WS_HF = WS_WF2 + 40*54*1024
WS_ACT = WS_HF + L*D*2
WS_XB = WS_ACT + 64*108*1024
WS_SYNC = WS_XB + 160*2048*8
WS_END = WS_SYNC + 13312
WS_DONE = WS_SYNC + 49*128
```

```python
class K:
    def __init__(self, name):
        self.name = name
        self.L = []
        self.nlab = 0
    def __call__(self, s):
        for line in s.split("\n"):
            line = line.strip()
            if line: self.L.append("  " + line)
    def label(self, l):
        self.L.append(l + ":")
    def newlab(self, base):
        self.nlab += 1
        return f"{self.name}_{base}_{self.nlab}"
    def c(self, s):
        self.L.append("  ; " + s)
    def text(self):
        return "\n".join(self.L)

def vr(a, n=1):
    return f"v{a}" if n == 1 else f"v[{a}:{a+n-1}]"
def sr(a, n=1):
    return f"s{a}" if n == 1 else f"s[{a}:{a+n-1}]"
def ar(a, n=1):
    return f"a{a}" if n == 1 else f"a[{a}:{a+n-1}]"

def srd(k, s, base_lo, base_hi, nbytes, off=0):
    if off:
        k(f"s_add_u32 s{s}, s{base_lo}, {off}")
        k(f"s_addc_u32 s{s+1}, s{base_hi}, 0")
    else:
        k(f"s_mov_b32 s{s}, s{base_lo}")
        k(f"s_mov_b32 s{s+1}, s{base_hi}")
    k(f"s_mov_b32 s{s+2}, {nbytes}")
    k(f"s_mov_b32 s{s+3}, 0x00020000")

def kdesc(name, vgpr, sgpr=96, accum=None):
    if accum is None: accum = (vgpr + 3) // 4 * 4
    return f""".p2align 6
.amdhsa_kernel {name}
  .amdhsa_next_free_vgpr {vgpr}
  .amdhsa_next_free_sgpr {sgpr}
  .amdhsa_accum_offset {accum}
  .amdhsa_group_segment_fixed_size 0
  .amdhsa_kernarg_size 128
  .amdhsa_user_sgpr_count 2
  .amdhsa_user_sgpr_kernarg_segment_ptr 1
  .amdhsa_system_sgpr_workgroup_id_x 1
.end_amdhsa_kernel
"""

def assemble_file(header, kernels):
    s = header
    for kk in kernels:
        s += f"; @launch kernel={kk['name']} grid=({kk['grid']},1,1) block=({kk['block']},1,1) lds={kk['lds']}\n"
    s += '.amdgcn_target "amdgcn-amd-amdhsa--gfx950"\n.text\n'
    seen = set()
    for kk in kernels:
        if kk['name'] in seen: continue
        seen.add(kk['name'])
        s += f".globl {kk['name']}\n.p2align 8\n.type {kk['name']},@function\n{kk['name']}:\n"
        s += kk['k'].text() + "\n  s_endpgm\n"
    s += '.section .rodata,"a"\n'
    seen = set()
    for kk in kernels:
        if kk['name'] in seen: continue
        seen.add(kk['name'])
        s += kdesc(kk['name'], kk['vgpr'], kk.get('sgpr', 102), kk.get('accum'))
    return s

def wave_sum_to_sgpr(k, v, t, sdst):
    k(f"s_nop 1")
    k(f"v_add_f32_dpp {vr(t)}, {vr(v)}, {vr(v)} quad_perm:[1,0,3,2] row_mask:0xf bank_mask:0xf")
    k(f"s_nop 1")
    k(f"v_add_f32_dpp {vr(v)}, {vr(t)}, {vr(t)} quad_perm:[2,3,0,1] row_mask:0xf bank_mask:0xf")
    k(f"s_nop 1")
    k(f"v_add_f32_dpp {vr(t)}, {vr(v)}, {vr(v)} row_half_mirror row_mask:0xf bank_mask:0xf")
    k(f"s_nop 1")
    k(f"v_add_f32_dpp {vr(v)}, {vr(t)}, {vr(t)} row_mirror row_mask:0xf bank_mask:0xf")
    k(f"s_nop 1")
    k(f"v_add_f32_dpp {vr(v)}, {vr(v)}, {vr(v)} row_bcast:15 row_mask:0xa bank_mask:0xf")
    k(f"s_nop 1")
    k(f"v_add_f32_dpp {vr(v)}, {vr(v)}, {vr(v)} row_bcast:31 row_mask:0xc bank_mask:0xf")
    k(f"s_nop 1")
    k(f"v_readlane_b32 s{sdst}, {vr(v)}, 63")

PROFILE = False
class Prof:
    n = 0
TAGS = None
def stamp(k, tag=""):
    import lib
    if not lib.PROFILE: return
    if lib.TAGS is not None and tag not in lib.TAGS: return
    if lib.TAGS is None and tag: return
    i = k.__dict__.setdefault("nstamp", 0)
    k(f"s_memtime s[98:99]")
    k("s_waitcnt lgkmcnt(0)")
    k(f"s_mov_b32 s{80+i}, s98")
    k.nstamp = i + 1
def stamp_init(k):
    import lib
    if not lib.PROFILE: return
    for i in range(80, 97): k(f"s_mov_b32 s{i}, 0x5a5a5a5a")
def stamp_flush(k, waves=(0, 3)):
    import lib
    if not lib.PROFILE: return
    n = k.__dict__.get("nstamp", 0)
    lab = k.newlab("pf")
    k("s_waitcnt vmcnt(0) lgkmcnt(0)")
    k(f"s_memtime s[98:99]")
    k("s_waitcnt lgkmcnt(0)")
    k(f"s_mov_b32 s{80+n}, s98")
    n += 1
    k("s_load_dwordx2 s[98:99], s[0:1], 120")
    k("s_waitcnt lgkmcnt(0)")
    k(f"s_add_u32 s98, s98, {200*1024*1024}\n s_addc_u32 s99, s99, 0")
    k(f"v_cmp_eq_u32 vcc, {64*waves[0]}, v0")
    k(f"v_mov_b32 v1, {64*waves[1]}")
    k("v_cmp_eq_u32 s[76:77], v1, v0")
    k("s_nop 1")
    k("v_cndmask_b32 v1, 0, 1, s[76:77]")
    k("v_lshlrev_b32 v1, 7, v1")
    k("s_lshl_b32 s78, s2, 8")
    k("v_add_u32 v1, s78, v1")
    k("s_or_b64 vcc, vcc, s[76:77]")
    k("s_and_saveexec_b64 s[76:77], vcc")
    k(f"s_cbranch_execz {lab}")
    for i in range(n):
        k(f"v_mov_b32 v2, s{80+i}")
        k(f"global_store_dword v1, v2, s[98:99] offset:{4*i}")
    k("s_waitcnt vmcnt(0)")
    k.label(lab)
```

```python
from lib import *
from layout import *
import struct
LOG2E = 0x3fb8aa3b
INV2PI = 0x3e22f983
def f2h(x): return "0x%08x" % struct.unpack("<I", struct.pack("<f", float(x)))[0]

S_WG = 2
S_WV = 3
SRD_WS = 8
SRD_DBG = 12
SRD_X = 16
SRD_OUT = 20
SRD_W1 = 24
SRD_T = 28
P_X=32; P_ARE=34; P_AIM=36; P_BRE=38; P_BIM=40; P_CRE=42; P_CIM=44; P_LDT=46
P_DSK=48; P_BX=50; P_W1=52; P_B1=54; P_W2=56; P_OUT=58; P_DBG=60; P_WS=62
V_TID=0; V_LANE=1; V_R=2; V_G=3

SPIN_MAX = 400000

def arrive_simple(k, srd_, s_off):
    lab = k.newlab("arr")
    k("s_waitcnt vmcnt(0)")
    k("s_barrier")
    k(f"s_cmp_lg_u32 s{S_WV}, 0")
    k(f"s_cbranch_scc1 {lab}")
    k("v_mov_b32 v4, 1\n v_mov_b32 v7, 0\n s_mov_b64 exec, 1")
    k(f"buffer_atomic_add v4, v7, s[{srd_}:{srd_+3}], s{s_off} offen")
    k("s_mov_b64 exec, -1")
    k.label(lab)

def arrive_go(k, srd_, s_off, count, go_off_imm, join=False, s_go=None):
    lab = k.newlab("arr")
    k("s_waitcnt vmcnt(0)")
    k("s_barrier")
    k(f"s_cmp_lg_u32 s{S_WV}, 0")
    k(f"s_cbranch_scc1 {lab}")
    k("v_mov_b32 v4, 1\n v_mov_b32 v7, 0\n s_mov_b64 exec, 1")
    k(f"buffer_atomic_add v4, v7, s[{srd_}:{srd_+3}], s{s_off} offen sc0")
    k("s_waitcnt vmcnt(0)")
    k("v_readfirstlane_b32 s67, v4")
    k(f"s_cmp_lg_u32 s67, {count-1}")
    k(f"s_cbranch_scc1 {lab}_x")
    if s_go is None:
        k(f"v_mov_b32 v4, 1\n s_mov_b32 s66, {go_off_imm}")
        k(f"buffer_store_dword v4, v7, s[{srd_}:{srd_+3}], s66 offen sc1")
    else:
        k(f"v_mov_b32 v4, 1\n s_nop 3")
        k(f"buffer_store_dword v4, v7, s[{srd_}:{srd_+3}], s{s_go} offen sc1")
    k.label(lab + "_x")
    k("s_mov_b64 exec, -1")
    k.label(lab)
    if join: k("s_barrier")

def arrive_s2(k, s_shard):
    lab = k.newlab("arr2")
    W = f"s[{SRD_WS}:{SRD_WS+3}]"
    k("s_waitcnt vmcnt(0)\n s_barrier")
    k(f"s_cmp_lg_u32 s{S_WV}, 0\n s_cbranch_scc1 {lab}\n s_cmp_eq_u32 s{s_shard}, -1\n s_cbranch_scc1 {lab}")
    k(f"s_lshl_b32 s66, s{s_shard}, 7\n s_add_u32 s66, s66, {WS_SYNC}")
    k("v_mov_b32 v4, 1\n v_mov_b32 v7, 0\n s_mov_b64 exec, 1")
    k(f"buffer_atomic_add v4, v7, {W}, s66 offen sc0\n s_waitcnt vmcnt(0)\n v_readfirstlane_b32 s67, v4")
    k(f"s_cmp_lg_u32 s67, 9\n s_cbranch_scc1 {lab}_x")
    k(f"s_mov_b32 s66, {WS_SYNC + 16*128}\n v_mov_b32 v4, 1")
    k(f"buffer_atomic_add v4, v7, {W}, s66 offen sc0\n s_waitcnt vmcnt(0)\n v_readfirstlane_b32 s67, v4")
    k(f"s_cmp_lg_u32 s67, 15\n s_cbranch_scc1 {lab}_x")
    k(f"s_mov_b64 exec, 0xffff\n v_lshlrev_b32 v7, 7, v{V_LANE}\n v_mov_b32 v4, 1\n s_mov_b32 s66, {WS_SYNC + 17*128}")
    k(f"buffer_store_dword v4, v7, {W}, s66 offen sc1")
    k.label(lab + "_x")
    k("s_mov_b64 exec, -1")
    k.label(lab)
    k("s_barrier")

def poll_val(k, srd_, s_off, target, sleep=2, pre_wait=False, barrier=True):
    lab = k.newlab("poll"); done = k.newlab("polled"); skip = k.newlab("pskip")
    k(f"s_cmp_lg_u32 s{S_WV}, 0")
    k(f"s_cbranch_scc1 {skip}")
    k("v_mov_b32 v7, 0\n s_mov_b64 exec, 1\n s_mov_b32 s66, 0")
    k.label(lab)
    k(f"buffer_load_dword v4, v7, s[{srd_}:{srd_+3}], s{s_off} offen sc1")
    k("s_add_u32 s66, s66, 1")
    k("s_waitcnt vmcnt(0)")
    k(f"v_cmp_gt_u32 vcc, {target}, v4")
    k(f"s_cmp_gt_u32 s66, {SPIN_MAX}")
    k(f"s_cbranch_scc1 {done}")
    k(f"s_cbranch_vccz {done}")
    k(f"s_sleep {sleep}")
    k(f"s_branch {lab}")
    k.label(done)
    k("s_mov_b64 exec, -1")
    k.label(skip)
    if pre_wait: k("s_waitcnt vmcnt(0)")
    if barrier: k("s_barrier")

def bf16_round(k, v):
    k(f"v_cvt_pk_bf16_f32 v{v}, v{v}, v{v}")
    k(f"v_lshlrev_b32 v{v}, 16, v{v}")

def ln_finish(k, v_mean, v_var, v_r):
    k(f"v_max_f32 v{v_var}, 0, v{v_var}")
    bf16_round(k, v_var)
    k(f"v_add_f32 v{v_var}, 0x3727c5ac, v{v_var}")
    bf16_round(k, v_var)
    k(f"v_sqrt_f32 v{v_var}, v{v_var}")
    k("s_nop 0")
    bf16_round(k, v_var)
    k(f"v_rcp_f32 v{v_r}, v{v_var}")
    bf16_round(k, v_mean)
```

```python
from mk_common import *

T_WAVE = 16896; T_SLOT = 8448; T_ROW = 528
KC_OFF = 67584; KC_CH = 1536
KEO_OFF = 73728; KEO_CH = 8320; O_REL = 4160
U_OFF = 107008; U_CH = 4608
YT_OFF = 0; YT_CH = 10240

def pk_cmul_inplace(k, ar, ai, br, bi, t, t2):
    k(f"v_pk_mul_f32 v[{t}:{t+1}], v[{ar}:{ar+1}], v[{br}:{br+1}]")
    k(f"v_pk_mul_f32 v[{t2}:{t2+1}], v[{ar}:{ar+1}], v[{bi}:{bi+1}]")
    k(f"v_pk_fma_f32 v[{ar}:{ar+1}], v[{ai}:{ai+1}], v[{bi}:{bi+1}], v[{t}:{t+1}] neg_lo:[1,0,0] neg_hi:[1,0,0]")
    k(f"v_pk_fma_f32 v[{ai}:{ai+1}], v[{ai}:{ai+1}], v[{br}:{br+1}], v[{t2}:{t2+1}]")
def pk_cmul(k, dr, di, ar, ai, br, bi, t, t2):
    k(f"v_pk_mul_f32 v[{t}:{t+1}], v[{ar}:{ar+1}], v[{br}:{br+1}]")
    k(f"v_pk_mul_f32 v[{t2}:{t2+1}], v[{ar}:{ar+1}], v[{bi}:{bi+1}]")
    k(f"v_pk_fma_f32 v[{dr}:{dr+1}], v[{ai}:{ai+1}], v[{bi}:{bi+1}], v[{t}:{t+1}] neg_lo:[1,0,0] neg_hi:[1,0,0]")
    k(f"v_pk_fma_f32 v[{di}:{di+1}], v[{ai}:{ai+1}], v[{br}:{br+1}], v[{t2}:{t2+1}]")
def pk_csq(k, dr, di, ar, ai, t):
    k(f"v_pk_mul_f32 v[{t}:{t+1}], v[{ai}:{ai+1}], v[{ai}:{ai+1}]")
    k(f"v_pk_add_f32 v[{di}:{di+1}], v[{ar}:{ar+1}], v[{ar}:{ar+1}]")
    k(f"v_pk_fma_f32 v[{dr}:{dr+1}], v[{ar}:{ar+1}], v[{ar}:{ar+1}], v[{t}:{t+1}] neg_lo:[0,0,1] neg_hi:[0,0,1]")
    k(f"v_pk_mul_f32 v[{di}:{di+1}], v[{di}:{di+1}], v[{ai}:{ai+1}]")

def gen_conv(k):
    k.c("======== role A: K-gen + conv ========")
    X = 8
    ST = 24
    P = 40
    k("s_lshl_b32 s5, s4, 3")
    k(f"s_add_u32 s64, s{P_LDT}, s5\n s_addc_u32 s65, s{P_LDT+1}, 0")
    k(f"s_add_u32 s66, s{P_DSK}, s5\n s_addc_u32 s67, s{P_DSK+1}, 0")
    k("s_load_dwordx2 s[68:69], s[64:65], 0")
    k("s_load_dwordx2 s[6:7], s[66:67], 0")
    k(f"s_lshl_b32 s70, s4, 2\n s_add_u32 s70, s70, s{S_WV}\n s_lshl_b32 s70, s70, 8")
    k(f"v_lshlrev_b32 v5, 2, v{V_LANE}\n v_add_u32 v5, s70, v5")
    for i, p in enumerate((P_ARE, P_AIM, P_BRE, P_BIM, P_CRE, P_CIM)):
        k(f"global_load_dword v{56+i}, v5, s[{p}:{p+1}]")
    k("v_mov_b32 v64, 0\n v_mov_b32 v65, 0\n v_mov_b32 v66, 0\n v_mov_b32 v67, 0")
    k(f"v_lshrrev_b32 v68, 5, v{V_TID}\n v_mul_u32_u24 v68, {U_CH}, v68\n v_and_b32 v69, 31, v{V_TID}\n v_lshl_add_u32 v68, v69, 4, v68\n v_add_u32 v68, {U_OFF}, v68")
    k(f"v_subrev_u32 v70, 128, v{V_TID}\n v_lshrrev_b32 v71, 4, v70\n v_mul_u32_u24 v71, {KEO_CH}, v71\n v_bfe_u32 v72, v70, 3, 1\n v_mul_u32_u24 v72, {O_REL}, v72\n v_add_u32 v71, v71, v72")
    k(f"v_and_b32 v72, 7, v70\n v_lshl_add_u32 v71, v72, 2, v71\n v_add_u32 v71, {KEO_OFF + 4096}, v71")
    k(f"s_cmp_ge_u32 s{S_WV}, 2\n s_cbranch_scc1 conv_z1")
    k("ds_write_b128 v68, v[64:67]")
    k.label("conv_z1")
    k(f"s_cmp_lg_u32 s{S_WV}, 2\n s_cbranch_scc1 conv_z2")
    k("ds_write_b32 v71, v64")
    k.label("conv_z2")
    k("s_waitcnt lgkmcnt(0)")
    k(f"s_cmp_ge_u32 s{S_WV}, 2\n s_cselect_b32 s70, s69, s68\n s_and_b32 s71, s{S_WV}, 1\n s_lshl_b32 s71, s71, 4\n s_lshr_b32 s70, s70, s71\n s_lshl_b32 s70, s70, 16")
    k(f"v_mov_b32 v64, {LOG2E:#x}\n v_mul_f32 v64, s70, v64\n v_exp_f32 v64, v64\n s_nop 0")
    bf16_round(k, 64)
    k("v_mov_b32 v65, v64")
    k("s_waitcnt vmcnt(0)")
    stamp(k)
    for i in range(6):
        k(f"v_lshlrev_b32 v{66+2*i}, 16, v{56+i}\n v_and_b32 v{67+2*i}, 0xffff0000, v{56+i}")
    k(f"s_mov_b32 s70, {LOG2E:#x}\n s_mov_b32 s72, {INV2PI:#x}")
    k("v_pk_mul_f32 v[66:67], v[66:67], v[64:65]\n v_pk_mul_f32 v[68:69], v[68:69], v[64:65]")
    k("v_pk_mul_f32 v[70:71], v[70:71], v[64:65]\n v_pk_mul_f32 v[72:73], v[72:73], v[64:65]")
    k("v_pk_mul_f32 v[66:67], v[66:67], s[70:71] op_sel_hi:[1,0]")
    k("v_pk_mul_f32 v[68:69], v[68:69], s[72:73] op_sel_hi:[1,0]")
    pk_cmul(k, 78, 80, 74, 76, 70, 72, 56, 58)
    def direct(dr, di, e):
        k(f"s_mov_b32 s74, {f2h(e)}")
        k("v_pk_mul_f32 v[56:57], v[66:67], s[74:75] op_sel_hi:[1,0]")
        k("v_pk_mul_f32 v[58:59], v[68:69], s[74:75] op_sel_hi:[1,0]")
        k("v_exp_f32 v56, v56\n v_exp_f32 v57, v57\n v_fract_f32 v58, v58\n v_fract_f32 v59, v59")
        k(f"v_cos_f32 v{dr}, v58\n v_cos_f32 v{dr+1}, v59\n v_sin_f32 v{di}, v58\n v_sin_f32 v{di+1}, v59\n s_nop 0")
        k(f"v_pk_mul_f32 v[{dr}:{dr+1}], v[{dr}:{dr+1}], v[56:57]\n v_pk_mul_f32 v[{di}:{di+1}], v[{di}:{di+1}], v[56:57]")
    Z1, Z16, Z256, Z2, Z4, Z8 = (82, 84), (86, 88), (90, 92), (94, 96), (98, 100), (102, 104)
    direct(*Z1, 1); direct(*Z16, 16); direct(*Z256, 256)
    pk_csq(k, *Z2, *Z1, 56); pk_csq(k, *Z4, *Z2, 56); pk_csq(k, *Z8, *Z4, 56)
    CR, CI = 78, 80
    k(f"s_mul_i32 s70, s{S_WV}, {T_WAVE}")
    k(f"v_lshlrev_b32 v106, 3, v{V_LANE}\n v_add_u32 v106, s70, v106")
    k(f"v_mul_u32_u24 v107, {T_ROW}, v{V_R}\n v_lshl_add_u32 v107, v{V_G}, 4, v107\n v_add_u32 v107, s70, v107")
    pk = [108, 110, 112, 114]; cnt = [0]
    def put(slot, row, re, im, neg=False):
        p = pk[cnt[0] % 4]; cnt[0] += 1
        n = "-" if neg else ""
        k(f"v_cvt_pk_bf16_f32 v{p}, v{re}, {n}v{im}\n v_cvt_pk_bf16_f32 v{p+1}, v{re+1}, {n}v{im+1}")
        k(f"ds_write_b64 v106, v[{p}:{p+1}] offset:{slot*T_SLOT + row*T_ROW}")
    A1, A2 = (116, 118), (120, 122)
    T1, T2, T3, T4 = 56, 58, 60, 62
    def mov2(d, s):
        k(f"v_pk_mov_b32 v[{d[0]}:{d[0]+1}], v[{s[0]}:{s[0]+1}], v[{s[0]}:{s[0]+1}] op_sel:[0,1]")
        k(f"v_pk_mov_b32 v[{d[1]}:{d[1]+1}], v[{s[1]}:{s[1]+1}], v[{s[1]}:{s[1]+1}] op_sel:[0,1]")
    k(f"v_mov_b32 v{A1[0]}, 1.0\n v_mov_b32 v{A1[0]+1}, 1.0\n v_mov_b32 v{A1[1]}, 0\n v_mov_b32 v{A1[1]+1}, 0")
    put(0, 0, *A1, True)
    mov2(A1, Z16); mov2(A2, (CR, CI))
    put(0, 1, *A1, True); put(1, 0, *A2)
    for i in range(1, 16):
        pk_cmul_inplace(k, *A2, *Z1, T1, T2)
        if i >= 2: pk_cmul_inplace(k, *A1, *Z16, T3, T4)
        put(1, i, *A2)
        if i >= 2: put(0, i, *A1, True)
    OF = 128; AFa = 160; AFb = 192
    for ks in range(8): k(f"ds_read_b128 v[{OF+4*ks}:{OF+4*ks+3}], v107 offset:{64*ks}")
    for ks in range(8): k(f"ds_read_b128 v[{AFa+4*ks}:{AFa+4*ks+3}], v107 offset:{T_SLOT + 64*ks}")
    pk_cmul(k, *A1, CR, CI, *Z256, T1, T2)
    mov2(A2, A1)
    put(0, 0, *A2)
    for r in range(1, 8):
        pk_cmul_inplace(k, *A2, *Z2, T1, T2); put(0, r, *A2)
    for j in (2, 3):
        pk_cmul_inplace(k, *A1, *Z256, T3, T4)
        mov2(A2, A1)
        put(0, 8 + 4*(j-2), *A2)
        for r in range(1, 4):
            pk_cmul_inplace(k, *A2, *Z4, T1, T2); put(0, 8 + 4*(j-2) + r, *A2)
    for j in range(4):
        pk_cmul_inplace(k, *A1, *Z256, T3, T4)
        put(1, 2*j, *A1)
        pk_cmul(k, *A2, *A1, *Z8, T1, T2)
        put(1, 2*j+1, *A2)
    pk_cmul_inplace(k, *A1, *Z256, T3, T4)
    put(1, 8, *A1)
    k("v_mov_b32 v56, 0\n v_mov_b32 v57, 0")
    for r in range(9, 16): k(f"ds_write_b64 v106, v[56:57] offset:{T_SLOT + r*T_ROW}")
    D0, D1, D2 = 224, 228, 232
    k("s_waitcnt lgkmcnt(0)")
    for ks in range(8):
        k(f"v_mfma_f32_16x16x32_bf16 v[{D0}:{D0+3}], v[{AFa+4*ks}:{AFa+4*ks+3}], v[{OF+4*ks}:{OF+4*ks+3}], {'0' if ks == 0 else f'v[{D0}:{D0+3}]'}")
    for ks in range(8): k(f"ds_read_b128 v[{AFb+4*ks}:{AFb+4*ks+3}], v107 offset:{64*ks}")
    for ks in range(8): k(f"ds_read_b128 v[{AFa+4*ks}:{AFa+4*ks+3}], v107 offset:{T_SLOT + 64*ks}")
    k(f"s_mul_i32 s70, s{S_WV}, {KC_CH}\n s_add_u32 s70, s70, {KC_OFF}")
    k(f"v_lshlrev_b32 v108, 5, v{V_R}\n v_lshl_add_u32 v108, v{V_G}, 3, v108\n v_add_u32 v108, s70, v108")
    k(f"v_lshlrev_b32 v109, 4, v{V_R}\n v_lshl_add_u32 v109, v{V_G}, 3, v109\n v_add_u32 v109, 512, v109")
    k(f"v_lshlrev_b32 v110, 3, v{V_R}\n v_lshl_add_u32 v110, v{V_G}, 7, v110\n v_add_u32 v110, 512, v110")
    k(f"v_cmp_gt_u32 vcc, 2, v{V_G}\n s_nop 1\n v_cndmask_b32 v109, v110, v109, vcc\n v_add_u32 v109, s70, v109")
    k(f"v_lshlrev_b32 v110, 2, v{V_R}\n v_lshl_add_u32 v110, v{V_G}, 7, v110\n v_add_u32 v110, 1024, v110\n v_add_u32 v110, s70, v110")
    k("s_waitcnt lgkmcnt(8)")
    for ks in range(8):
        k(f"v_mfma_f32_16x16x32_bf16 v[{D1}:{D1+3}], v[{AFb+4*ks}:{AFb+4*ks+3}], v[{OF+4*ks}:{OF+4*ks+3}], {'0' if ks == 0 else f'v[{D1}:{D1+3}]'}")
    k("s_waitcnt lgkmcnt(0)")
    for ks in range(8):
        k(f"v_mfma_f32_16x16x32_bf16 v[{D2}:{D2+3}], v[{AFa+4*ks}:{AFa+4*ks+3}], v[{OF+4*ks}:{OF+4*ks+3}], {'0' if ks == 0 else f'v[{D2}:{D2+3}]'}")
    for jq in range(2):
        for j in range(5):
            d = 112 + 5*jq + j
            k(f"v_lshlrev_b32 v58, 2, v{V_TID}")
            k(f"v_sub_u32 v58, {2047 - 1024*jq - j}, v58")
            k("v_cvt_f32_i32 v59, v58")
            k("v_cvt_pk_bf16_f32 v59, v59, v59")
            k("v_and_b32 v59, 0xffff, v59\n v_subrev_u32 v59, 17024, v59")
            k("v_cmp_gt_i32 vcc, 128, v58\n s_nop 1\n v_cndmask_b32 v59, v59, v58, vcc")
            if jq == 1 and j == 4:
                k("v_cmp_gt_i32 vcc, 0, v58\n v_mov_b32 v57, 641\n s_nop 0\n v_cndmask_b32 v59, v59, v57, vcc")
            k(f"v_lshlrev_b32 v{d}, 1, v59\n v_add_u32 v{d}, {KC_OFF}, v{d}")
    for t, Dt in enumerate((D0, D1, D2)):
        k(f"v_cvt_pk_bf16_f32 v{60+2*t}, v{Dt}, v{Dt+1}\n v_cvt_pk_bf16_f32 v{61+2*t}, v{Dt+2}, v{Dt+3}")
    k("ds_write_b64 v108, v[60:61]\n ds_write_b64 v109, v[62:63]\n ds_write_b32 v110, v64\n ds_write_b32 v110, v65 offset:64")
    k("s_waitcnt lgkmcnt(0)\n s_barrier")
    stamp(k)
    k(f"v_lshlrev_b32 v122, 3, v{V_TID}\n v_add_u32 v122, {KEO_OFF}, v122")
    for c in range(4):
        for jq in range(2):
            for j in range(5): k(f"ds_read_u16 v{128+10*c+5*jq+j}, v{112+5*jq+j} offset:{c*KC_CH}")
    for c in range(4):
        k(f"s_waitcnt lgkmcnt({min(15, 30 - 10*c)})")
        for jq in range(2):
            b = 128 + 10*c + 5*jq; o = 168 + 8*c + 4*jq
            k(f"v_lshl_or_b32 v{o}, v{b+1}, 16, v{b}\n v_lshl_or_b32 v{o+1}, v{b+3}, 16, v{b+2}")
            k(f"v_lshl_or_b32 v{o+2}, v{b+2}, 16, v{b+1}\n v_lshl_or_b32 v{o+3}, v{b+4}, 16, v{b+3}")
    return X, ST, P

def gen_conv2(k, X, ST, P):
    for c in range(4):
        for jq in range(2):
            o = 168 + 8*c + 4*jq
            k(f"ds_write_b64 v122, v[{o}:{o+1}] offset:{c*KEO_CH + 2048*jq}")
            k(f"ds_write_b64 v122, v[{o+2}:{o+3}] offset:{c*KEO_CH + O_REL + 2048*jq}")
    k(f"v_lshlrev_b32 v123, 1, v{V_R}\n v_sub_u32 v123, 4062, v123\n v_lshl_add_u32 v123, v{V_G}, 4, v123")
    k(f"v_and_b32 v124, 1, v{V_R}\n v_cmp_eq_u32 vcc, 0, v124\n v_mov_b32 v124, 4158\n s_nop 0\n v_cndmask_b32 v124, 0, v124, vcc\n v_add_u32 v123, v123, v124")
    k(f"s_mul_i32 s70, s{S_WV}, {KEO_CH}\n s_add_u32 s70, s70, {KEO_OFF}")
    AA = 124
    for p in range(4):
        k(f"s_sub_u32 s71, s70, {512*(2*p+1)}")
        k(f"v_add_u32 v{AA+p}, s71, v123")
    k(f"s_mul_i32 s70, s{S_WV}, {U_CH}\n s_add_u32 s70, s70, {U_OFF + 480}")
    k(f"v_lshlrev_b32 v119, 5, v{V_R}\n v_lshl_add_u32 v119, v{V_G}, 4, v119\n v_add_u32 v119, s70, v119")
    stamp(k)
    k("s_mov_b32 s64, 128")
    poll_val(k, SRD_DBG, 64, 1, sleep=1)
    stamp(k)
    k(f"v_lshlrev_b32 v6, 4, v{V_TID}")
    k(f"s_lshl_b32 s71, s4, 14\n s_add_u32 s71, s71, {WS_XB}")
    for jj in range(4):
        k(f"s_mov_b32 s70, {WS_STATS1 + jj*4096}")
        k(f"buffer_load_dwordx4 v[{ST+4*jj}:{ST+4*jj+3}], v6, s[{SRD_WS}:{SRD_WS+3}], s70 offen sc1")
        k(f"buffer_load_dwordx4 v[{X+4*jj}:{X+4*jj+3}], v6, s[{SRD_WS}:{SRD_WS+3}], s71 offen sc1")
        if jj < 3: k("s_add_u32 s71, s71, 4096")
    k(f"v_lshlrev_b32 v7, 2, v{V_TID}\n v_add_u32 v7, {U_OFF + 512}, v7")
    for jj in range(4):
        k(f"s_waitcnt vmcnt({6 - 2*jj})")
        for par in range(2):
            for h in range(2):
                r = X + 4*jj + 2*par + h
                k(f"v_lshlrev_b32 v{56+4*par+2*h}, 16, v{r}\n v_and_b32 v{57+4*par+2*h}, 0xffff0000, v{r}")
        for par in range(2):
            m = ST + 4*jj + 2*par
            for c in range(4):
                k(f"v_sub_f32 v{56+4*par+c}, v{56+4*par+c}, v{m}")
            for c in range(4):
                k(f"v_mul_f32 v{56+4*par+c}, v{56+4*par+c}, v{m+1}")
        for c in range(4):
            k(f"v_cvt_pk_bf16_f32 v{P+4*jj+c}, v{56+c}, v{60+c}")
            k(f"ds_write_b32 v7, v{P+4*jj+c} offset:{c*U_CH + 1024*jj}")
    k("s_waitcnt lgkmcnt(0)\n s_barrier")
    stamp(k)
    ACC = 128; BF = (160, 192); AF = 224; BA = 119
    for i in range(32): k(f"v_mov_b32 v{ACC+i}, 0")
    def loadB(st, J): k(f"ds_read_b128 v[{BF[st]+4*J}:{BF[st]+4*J+3}], v{BA} offset:{512*J}")
    def loadA(a):
        p = a // 2; off = 128 if a % 2 == 0 else 0
        k(f"ds_read2_b32 v[{AF+4*a}:{AF+4*a+1}], v{AA+p} offset0:{off} offset1:{off+1}")
        k(f"ds_read2_b32 v[{AF+4*a+2}:{AF+4*a+3}], v{AA+p} offset0:{off+2} offset1:{off+3}")
    def mfma(st, a, J):
        k(f"v_mfma_f32_16x16x32_bf16 v[{ACC+4*J}:{ACC+4*J+3}], v[{AF+4*a}:{AF+4*a+3}], v[{BF[st]+4*(J-a)}:{BF[st]+4*(J-a)+3}], v[{ACC+4*J}:{ACC+4*J+3}]")
    for J in range(8): loadB(0, J)
    for a in range(8): loadA(a)
    def step_addr():
        for p in range(4): k(f"v_subrev_u32 v{AA+p}, 64, v{AA+p}")
        k(f"v_subrev_u32 v{BA}, 64, v{BA}")
    step_addr()
    def iteration(st, prefetch):
        k("s_waitcnt lgkmcnt(14)")
        nb = 0
        for a in range(8):
            if a >= 1:
                k(f"s_waitcnt lgkmcnt({15 if prefetch else 2*(7-a)})")
            for J in range(a, 8):
                mfma(st, a, J)
                if prefetch and a == 0:
                    loadB(1-st, nb); nb += 1
            if prefetch: loadA(a)
        if prefetch: step_addr()
    k("s_mov_b32 s70, 0")
    k.label("conv_loop")
    iteration(0, True)
    iteration(1, True)
    k("s_add_u32 s70, s70, 1\n s_cmp_lt_u32 s70, 3\n s_cbranch_scc1 conv_loop")
    iteration(0, True)
    iteration(1, False)
    stamp(k)
    k(f"s_mul_i32 s70, s{S_WV}, {YT_CH}")
    k(f"v_mul_u32_u24 v56, 80, v{V_R}\n v_lshl_add_u32 v56, v{V_G}, 4, v56\n v_add_u32 v56, s70, v56")
    k("s_nop 4")
    for J in range(8):
        k(f"ds_write_b128 v56, v[{ACC+4*J}:{ACC+4*J+3}] offset:{YT_OFF + 1280*J}")
    k("s_waitcnt lgkmcnt(0)\n s_barrier")
    k(f"v_lshrrev_b32 v56, 3, v{V_TID}\n v_lshlrev_b32 v56, 4, v56\n v_lshl_add_u32 v56, v{V_TID}, 3, v56")
    for jj in range(4):
        for c in range(4):
            k(f"ds_read_b64 v[{128+8*jj+2*c}:{128+8*jj+2*c+1}], v56 offset:{YT_OFF + c*YT_CH + jj*2560}")
    k("s_lshl_b32 s72, s6, 16\n s_and_b32 s73, s6, 0xffff0000\n s_lshl_b32 s74, s7, 16\n s_and_b32 s75, s7, 0xffff0000")
    k(f"v_lshrrev_b32 v57, 4, v{V_TID}\n v_mul_u32_u24 v57, 40960, v57\n v_and_b32 v58, 15, v{V_TID}\n v_lshl_add_u32 v57, v58, 4, v57")
    k("s_lshr_b32 s70, s4, 3\n s_lshl_b32 s70, s70, 11\n s_bfe_u32 s71, s4, 0x10002\n s_lshl_b32 s71, s71, 10\n s_add_u32 s70, s70, s71")
    k(f"s_and_b32 s71, s4, 3\n s_lshl_b32 s71, s71, 8\n s_add_u32 s70, s70, s71\n s_add_u32 s70, s70, {WS_HF}")
    for jj in range(4):
        k(f"s_waitcnt lgkmcnt({12 - 4*jj})")
        for par in range(2):
            for h in range(2):
                r = X + 4*jj + 2*par + h
                k(f"v_lshlrev_b32 v{64+4*par+2*h}, 16, v{r}\n v_and_b32 v{65+4*par+2*h}, 0xffff0000, v{r}")
        for c in range(4):
            k(f"v_lshlrev_b32 v{72+c}, 16, v{P+4*jj+c}\n v_and_b32 v{76+c}, 0xffff0000, v{P+4*jj+c}")
        for par in range(2):
            for c in range(4):
                y = 128 + 8*jj + 2*c + par
                k(f"v_fma_f32 v{72+4*par+c}, v{72+4*par+c}, s{72+c}, v{y}")
        for i in range(8): k(f"v_add_f32 v{64+i}, v{64+i}, v{72+i}")
        o = 160 + 4*jj
        for i in range(4): k(f"v_cvt_pk_bf16_f32 v{o+i}, v{64+2*i}, v{65+2*i}")
        k(f"buffer_store_dwordx4 v[{o}:{o+3}], v57, s[{SRD_WS}:{SRD_WS+3}], s70 offen sc1")
        if jj < 3: k(f"s_add_u32 s70, s70, {16*40960}")
    stamp(k)
    k("s_and_b32 s79, s4, 15")
```

```python
from mk_common import *

W1_LDS = 143360
CB_OFF = W1_LDS
LDS_TOTAL = W1_LDS + 1024

W2A = 56
W2V = 176
def w2_reg(i, p):
    if i < 10: return f"a[{W2A+20*i+4*p}:{W2A+20*i+4*p+3}]"
    return f"v[{W2V+20*(i-10)+4*p}:{W2V+20*(i-10)+4*p+3}]"
def w2_ops():
    ops = []
    for p in range(5):
        for g0 in (0, 4, 8, 12):
            for i in range(g0, min(g0 + 4, 14)):
                pre = ""
                if i == g0: pre = f"s_add_u32 s78, s76, {p*54*1024 + g0*1024}\n "
                if i == 13: pre = "s_add_u32 s78, s78, s77\n "
                ops.append(pre + f"buffer_load_dwordx4 {w2_reg(i, p)}, v5, s[{SRD_WS}:{SRD_WS+3}], s78 offen offset:{(i-g0)*1024} sc1")
    return ops
def w2_frag(i, p):
    return w2_reg(i, p)

def residual_loads(k):
    k(f"s_lshl_b32 s64, s6, 1\n s_lshr_b32 s65, s{S_WV}, 1\n s_add_u32 s64, s64, s65")
    k(f"s_mul_i32 s66, s64, 40960\n s_and_b32 s67, s{S_WV}, 1\n s_lshl_b32 s67, s67, 3\n s_add_u32 s66, s66, s67\n s_add_u32 s66, s66, {WS_HF}")
    k("s_mul_i32 s67, s7, 20")
    for p in range(5):
        if p < 4: k(f"v_lshlrev_b32 v18, 1, v{V_G}\n v_add_u32 v18, {8*(p>>1) + (p&1)}, v18")
        else: k(f"v_add_u32 v18, 16, v{V_G}")
        k("v_add_u32 v18, s67, v18")
        k("v_lshrrev_b32 v19, 3, v18\n v_lshlrev_b32 v19, 11, v19\n v_bfe_u32 v20, v18, 2, 1\n v_lshl_add_u32 v19, v20, 10, v19")
        k(f"v_and_b32 v20, 3, v18\n v_lshl_add_u32 v19, v20, 8, v19\n v_lshl_add_u32 v19, v{V_R}, 4, v19")
        k(f"buffer_load_dwordx2 v[{8+2*p}:{9+2*p}], v19, s[{SRD_WS}:{SRD_WS+3}], s66 offen sc1")

def gen_gemm1(k):
    k.c("======== GEMM1 ========")
    b = S_WG
    k(f"s_and_b32 s4, s{b}, 7\n s_lshr_b32 s4, s4, 1\n s_lshl_b32 s4, s4, 2\n s_lshr_b32 s64, s{b}, 3\n s_and_b32 s64, s64, 3\n s_add_u32 s4, s4, s64")
    k(f"s_and_b32 s5, s{b}, 1\n s_lshl_b32 s5, s5, 3\n s_lshr_b32 s64, s{b}, 5\n s_add_u32 s5, s5, s64\n s_mul_i32 s5, s5, 7\n s_min_u32 s5, s5, 101")
    k(f"s_and_b32 s6, s{b}, 7\n s_lshr_b32 s6, s6, 1\n s_lshl_b32 s6, s6, 3\n s_lshr_b32 s64, s{b}, 3\n s_and_b32 s64, s64, 7\n s_add_u32 s6, s6, s64")
    k(f"s_and_b32 s7, s{b}, 1\n s_lshl_b32 s7, s7, 2\n s_lshr_b32 s64, s{b}, 6\n s_add_u32 s7, s7, s64")
    for u in range(7):
        k(f"v_add_u32 v8, {64*u}, v{V_LANE}\n v_mul_u32_u24 v9, 4682, v8\n v_lshrrev_b32 v9, 16, v9")
        k(f"v_mul_u32_u24 v10, 14, v9\n v_sub_u32 v8, v8, v10")
        k(f"v_mul_u32_u24 v9, 3456, v9\n v_lshl_add_u32 v{16+u}, v8, 4, v9")
    k(f"s_mul_i32 s64, s{S_WV}, {32*3456}\n s_lshl_b32 s65, s5, 5\n s_add_u32 s64, s64, s65")
    def dma(i):
        k(f"s_add_u32 s65, s{S_WV}, {4*i}\n s_mul_i32 s65, s65, 7168")
        for u in range(7):
            k(f"s_add_u32 m0, s65, {u*1024}")
            if u == 0 and i > 0: k(f"s_add_u32 s64, s64, {4*32*3456}")
            else: k("s_nop 0")
            k(f"buffer_load_dwordx4 v{16+u}, s[{SRD_W1}:{SRD_W1+3}], s64 offen lds")
    arrive_s2(k, 79)
    stamp(k, "s2")
    for i in range(5): dma(i)
    k(f"v_lshlrev_b32 v5, 4, v{V_LANE}")
    k(f"v_lshrrev_b32 v6, 2, v{V_LANE}\n v_mul_u32_u24 v6, 224, v6\n v_and_b32 v7, 3, v{V_LANE}\n v_lshl_add_u32 v6, v7, 3, v6")
    k("v_add_u32 v8, 0x10000, v6\n v_add_u32 v9, 0x20000, v6")
    stamp(k)
    k("s_mov_b32 s67, 132")
    poll_val(k, SRD_DBG, 67, 1, sleep=4)
    srd(k, SRD_T, P_B1, P_B1+1, F*2)
    k(f"v_lshlrev_b32 v10, 2, v{V_TID}\n v_lshlrev_b32 v11, 1, v{V_TID}")
    k(f"s_lshl_b32 s66, s5, 6\n s_add_u32 s66, s66, {WS_CS1}\n s_lshl_b32 s67, s5, 5")
    k(f"buffer_load_dword v12, v10, s[{SRD_WS}:{SRD_WS+3}], s66 offen sc1")
    k(f"buffer_load_ushort v13, v11, s[{SRD_T}:{SRD_T+3}], s67 offen")
    B = 96
    k(f"s_lshl_b32 s64, s4, 2\n s_add_u32 s64, s64, s{S_WV}")
    k(f"s_mul_i32 s74, s64, 40960\n s_add_u32 s74, s74, {WS_HF}")
    k(f"s_mul_i32 s68, s{S_WV}, 14\n s_cmp_eq_u32 s{S_WV}, 3\n s_cselect_b32 s69, 1, 0\n s_sub_u32 s68, s68, s69")
    k(f"s_mul_i32 s76, s7, 270\n s_add_u32 s76, s76, s68\n s_lshl_b32 s76, s76, 10\n s_add_u32 s76, s76, {WS_WF2}")
    k(f"s_cmp_ge_u32 s{S_WV}, 2\n s_cselect_b32 s77, 0x40000000, 0")
    ACC = 24; S1 = 80; S2 = 88
    k("v_mov_b32 v20, 0x3f803f80\n v_mov_b32 v21, 0x3f803f80\n v_mov_b32 v22, 0x3f803f80\n v_mov_b32 v23, 0x3f803f80")
    k("s_waitcnt vmcnt(0)")
    k(f"v_lshlrev_b32 v13, 16, v13\n v_add_u32 v10, {CB_OFF}, v10")
    k(f"v_cmp_gt_u32 vcc, 112, v{V_TID}\n s_and_saveexec_b64 s[70:71], vcc\n s_cbranch_execz g1_cb")
    k("ds_write_b32 v10, v12\n ds_write_b32 v10, v13 offset:448")
    k.label("g1_cb")
    k("s_mov_b64 exec, s[70:71]")
    k(f"s_and_b32 s67, s{S_WG}, 15\n s_add_u32 s67, s67, 17\n s_lshl_b32 s67, s67, 7\n s_add_u32 s67, s67, {WS_SYNC}")
    k("s_waitcnt lgkmcnt(0)")
    poll_val(k, SRD_WS, 67, 1, sleep=2)
    stamp(k); stamp(k, "g1")
    NB = 6; PRE = 5
    vm = []
    def loadB(s):
        r = B + 8*(s % NB)
        k(f"buffer_load_dwordx4 v[{r}:{r+3}], v5, s[{SRD_WS}:{SRD_WS+3}], s74 offen sc1"); vm.append(("B", s))
        k(f"buffer_load_dwordx4 v[{r+4}:{r+7}], v5, s[{SRD_WS}:{SRD_WS+3}], s74 offen offset:1024 sc1"); vm.append(("B", s))
        if s < 19: k("s_add_u32 s74, s74, 2048")
    for s in range(PRE): loadB(s)
    def readA1(s, buf, ftl, hh):
        o = s*7168 + ftl*32 + 3584*hh
        reg = (6, 8, 9)[o // 65536]
        a0 = 28*buf + 4*ftl + 2*hh
        k(f"ds_read_b64_tr_b16 a[{a0}:{a0+1}], v{reg} offset:{o % 65536}")
    w2q = w2_ops()
    for ftl in range(7):
        for hh in range(2): readA1(0, 0, ftl, hh)
    for s in range(20):
        buf = s % 2
        last = max(i for i, e in enumerate(vm) if e == ("B", s))
        k(f"s_waitcnt vmcnt({len(vm) - 1 - last})")
        if s in (0, 1, 2, 4, 7, 10, 13, 16, 19): stamp(k, "g1")
        b0 = B + 8*(s % NB)
        k(f"v_swap_b32 v{b0+2}, v{b0+4}\n v_swap_b32 v{b0+3}, v{b0+5}")
        k("s_waitcnt lgkmcnt(0)")
        k("s_nop 0")
        fill = [(ftl, hh) for ftl in range(7) for hh in range(2)] if s < 19 else []
        seq = []
        for ftl in range(7):
            for tt in range(2):
                c = ACC + 4*(ftl*2+tt); a0 = 28*buf + 4*ftl
                cin = "0" if s == 0 else f"v[{c}:{c+3}]"
                seq.append(f"v_mfma_f32_16x16x32_bf16 v[{c}:{c+3}], a[{a0}:{a0+3}], v[{b0+4*tt}:{b0+4*tt+3}], {cin}")
        for tt in range(2):
            c1 = "0" if s == 0 else f"v[{S1+4*tt}:{S1+4*tt+3}]"; c2 = "0" if s == 0 else f"v[{S2+4*tt}:{S2+4*tt+3}]"
            seq.append(f"v_mfma_f32_16x16x32_bf16 v[{S1+4*tt}:{S1+4*tt+3}], v[20:23], v[{b0+4*tt}:{b0+4*tt+3}], {c1}")
            seq.append(f"v_mfma_f32_16x16x32_bf16 v[{S2+4*tt}:{S2+4*tt+3}], v[{b0+4*tt}:{b0+4*tt+3}], v[{b0+4*tt}:{b0+4*tt+3}], {c2}")
        for i, m in enumerate(seq):
            k(m)
            if i < len(fill): readA1(s+1, 1-buf, *fill[i])
            if i == 14 and s + PRE < 20: loadB(s + PRE)
            if s >= 2 and i in (15, 16) and w2q:
                k(w2q.pop(0)); vm.append(("W", 0))
    stamp(k); stamp(k, "g1")
    k("s_nop 3")
    k(f"v_and_b32 v10, 3, v{V_R}\n v_lshrrev_b32 v11, 2, v{V_R}\n v_lshl_add_u32 v11, v11, 4, v{V_R}\n v_lshlrev_b32 v11, 2, v11")
    for tt in range(2):
        bb = S2 + 4*tt
        for q in (1, 2, 3):
            k(f"v_cmp_eq_u32 vcc, {q}, v10\n s_nop 1\n v_cndmask_b32 v{bb}, v{bb}, v{bb+q}, vcc")
        k(f"ds_bpermute_b32 v{bb+1}, v11, v{bb}")
    k("s_waitcnt lgkmcnt(0)")
    RR = (96, 100)
    for tt in range(2):
        m = S1 + 4*tt; q = S2 + 4*tt + 1
        k(f"v_mul_f32 v{m}, 0x3acccccd, v{m}\n v_mul_f32 v{q}, 0x3acccccd, v{q}\n v_fma_f32 v{q}, -v{m}, v{m}, v{q}")
        ln_finish(k, m, q, RR[tt])
        k("s_nop 0")
        k(f"v_mul_f32 v{RR[tt]+2}, v{m}, v{RR[tt]}\n v_sub_f32 v{RR[tt]+2}, 0, v{RR[tt]+2}")
    k(f"v_lshlrev_b32 v7, 4, v{V_G}\n v_add_u32 v7, {CB_OFF}, v7")
    residual_loads(k)
    late = w2q
    k(f"s_lshl_b32 s64, s4, 2\n s_add_u32 s64, s64, s{S_WV}\n s_mul_i32 s64, s64, {108*1024}\n s_lshl_b32 s65, s5, 10\n s_add_u32 s64, s64, s65\n s_add_u32 s64, s64, {WS_ACT}")
    k(f"s_mov_b32 s70, {LOG2E:#x}")
    CS = 104; B1 = 108; TM = 112; E = 120; PP = 128; OUT = 136
    for ftl in range(7):
        cs = CS + 32*(ftl % 2)*0
        k(f"ds_read_b128 v[{CS}:{CS+3}], v7 offset:{64*ftl}")
        k(f"ds_read_b128 v[{B1}:{B1+3}], v7 offset:{448 + 64*ftl}")
        for _ in range(5):
            if late: k(late.pop(0))
        k("s_waitcnt lgkmcnt(0)")
        o = OUT + 4*(ftl % 2)
        for tt in range(2):
            c = ACC + 4*(ftl*2+tt); r = RR[tt]; nrm = RR[tt] + 2
            t = TM + 4*tt; e = E + 4*tt; p = PP + 4*tt
            for h in range(2):
                k(f"v_pk_fma_f32 v[{t+2*h}:{t+2*h+1}], v[{CS+2*h}:{CS+2*h+1}], v[{nrm}:{nrm+1}], v[{B1+2*h}:{B1+2*h+1}] op_sel_hi:[1,0,1]")
            for h in range(2):
                k(f"v_pk_fma_f32 v[{c+2*h}:{c+2*h+1}], v[{c+2*h}:{c+2*h+1}], v[{r}:{r+1}], v[{t+2*h}:{t+2*h+1}] op_sel_hi:[1,0,1]")
            for h in range(2):
                k(f"v_pk_mul_f32 v[{e+2*h}:{e+2*h+1}], v[{c+2*h}:{c+2*h+1}], s[70:71] op_sel_hi:[1,0]")
        for tt in range(2):
            e = E + 4*tt
            for i in range(4): k(f"v_exp_f32 v{e+i}, v{e+i}")
        k("s_nop 0")
        for tt in range(2):
            e = E + 4*tt; p = PP + 4*tt
            for h in range(2): k(f"v_pk_add_f32 v[{p+2*h}:{p+2*h+1}], v[{e+2*h}:{e+2*h+1}], 2.0 op_sel_hi:[1,0]")
            for h in range(2): k(f"v_pk_fma_f32 v[{p+2*h}:{p+2*h+1}], v[{e+2*h}:{e+2*h+1}], v[{p+2*h}:{p+2*h+1}], 2.0 op_sel_hi:[1,1,0]")
        for tt in range(2):
            p = PP + 4*tt
            for i in range(4): k(f"v_rcp_f32 v{p+i}, v{p+i}")
        k("s_nop 0")
        for tt in range(2):
            c = ACC + 4*(ftl*2+tt); p = PP + 4*tt
            for h in range(2): k(f"v_pk_fma_f32 v[{p+2*h}:{p+2*h+1}], v[{p+2*h}:{p+2*h+1}], -2.0, 1.0 op_sel_hi:[1,0,0]")
            for h in range(2): k(f"v_pk_mul_f32 v[{p+2*h}:{p+2*h+1}], v[{p+2*h}:{p+2*h+1}], v[{c+2*h}:{c+2*h+1}]")
            k(f"v_cvt_pk_bf16_f32 v{o+2*tt}, v{p}, v{p+1}\n v_cvt_pk_bf16_f32 v{o+2*tt+1}, v{p+2}, v{p+3}")
        k(f"buffer_store_dwordx4 v[{o}:{o+3}], v5, s[{SRD_WS}:{SRD_WS+3}], s64 offen sc1")
        if ftl < 6: k("s_add_u32 s64, s64, 1024")
    while late: k(late.pop(0))
    stamp(k); stamp(k, "g2")
    k(f"s_add_u32 s64, s4, 33\n s_lshl_b32 s64, s64, 7\n s_add_u32 s64, s64, {WS_SYNC}")
    k("s_add_u32 s65, s64, 2048")
    arrive_go(k, SRD_WS, 64, 16, 0, s_go=65)

def gen_gemm2(k):
    k.c("======== GEMM2 ========")
    k(f"s_lshr_b32 s64, s6, 1\n s_add_u32 s64, s64, 49\n s_lshl_b32 s64, s64, 7\n s_add_u32 s64, s64, {WS_SYNC}")
    stamp(k, "g2")
    poll_val(k, SRD_WS, 64, 1, sleep=1)
    stamp(k); stamp(k, "g2")
    ACC = 24; RING = 104; NR = 4
    k(f"s_mul_i32 s68, s{S_WV}, 14\n s_cmp_eq_u32 s{S_WV}, 3\n s_cselect_b32 s69, 1, 0\n s_sub_u32 s68, s68, s69")
    k(f"s_mul_i32 s70, s6, 216\n s_lshl_b32 s71, s68, 1\n s_add_u32 s70, s70, s71\n s_lshl_b32 s70, s70, 10\n s_add_u32 s70, s70, {WS_ACT}")
    def issue(i):
        st = RING + 16*(i % NR)
        for Tl in range(2):
            k(f"s_add_u32 s71, s70, {Tl*108*1024 + i*2048}")
            if i == 13: k("s_add_u32 s71, s71, s77")
            k(f"buffer_load_dwordx4 v[{st+8*Tl}:{st+8*Tl+3}], v5, s[{SRD_WS}:{SRD_WS+3}], s71 offen sc1")
            k(f"buffer_load_dwordx4 v[{st+8*Tl+4}:{st+8*Tl+7}], v5, s[{SRD_WS}:{SRD_WS+3}], s71 offen offset:1024 sc1")
    for i in range(NR): issue(i)
    def issue_ops(i):
        st = RING + 16*(i % NR); ops = []
        for Tl in range(2):
            pre = f"s_add_u32 s{71+Tl}, s70, {Tl*108*1024 + i*2048}"
            if i == 13: pre += f"\n s_add_u32 s{71+Tl}, s{71+Tl}, s77"
            ops.append(pre + f"\n buffer_load_dwordx4 v[{st+8*Tl}:{st+8*Tl+3}], v5, s[{SRD_WS}:{SRD_WS+3}], s{71+Tl} offen sc1")
            ops.append(f"buffer_load_dwordx4 v[{st+8*Tl+4}:{st+8*Tl+7}], v5, s[{SRD_WS}:{SRD_WS+3}], s{71+Tl} offen offset:1024 sc1")
        return ops
    for i in range(14):
        issued = min(13, NR - 1 if i <= 1 else i + NR - 2)
        k(f"s_waitcnt vmcnt({4*(issued - i)})")
        if i in (0, 1, 3, 6, 9, 13): stamp(k, "g2")
        st = RING + 16*(i % NR)
        for Tl in range(2):
            b0 = st + 8*Tl
            k(f"v_swap_b32 v{b0+2}, v{b0+4}\n v_swap_b32 v{b0+3}, v{b0+5}")
        k("s_nop 0")
        pend = issue_ops(i - 1 + NR) if (i >= 1 and i - 1 + NR < 14) else []
        n = 0
        for p in range(5):
            for tt in range(4):
                c = ACC + 4*(p*4+tt)
                cin = "0" if i == 0 else f"v[{c}:{c+3}]"
                k(f"v_mfma_f32_16x16x32_bf16 v[{c}:{c+3}], {w2_frag(i, p)}, v[{st+4*tt}:{st+4*tt+3}], {cin}")
                n += 1
                if pend and n in (2, 6, 10, 14): k(pend.pop(0))
    stamp(k); stamp(k, "g2")
    k(f"s_mul_i32 s64, s{S_WV}, 20480\n v_add_u32 v18, s64, v5")
    k("s_nop 6")
    for tt in range(4):
        lab = k.newlab("skipw")
        k(f"s_cmp_eq_u32 s{S_WV}, {tt}\n s_cbranch_scc1 {lab}")
        for p in range(5):
            c = ACC + 4*(p*4+tt)
            k(f"ds_write_b128 v18, v[{c}:{c+3}] offset:{tt*5120 + p*1024}")
        k.label(lab)
    for tt in range(4):
        lab = k.newlab("skipm")
        k(f"s_cmp_lg_u32 s{S_WV}, {tt}\n s_cbranch_scc1 {lab}")
        for p in range(5):
            c = ACC + 4*(p*4+tt)
            k(f"v_pk_mov_b32 v[{104+4*p}:{105+4*p}], v[{c}:{c+1}], v[{c}:{c+1}] op_sel:[0,1]\n v_pk_mov_b32 v[{106+4*p}:{107+4*p}], v[{c+2}:{c+3}], v[{c+2}:{c+3}] op_sel:[0,1]")
        k.label(lab)
    k("s_waitcnt lgkmcnt(0)\n s_barrier")
    for j in range(1, 4):
        k(f"s_add_u32 s64, s{S_WV}, {j}\n s_and_b32 s64, s64, 3\n s_mul_i32 s64, s64, 20480\n s_mul_i32 s65, s{S_WV}, 5120\n s_add_u32 s64, s64, s65")
        k(f"v_add_u32 v18, s64, v5")
        for p in range(5):
            d = 124 + 20*(j-1) + 4*p
            k(f"ds_read_b128 v[{d}:{d+3}], v18 offset:{p*1024}")
    k("s_waitcnt lgkmcnt(0)")
    for j in range(3):
        for i in range(0, 20, 2):
            k(f"v_pk_add_f32 v[{104+i}:{105+i}], v[{104+i}:{105+i}], v[{124+20*j+i}:{125+20*j+i}]")
    for p in range(5):
        for h in range(2):
            k(f"v_lshlrev_b32 v18, 16, v{8+2*p+h}\n v_and_b32 v19, 0xffff0000, v{8+2*p+h}")
            k(f"v_pk_add_f32 v[{104+4*p+2*h}:{105+4*p+2*h}], v[{104+4*p+2*h}:{105+4*p+2*h}], v[18:19]")
    for p in range(5):
        k(f"v_cvt_pk_bf16_f32 v{24+2*p}, v{104+4*p}, v{105+4*p}\n v_cvt_pk_bf16_f32 v{25+2*p}, v{106+4*p}, v{107+4*p}")
    k(f"s_lshl_b32 s64, s6, 1\n s_lshr_b32 s65, s{S_WV}, 1\n s_add_u32 s64, s64, s65\n s_lshl_b32 s64, s64, 5\n s_and_b32 s65, s{S_WV}, 1\n s_add_u32 s64, s64, s65")
    k("s_mul_i32 s64, s64, 1280\n s_mul_i32 s65, s7, 160\n s_add_u32 s64, s64, s65")
    k(f"v_mul_u32_u24 v18, 2560, v{V_R}\n v_lshl_add_u32 v19, v{V_G}, 4, v18\n v_lshl_add_u32 v20, v{V_G}, 3, v18")
    k(f"buffer_store_dwordx4 v[24:27], v19, s[{SRD_OUT}:{SRD_OUT+3}], s64 offen")
    k(f"buffer_store_dwordx4 v[28:31], v19, s[{SRD_OUT}:{SRD_OUT+3}], s64 offen offset:64")
    k(f"buffer_store_dwordx2 v[32:33], v20, s[{SRD_OUT}:{SRD_OUT+3}], s64 offen offset:128")
```

```python
from mk_common import *

def gen_prep(k):
    k.c("======== role B: stats / colsum / w2 relayout ========")
    k("s_cmp_ge_u32 s4, 64")
    k("s_cbranch_scc1 prep_nostats")
    k(f"s_cmp_lg_u32 s4, 0\n s_cbranch_scc1 prep_nz\n s_cmp_lg_u32 s{S_WV}, 3\n s_cbranch_scc1 prep_nz")
    k(f"v_mov_b32 v64, 0\n v_mov_b32 v65, 0\n v_mov_b32 v66, 0\n v_mov_b32 v67, 0\n v_lshlrev_b32 v68, 4, v{V_LANE}\n s_mov_b32 s64, {WS_SYNC}")
    for i in range(12):
        k(f"buffer_store_dwordx4 v[64:67], v68, s[{SRD_WS}:{SRD_WS+3}], s64 offen sc1")
        if i < 11: k("s_add_u32 s64, s64, 1024")
    k("s_waitcnt vmcnt(0)")
    k.label("prep_nz")
    k(f"v_mul_u32_u24 v6, 1280, v{V_G}")
    k(f"v_lshl_add_u32 v6, v{V_R}, 4, v6")
    k(f"s_lshl_b32 s64, s4, 5\n s_lshl_b32 s65, s{S_WV}, 3\n s_add_u32 s64, s64, s65")
    k("s_mul_i32 s65, s64, 1280")
    k("s_add_u32 s66, s65, 5120")
    for rd in range(2):
        for j in range(5):
            b = 16 + 20*rd + 4*j
            k(f"buffer_load_dwordx4 v[{b}:{b+3}], v6, s[{SRD_X}:{SRD_X+3}], s{65+rd} offen offset:{256*j}")
    k("s_mov_b32 s67, 0x3f803f80")
    k(f"v_lshlrev_b32 v7, 3, v{V_G}")
    k(f"s_lshl_b32 s68, s64, 3\n s_add_u32 s68, s68, {WS_STATS1}")
    k(f"v_mul_u32_u24 v8, 1296, v{V_G}\n v_lshl_add_u32 v8, v{V_R}, 4, v8\n s_mul_i32 s69, s{S_WV}, {8*1296}\n v_add_u32 v8, s69, v8")
    for rd in range(2):
        k(f"s_waitcnt vmcnt({5 if rd == 0 else 1})")
        if rd == 0: stamp(k)
        for j in range(5):
            b = 16 + 20*rd + 4*j
            k(f"ds_write_b128 v8, v[{b}:{b+3}] offset:{rd*4*1296 + j*256}")
        k("v_mov_b32 v60, 0\n v_mov_b32 v61, 0")
        for i in range(20):
            r = 16 + 20*rd + i
            k(f"v_dot2_f32_bf16 v60, v{r}, s67, v60")
            k(f"v_dot2_f32_bf16 v61, v{r}, v{r}, v61")
        k("s_nop 2")
        for (a, b, ctl) in ((60, 62, "quad_perm:[1,0,3,2]"), (62, 60, "quad_perm:[2,3,0,1]"), (60, 62, "row_half_mirror"), (62, 60, "row_mirror")):
            k(f"v_add_f32_dpp v{b}, v{a}, v{a} {ctl} row_mask:0xf bank_mask:0xf")
            k(f"v_add_f32_dpp v{b+1}, v{a+1}, v{a+1} {ctl} row_mask:0xf bank_mask:0xf")
            k("s_nop 0")
        k("v_mul_f32 v60, 0x3acccccd, v60")
        k("v_mul_f32 v61, 0x3acccccd, v61")
        k("v_fma_f32 v61, -v60, v60, v61")
        ln_finish(k, 60, 61, 63)
        k("v_mov_b32 v62, v60")
        k(f"v_cmp_eq_u32 vcc, 0, v{V_R}")
        k("s_and_saveexec_b64 s[70:71], vcc")
        k(f"buffer_store_dwordx2 v[62:63], v7, s[{SRD_WS}:{SRD_WS+3}], s68 offen offset:{32*rd} sc1")
        k("s_mov_b64 exec, s[70:71]")
    k("s_waitcnt lgkmcnt(0)\n s_barrier")
    k(f"v_mul_u32_u24 v8, 2592, v{V_R}\n v_lshl_add_u32 v8, v{V_G}, 3, v8\n s_mul_i32 s69, s{S_WV}, 320\n v_add_u32 v8, s69, v8")
    for q in range(10):
        k(f"ds_read2_b64 v[{16+4*q}:{19+4*q}], v8 offset0:{4*q} offset1:{162+4*q}")
    k(f"v_lshlrev_b32 v9, 14, v{V_G}\n v_lshl_add_u32 v9, v{V_R}, 4, v9")
    k(f"s_mul_i32 s69, s{S_WV}, {40*16384}\n s_lshl_b32 s70, s4, 8\n s_add_u32 s69, s69, s70\n s_add_u32 s69, s69, {WS_XB}")
    for q in range(10):
        k(f"s_waitcnt lgkmcnt({9-q})")
        k(f"buffer_store_dwordx4 v[{16+4*q}:{19+4*q}], v9, s[{SRD_WS}:{SRD_WS+3}], s69 offen sc1")
        if q < 9: k(f"s_add_u32 s69, s69, {4*16384}")
    k("s_mov_b32 s64, 0")
    arrive_go(k, SRD_DBG, 64, 64, 128)
    stamp(k)
    k(f"s_lshl_b32 s5, s4, 2\n s_add_u32 s5, s5, s{S_WV}\n s_add_u32 s5, s5, 72")
    k("s_branch prep_w2")
    k.label("prep_nostats")
    k("s_cmp_ge_u32 s4, 78")
    k("s_cbranch_scc1 prep_rank_ns")
    k("s_sub_u32 s64, s4, 64")
    k(f"s_mul_i32 s65, s{S_WV}, {160*3456}")
    k("s_lshl_b32 s66, s64, 8\n s_add_u32 s65, s65, s66")
    k(f"v_lshlrev_b32 v6, 2, v{V_LANE}")
    k("s_mov_b32 s67, 0x00003f80\n s_mov_b32 s68, 0x3f800000")
    k("v_mov_b32 v60, 0\n v_mov_b32 v61, 0")
    k("s_mov_b32 s69, 0")
    k.label("prep_cs_loop")
    for i in range(40):
        k(f"buffer_load_dword v{16+i}, v6, s[{SRD_W1}:{SRD_W1+3}], s65 offen")
        k("s_add_u32 s65, s65, 3456")
    for i in range(40):
        if i % 10 == 0: k(f"s_waitcnt vmcnt({30 - i})")
        k(f"v_dot2_f32_bf16 v60, v{16+i}, s67, v60")
        k(f"v_dot2_f32_bf16 v61, v{16+i}, s68, v61")
    k("s_add_u32 s69, s69, 1\n s_cmp_lt_u32 s69, 4\n s_cbranch_scc1 prep_cs_loop")
    k("s_nop 2")
    k(f"v_lshlrev_b32 v7, 3, v{V_TID}")
    k("ds_write_b64 v7, v[60:61]")
    k("s_waitcnt lgkmcnt(0)\n s_barrier")
    k(f"v_lshlrev_b32 v7, 3, v{V_LANE}")
    for q in range(4):
        k(f"ds_read_b64 v[{62+2*q}:{63+2*q}], v7 offset:{512*q}")
    k("s_waitcnt lgkmcnt(0)")
    k("v_add_f32 v62, v62, v64\n v_add_f32 v63, v63, v65\n v_add_f32 v66, v66, v68\n v_add_f32 v67, v67, v69")
    k("v_add_f32 v62, v62, v66\n v_add_f32 v63, v63, v67")
    k(f"s_lshl_b32 s65, s64, 9\n s_add_u32 s65, s65, {WS_CS1}")
    k(f"s_cmp_lg_u32 s{S_WV}, 0\n s_cbranch_scc1 prep_done")
    k(f"buffer_store_dwordx2 v[62:63], v7, s[{SRD_WS}:{SRD_WS+3}], s65 offen sc1")
    k("s_branch prep_done")
    k.label("prep_rank_ns")
    k(f"s_sub_u32 s5, s4, 78\n s_lshl_b32 s5, s5, 2\n s_add_u32 s5, s5, s{S_WV}")
    k.label("prep_w2")
    srd(k, SRD_T, P_W2, P_W2+1, F*D*2)
    k(f"v_lshrrev_b32 v12, 2, v{V_R}\n v_lshlrev_b32 v12, 3, v12\n v_and_b32 v13, 3, v{V_R}\n v_add_u32 v12, v12, v13\n v_lshlrev_b32 v12, 1, v12")
    k(f"v_lshlrev_b32 v13, 1, v{V_R}\n v_mul_u32_u24 v14, 5120, v{V_G}\n v_add_u32 v12, v12, v14\n v_add_u32 v13, v13, v14")
    k(f"v_lshlrev_b32 v15, 4, v{V_LANE}")
    k.label("prep_w2_task")
    k("s_mul_i32 s64, s5, 5")
    for j in range(5):
        k(f"s_add_u32 s65, s64, {j}")
        k("s_mul_i32 s66, s65, 1214\n s_lshr_b32 s66, s66, 16")
        k("s_mul_i32 s67, s66, 54\n s_sub_u32 s67, s65, s67")
        k("s_mul_i32 s68, s66, 52429\n s_lshr_b32 s68, s68, 18")
        k("s_mul_i32 s69, s68, 5\n s_sub_u32 s69, s66, s69")
        k("s_lshr_b32 s70, s69, 1\n s_lshl_b32 s70, s70, 5\n s_and_b32 s71, s69, 1\n s_lshl_b32 s71, s71, 2\n s_add_u32 s70, s70, s71")
        k("s_mul_i32 s71, s68, 80\n s_add_u32 s70, s70, s71\n s_lshl_b32 s70, s70, 1")
        k(f"s_mul_i32 s71, s67, {32*1280}\n s_add_u32 s70, s70, s71")
        k("s_cmp_eq_u32 s69, 4\n s_cselect_b64 s[72:73], -1, 0")
        k(f"v_cndmask_b32 v{16+2*j}, v12, v13, s[72:73]")
        k(f"v_add_u32 v{17+2*j}, 20480, v{16+2*j}")
        for e in range(8):
            k(f"buffer_load_ushort v{64 + 8*j + e}, v{16+2*j + e//4}, s[{SRD_T}:{SRD_T+3}], s70 offen offset:{(e&3)*1280}")
    k(f"s_lshl_b32 s65, s64, 10\n s_add_u32 s65, s65, {WS_WF2}")
    for j in range(5):
        k(f"s_waitcnt vmcnt({32 - 8*j + j})")
        for i in range(4):
            k(f"v_lshl_or_b32 v{28+4*j+i}, v{65+8*j+2*i}, 16, v{64+8*j+2*i}")
        k(f"buffer_store_dwordx4 v[{28+4*j}:{31+4*j}], v15, s[{SRD_WS}:{SRD_WS+3}], s65 offen offset:{0} sc1")
        if j < 4: k("s_add_u32 s65, s65, 1024")
    k("s_cmp_ge_u32 s5, 104\n s_cbranch_scc1 prep_done")
    k("s_add_u32 s5, s5, 328")
    k("s_waitcnt vmcnt(0)")
    k("s_branch prep_w2_task")
    k.label("prep_done")
    stamp(k)
    k("s_mov_b32 s64, 64")
    arrive_go(k, SRD_DBG, 64, 96, 132)
    stamp(k)
    k("s_lshr_b32 s64, s4, 3")
    k(f"s_lshl_b32 s65, s64, 2\n s_add_u32 s65, s65, s{S_WV}")
    k(f"s_mul_i32 s66, s65, {14*3456}\n s_and_b32 s67, s4, 1\n s_mul_i32 s67, s67, 1792\n s_add_u32 s66, s66, s67")
    k(f"v_lshlrev_b32 v6, 4, v{V_LANE}")
    for i in range(14):
        k(f"buffer_load_dwordx4 v[{16+8*i}:{19+8*i}], v6, s[{SRD_W1}:{SRD_W1+3}], s66 offen")
        k(f"buffer_load_dwordx4 v[{20+8*i}:{23+8*i}], v6, s[{SRD_W1}:{SRD_W1+3}], s66 offen offset:1024")
        if i < 13: k("s_add_u32 s66, s66, 3456")
    stamp(k)
    k("s_mov_b32 s64, 132")
    poll_val(k, SRD_DBG, 64, 1, sleep=8)
    k("s_mov_b32 s64, 128")
    poll_val(k, SRD_DBG, 64, 1, sleep=8)
    stamp(k)
    k(f"s_mul_i32 s66, s65, 23040\n s_and_b32 s67, s4, 1\n s_mul_i32 s67, s67, {20*54*1024}\n s_add_u32 s66, s66, s67\n s_add_u32 s66, s66, {WS_WF2}")
    for i in range(23):
        k(f"buffer_load_dwordx4 v[{16+4*i}:{19+4*i}], v6, s[{SRD_WS}:{SRD_WS+3}], s66 offen sc1")
        if i < 22: k("s_add_u32 s66, s66, 1024")
    stamp(k)
```

```python
import sys
from mk_common import *
from mk_prep import gen_prep
from mk_conv import gen_conv, gen_conv2
from mk_gemm import gen_gemm1, gen_gemm2, LDS_TOTAL
NAME = "sequential_preLN__ssm_conv_s4__dense_activation_mish__prompt"
REF = open("cdna_kernels/" + NAME + ".s.ref").read()
HEADER = REF.split("; Override launch")[0]
def build():
    k = K(NAME + "_kernel")
    k(f"s_cmp_ge_u32 s{S_WG}, 256")
    k("s_cbranch_scc1 mk_end")
    stamp_init(k)
    stamp(k, '' if __import__('lib').TAGS is None else list(__import__('lib').TAGS)[0])
    k("s_load_dwordx16 s[32:47], s[0:1], 0")
    k("s_load_dwordx16 s[48:63], s[0:1], 64")
    k(f"v_and_b32 v{V_LANE}, 63, v0\n v_lshrrev_b32 v4, 6, v0\n v_and_b32 v{V_R}, 15, v{V_LANE}\n v_lshrrev_b32 v{V_G}, 4, v{V_LANE}")
    k(f"v_readfirstlane_b32 s{S_WV}, v4")
    k("s_waitcnt lgkmcnt(0)")
    srd(k, SRD_WS, P_WS, P_WS+1, WS_END)
    srd(k, SRD_DBG, P_DBG, P_DBG+1, 256)
    srd(k, SRD_X, P_X, P_X+1, L*D*2)
    srd(k, SRD_OUT, P_OUT, P_OUT+1, L*D*2)
    srd(k, SRD_W1, P_W1, P_W1+1, D*F*2)
    gemm1_mapping(k)
    k(f"s_cmp_ge_u32 s{S_WG}, 160")
    k("s_cbranch_scc1 mk_roleB")
    k(f"s_and_b32 s4, s{S_WG}, 7\n s_mul_i32 s4, s4, 20\n s_lshr_b32 s64, s{S_WG}, 3\n s_add_u32 s4, s4, s64")
    X, ST, P = gen_conv(k)
    gen_conv2(k, X, ST, P)
    k("s_branch mk_gemm")
    k.label("mk_roleB")
    k(f"s_sub_u32 s4, s{S_WG}, 160")
    import lib
    if lib.TAGS is None: k.nstamp = 1
    gen_prep(k)
    if lib.TAGS is None: k.nstamp = 8
    k("s_mov_b32 s79, -1")
    k.label("mk_gemm")
    gen_gemm1(k)
    gen_gemm2(k)
    if lib.HPROF_WG is not None and lib.PROFILE: stamp_flush_dbg(k, lib.HPROF_WG)
    else: stamp_flush(k, waves=(0, 3))
    k.label("mk_end")
    return k
def main(out):
    k = build()
    s = HEADER
    s += "; Override launch geometry by editing the next line (default: block=256,\n"
    s += f"; @launch grid=(256,1,1) block=(256,1,1) lds={LDS_TOTAL}\n"
    s += '.amdgcn_target "amdgcn-amd-amdhsa--gfx950"\n.text\n'
    n = NAME + "_kernel"
    s += f".globl {n}\n.p2align 8\n.type {n},@function\n{n}:\n" + k.text() + "\n  s_endpgm\n" + "\n".join(k.tail) + "\n"
    s += '.section .rodata,"a"\n' + kdesc(n, 512, 102, 256)
    open(out, "w").write(s)
if __name__ == "__main__":
    if "--prof" in sys.argv:
        import lib; lib.PROFILE = True; sys.argv.remove("--prof")
        for a in list(sys.argv):
            if a.startswith("--hprof="): lib.HPROF_WG = int(a[8:]); sys.argv.remove(a); continue
            if a.startswith("--tags="): lib.TAGS = set(a[7:].split(",")); sys.argv.remove(a)
    main(sys.argv[1] if len(sys.argv) > 1 else "mk.s")
```

```python
class K:
    def __init__(self, name):
        self.name = name
        self.L = []
        self.nlab = 0
        self.tail = []
    def __call__(self, s):
        for line in s.split("\n"):
            line = line.strip()
            if line: self.L.append("  " + line)
    def label(self, l):
        self.L.append(l + ":")
    def newlab(self, base):
        self.nlab += 1
        return f"{self.name}_{base}_{self.nlab}"
    def c(self, s):
        self.L.append("  ; " + s)
    def text(self):
        return "\n".join(self.L)

def vr(a, n=1):
    return f"v{a}" if n == 1 else f"v[{a}:{a+n-1}]"
def sr(a, n=1):
    return f"s{a}" if n == 1 else f"s[{a}:{a+n-1}]"
def ar(a, n=1):
    return f"a{a}" if n == 1 else f"a[{a}:{a+n-1}]"

def srd(k, s, base_lo, base_hi, nbytes, off=0):
    if off:
        k(f"s_add_u32 s{s}, s{base_lo}, {off}")
        k(f"s_addc_u32 s{s+1}, s{base_hi}, 0")
    else:
        k(f"s_mov_b32 s{s}, s{base_lo}")
        k(f"s_mov_b32 s{s+1}, s{base_hi}")
    k(f"s_mov_b32 s{s+2}, {nbytes}")
    k(f"s_mov_b32 s{s+3}, 0x00020000")

def kdesc(name, vgpr, sgpr=96, accum=None):
    if accum is None: accum = (vgpr + 3) // 4 * 4
    return f""".p2align 6
.amdhsa_kernel {name}
  .amdhsa_next_free_vgpr {vgpr}
  .amdhsa_next_free_sgpr {sgpr}
  .amdhsa_accum_offset {accum}
  .amdhsa_group_segment_fixed_size 0
  .amdhsa_kernarg_size 128
  .amdhsa_user_sgpr_count 2
  .amdhsa_user_sgpr_kernarg_segment_ptr 1
  .amdhsa_system_sgpr_workgroup_id_x 1
.end_amdhsa_kernel
"""

def assemble_file(header, kernels):
    s = header
    for kk in kernels:
        s += f"; @launch kernel={kk['name']} grid=({kk['grid']},1,1) block=({kk['block']},1,1) lds={kk['lds']}\n"
    s += '.amdgcn_target "amdgcn-amd-amdhsa--gfx950"\n.text\n'
    seen = set()
    for kk in kernels:
        if kk['name'] in seen: continue
        seen.add(kk['name'])
        s += f".globl {kk['name']}\n.p2align 8\n.type {kk['name']},@function\n{kk['name']}:\n"
        s += kk['k'].text() + "\n  s_endpgm\n"
    s += '.section .rodata,"a"\n'
    seen = set()
    for kk in kernels:
        if kk['name'] in seen: continue
        seen.add(kk['name'])
        s += kdesc(kk['name'], kk['vgpr'], kk.get('sgpr', 102), kk.get('accum'))
    return s

def wave_sum_to_sgpr(k, v, t, sdst):
    k(f"s_nop 1")
    k(f"v_add_f32_dpp {vr(t)}, {vr(v)}, {vr(v)} quad_perm:[1,0,3,2] row_mask:0xf bank_mask:0xf")
    k(f"s_nop 1")
    k(f"v_add_f32_dpp {vr(v)}, {vr(t)}, {vr(t)} quad_perm:[2,3,0,1] row_mask:0xf bank_mask:0xf")
    k(f"s_nop 1")
    k(f"v_add_f32_dpp {vr(t)}, {vr(v)}, {vr(v)} row_half_mirror row_mask:0xf bank_mask:0xf")
    k(f"s_nop 1")
    k(f"v_add_f32_dpp {vr(v)}, {vr(t)}, {vr(t)} row_mirror row_mask:0xf bank_mask:0xf")
    k(f"s_nop 1")
    k(f"v_add_f32_dpp {vr(v)}, {vr(v)}, {vr(v)} row_bcast:15 row_mask:0xa bank_mask:0xf")
    k(f"s_nop 1")
    k(f"v_add_f32_dpp {vr(v)}, {vr(v)}, {vr(v)} row_bcast:31 row_mask:0xc bank_mask:0xf")
    k(f"s_nop 1")
    k(f"v_readlane_b32 s{sdst}, {vr(v)}, 63")

PROFILE = False
class Prof:
    n = 0
TAGS = None
def stamp(k, tag=""):
    import lib
    if not lib.PROFILE: return
    if lib.TAGS is not None and tag not in lib.TAGS: return
    if lib.TAGS is None and tag: return
    i = k.__dict__.setdefault("nstamp", 0)
    k(f"s_memtime s[98:99]")
    k("s_waitcnt lgkmcnt(0)")
    k(f"s_mov_b32 s{80+i}, s98")
    k.nstamp = i + 1
def stamp_init(k):
    import lib
    if not lib.PROFILE: return
    for i in range(80, 97): k(f"s_mov_b32 s{i}, 0x5a5a5a5a")
def stamp_flush(k, waves=(0, 3)):
    import lib
    if not lib.PROFILE: return
    n = k.__dict__.get("nstamp", 0)
    lab = k.newlab("pf")
    k("s_waitcnt vmcnt(0) lgkmcnt(0)")
    k(f"s_memtime s[98:99]")
    k("s_waitcnt lgkmcnt(0)")
    k(f"s_mov_b32 s{80+n}, s98")
    n += 1
    k("s_load_dwordx2 s[98:99], s[0:1], 120")
    k("s_waitcnt lgkmcnt(0)")
    k(f"s_add_u32 s98, s98, {200*1024*1024}\n s_addc_u32 s99, s99, 0")
    k(f"v_cmp_eq_u32 vcc, {64*waves[0]}, v0")
    k(f"v_mov_b32 v1, {64*waves[1]}")
    k("v_cmp_eq_u32 s[76:77], v1, v0")
    k("s_nop 1")
    k("v_cndmask_b32 v1, 0, 1, s[76:77]")
    k("v_lshlrev_b32 v1, 7, v1")
    k("s_lshl_b32 s78, s2, 8")
    k("v_add_u32 v1, s78, v1")
    k("s_or_b64 vcc, vcc, s[76:77]")
    k("s_and_saveexec_b64 s[76:77], vcc")
    k(f"s_cbranch_execz {lab}")
    for i in range(n):
        k(f"v_mov_b32 v2, s{80+i}")
        k(f"global_store_dword v1, v2, s[98:99] offset:{4*i}")
    k("s_waitcnt vmcnt(0)")
    k.label(lab)

HPROF_WG = None
def stamp_flush_dbg(k, wg):
    n = k.__dict__.get("nstamp", 0)
    lab = k.newlab("pf")
    k("s_waitcnt vmcnt(0) lgkmcnt(0)")
    k(f"s_memtime s[98:99]")
    k("s_waitcnt lgkmcnt(0)")
    k(f"s_mov_b32 s{80+n}, s98")
    n += 1
    k(f"s_cmp_lg_u32 s2, {wg}\n s_cbranch_scc1 {lab}")
    k("s_load_dwordx2 s[98:99], s[0:1], 112")
    k("s_waitcnt lgkmcnt(0)")
    k("v_cmp_eq_u32 vcc, 0, v0")
    k("s_and_saveexec_b64 s[76:77], vcc")
    k(f"s_cbranch_execz {lab}")
    k("v_mov_b32 v1, 0")
    for i in range(1, min(n, 15)):
        k(f"s_sub_u32 s78, s{80+i}, s80")
        k(f"v_mov_b32 v2, s78")
        k(f"global_store_dword v1, v2, s[98:99] offset:{4*(i+1)}")
    k("s_waitcnt vmcnt(0)")
    k.label(lab)

CODEPF = False
BFIRST = False
TLBPF = False
```

```python
from lib import *
from layout import *
import struct
LOG2E = 0x3fb8aa3b
INV2PI = 0x3e22f983
def f2h(x): return "0x%08x" % struct.unpack("<I", struct.pack("<f", float(x)))[0]

S_WG = 2
S_WV = 3
SRD_WS = 8
SRD_DBG = 12
SRD_X = 16
SRD_OUT = 20
SRD_W1 = 24
SRD_T = 28
P_X=32; P_ARE=34; P_AIM=36; P_BRE=38; P_BIM=40; P_CRE=42; P_CIM=44; P_LDT=46
P_DSK=48; P_BX=50; P_W1=52; P_B1=54; P_W2=56; P_OUT=58; P_DBG=60; P_WS=62
V_TID=0; V_LANE=1; V_R=2; V_G=3

SPIN_MAX = 400000

def arrive_simple(k, srd_, s_off):
    lab = k.newlab("arr")
    k("s_waitcnt vmcnt(0)")
    k("s_barrier")
    k(f"s_cmp_lg_u32 s{S_WV}, 0")
    k(f"s_cbranch_scc1 {lab}")
    k("v_mov_b32 v4, 1\n v_mov_b32 v7, 0\n s_mov_b64 exec, 1")
    k(f"buffer_atomic_add v4, v7, s[{srd_}:{srd_+3}], s{s_off} offen")
    k("s_mov_b64 exec, -1")
    k.label(lab)

def arrive_go(k, srd_, s_off, count, go_off_imm, join=False, s_go=None):
    lab = k.newlab("arr")
    k("s_waitcnt vmcnt(0)")
    k("s_barrier")
    k(f"s_cmp_lg_u32 s{S_WV}, 0")
    k(f"s_cbranch_scc1 {lab}")
    k("v_mov_b32 v4, 1\n v_mov_b32 v7, 0\n s_mov_b64 exec, 1")
    k(f"buffer_atomic_add v4, v7, s[{srd_}:{srd_+3}], s{s_off} offen sc0")
    k("s_waitcnt vmcnt(0)")
    k("v_readfirstlane_b32 s67, v4")
    k(f"s_cmp_lg_u32 s67, {count-1}")
    k(f"s_cbranch_scc1 {lab}_x")
    if s_go is None:
        k(f"v_mov_b32 v4, 1\n s_mov_b32 s66, {go_off_imm}")
        k(f"buffer_store_dword v4, v7, s[{srd_}:{srd_+3}], s66 offen sc1")
    else:
        k(f"v_mov_b32 v4, 1\n s_nop 3")
        k(f"buffer_store_dword v4, v7, s[{srd_}:{srd_+3}], s{s_go} offen sc1")
    k.label(lab + "_x")
    k("s_mov_b64 exec, -1")
    k.label(lab)
    if join: k("s_barrier")

def arrive_s2(k, s_shard):
    lab = k.newlab("arr2")
    W = f"s[{SRD_WS}:{SRD_WS+3}]"
    stamp(k, "s2")
    k("s_waitcnt vmcnt(0)")
    stamp(k, "s2")
    k("s_barrier")
    stamp(k, "s2")
    k(f"s_cmp_lg_u32 s{S_WV}, 0\n s_cbranch_scc1 {lab}\n s_cmp_eq_u32 s{s_shard}, -1\n s_cbranch_scc1 {lab}")
    k(f"s_lshl_b32 s66, s{s_shard}, 7\n s_add_u32 s66, s66, {WS_SYNC}")
    k("v_mov_b32 v4, 1\n v_mov_b32 v7, 0\n s_mov_b64 exec, 1")
    k(f"buffer_atomic_add v4, v7, {W}, s66 offen sc0\n s_waitcnt vmcnt(0)\n v_readfirstlane_b32 s67, v4")
    k(f"s_cmp_lg_u32 s67, 9\n s_cbranch_scc1 {lab}_x")
    k(f"s_mov_b32 s66, {WS_SYNC + 16*128}\n v_mov_b32 v4, 1")
    k(f"buffer_atomic_add v4, v7, {W}, s66 offen sc0\n s_waitcnt vmcnt(0)\n v_readfirstlane_b32 s67, v4")
    k(f"s_cmp_lg_u32 s67, 15\n s_cbranch_scc1 {lab}_x")
    k(f"s_mov_b64 exec, 0xffff\n v_lshlrev_b32 v7, 7, v{V_LANE}\n v_mov_b32 v4, 1\n s_mov_b32 s66, {WS_SYNC + 17*128}")
    k(f"buffer_store_dword v4, v7, {W}, s66 offen sc1")
    k.label(lab + "_x")
    k("s_mov_b64 exec, -1")
    k.label(lab)
    k("s_barrier")

def poll_val(k, srd_, s_off, target, sleep=2, pre_wait=False, barrier=True):
    lab = k.newlab("poll"); done = k.newlab("polled"); skip = k.newlab("pskip")
    k(f"s_cmp_lg_u32 s{S_WV}, 0")
    k(f"s_cbranch_scc1 {skip}")
    k("v_mov_b32 v7, 0\n s_mov_b64 exec, 1\n s_mov_b32 s66, 0")
    k.label(lab)
    k(f"buffer_load_dword v4, v7, s[{srd_}:{srd_+3}], s{s_off} offen sc1")
    k("s_add_u32 s66, s66, 1")
    k("s_waitcnt vmcnt(0)")
    k(f"v_cmp_gt_u32 vcc, {target}, v4")
    k(f"s_cmp_gt_u32 s66, {SPIN_MAX}")
    k(f"s_cbranch_scc1 {done}")
    k(f"s_cbranch_vccz {done}")
    k(f"s_sleep {sleep}")
    k(f"s_branch {lab}")
    k.label(done)
    k("s_mov_b64 exec, -1")
    k.label(skip)
    if pre_wait: k("s_waitcnt vmcnt(0)")
    if barrier: k("s_barrier")

def bf16_round(k, v):
    k(f"v_cvt_pk_bf16_f32 v{v}, v{v}, v{v}")
    k(f"v_lshlrev_b32 v{v}, 16, v{v}")

def ln_finish(k, v_mean, v_var, v_r):
    k(f"v_max_f32 v{v_var}, 0, v{v_var}")
    bf16_round(k, v_var)
    k(f"v_add_f32 v{v_var}, 0x3727c5ac, v{v_var}")
    bf16_round(k, v_var)
    k(f"v_sqrt_f32 v{v_var}, v{v_var}")
    k("s_nop 0")
    bf16_round(k, v_var)
    k(f"v_rcp_f32 v{v_r}, v{v_var}")
    bf16_round(k, v_mean)

S_MB = 50; S_FT0 = 51; V_DMA = 100
def gemm1_mapping(k):
    b = S_WG
    k(f"s_and_b32 s{S_MB}, s{b}, 7\n s_lshr_b32 s{S_MB}, s{S_MB}, 1\n s_lshl_b32 s{S_MB}, s{S_MB}, 2\n s_lshr_b32 s64, s{b}, 3\n s_and_b32 s64, s64, 3\n s_add_u32 s{S_MB}, s{S_MB}, s64")
    k(f"s_and_b32 s{S_FT0}, s{b}, 1\n s_lshl_b32 s{S_FT0}, s{S_FT0}, 3\n s_lshr_b32 s64, s{b}, 5\n s_add_u32 s{S_FT0}, s{S_FT0}, s64\n s_mul_i32 s{S_FT0}, s{S_FT0}, 7\n s_min_u32 s{S_FT0}, s{S_FT0}, 101")
def dma_setup(k, t=8):
    a, b, c = t, t+1, t+2
    for u in range(7):
        k(f"v_add_u32 v{a}, {64*u}, v{V_LANE}\n v_mul_u32_u24 v{b}, 4682, v{a}\n v_lshrrev_b32 v{b}, 16, v{b}")
        k(f"v_mul_u32_u24 v{c}, 14, v{b}\n v_sub_u32 v{a}, v{a}, v{c}")
        k(f"v_mul_u32_u24 v{b}, 3456, v{b}\n v_lshl_add_u32 v{V_DMA+u}, v{a}, 4, v{b}")
def dma_kstep_setup(k, s_step, s_src, s_lds):
    k(f"s_mul_i32 s{s_src}, s{s_step}, 110592\n s_lshl_b32 s{s_lds}, s{S_FT0}, 5\n s_add_u32 s{s_src}, s{s_src}, s{s_lds}\n s_mul_i32 s{s_lds}, s{s_step}, 7168")
def dma_op(u, s_src, s_lds):
    return f"s_add_u32 m0, s{s_lds}, {u*1024}\n s_nop 0\n buffer_load_dwordx4 v{V_DMA+u}, s[{SRD_W1}:{SRD_W1+3}], s{s_src} offen lds"
def dma_listA_step(k, L, s_step):
    if L < 2: k(f"s_add_u32 s{s_step}, s{S_WV}, {4*L}")
    else: k(f"s_cmp_lt_u32 s{S_WV}, 2\n s_cselect_b32 s{s_step}, 8, 16\n s_add_u32 s{s_step}, s{s_step}, s{S_WV}")

CB_OFF = 143360
def cb_issue(k, vd):
    srd(k, SRD_T, P_B1, P_B1+1, F*2)
    k(f"v_lshlrev_b32 v{vd+9}, 3, v{V_LANE}\n v_lshlrev_b32 v{vd+10}, 2, v{V_LANE}")
    k(f"s_lshl_b32 s66, s{S_FT0}, 6\n s_add_u32 s66, s66, {WS_CS1}\n s_lshl_b32 s67, s{S_FT0}, 5")
    for q in range(4):
        k(f"buffer_load_dwordx2 v[{vd+2*q}:{vd+2*q+1}], v{vd+9}, s[{SRD_WS}:{SRD_WS+3}], s66 offen sc1")
        if q < 3: k("s_add_u32 s66, s66, 7168")
    k(f"buffer_load_dword v{vd+8}, v{vd+10}, s[{SRD_T}:{SRD_T+3}], s67 offen")
def cb_write(k, vd):
    for o in range(2):
        k(f"v_add_f32 v{vd+o}, v{vd+o}, v{vd+2+o}\n v_add_f32 v{vd+4+o}, v{vd+4+o}, v{vd+6+o}\n v_add_f32 v{vd+o}, v{vd+o}, v{vd+4+o}")
    k(f"v_and_b32 v{vd+3}, 0xffff0000, v{vd+8}\n v_lshlrev_b32 v{vd+2}, 16, v{vd+8}\n v_add_u32 v{vd+9}, {CB_OFF}, v{vd+9}")
    k("s_mov_b32 exec_lo, -1\n s_mov_b32 exec_hi, 0x00ffffff")
    k(f"ds_write_b64 v{vd+9}, v[{vd}:{vd+1}]\n ds_write_b64 v{vd+9}, v[{vd+2}:{vd+3}] offset:448")
    k("s_mov_b64 exec, -1")
def spin_flag(k, srd_, off_imm, vt, sleep=2):
    lab = k.newlab("spin"); done = k.newlab("spun")
    k(f"v_mov_b32 v{vt+1}, {off_imm}\n s_mov_b32 s66, 0")
    k.label(lab)
    k(f"buffer_load_dword v{vt}, v{vt+1}, s[{srd_}:{srd_+3}], 0 offen sc1\n s_add_u32 s66, s66, 1\n s_waitcnt vmcnt(0)")
    k(f"v_cmp_eq_u32 vcc, 0, v{vt}\n s_cmp_gt_u32 s66, {SPIN_MAX}\n s_cbranch_scc1 {done}\n s_cbranch_vccz {done}\n s_sleep {sleep}\n s_branch {lab}")
    k.label(done)

def poll_flags(k, srd_, s_off, n, sleep=1):
    lab = k.newlab("pf"); done = k.newlab("pfd"); skip = k.newlab("pfs")
    k(f"s_cmp_lg_u32 s{S_WV}, 0\n s_cbranch_scc1 {skip}")
    k(f"v_lshlrev_b32 v7, 2, v{V_LANE}\n s_mov_b64 exec, {(1<<n)-1}\n s_mov_b32 s66, 0")
    k.label(lab)
    k(f"buffer_load_dword v4, v7, s[{srd_}:{srd_+3}], s{s_off} offen sc1\n s_add_u32 s66, s66, 1\n s_waitcnt vmcnt(0)")
    k(f"v_cmp_eq_u32 vcc, 0, v4\n s_cmp_gt_u32 s66, {SPIN_MAX}\n s_cbranch_scc1 {done}\n s_cbranch_vccz {done}\n s_sleep {sleep}\n s_branch {lab}")
    k.label(done)
    k("s_mov_b64 exec, -1")
    k.label(skip)
    k("s_barrier")

def dma_listB(k, all4=False):
    if all4:
        for L in range(2):
            k(f"s_add_u32 s68, s{S_WV}, {10 + 4*L}")
            dma_kstep_setup(k, 68, 69, 70)
            for u in range(7): k(dma_op(u, 69, 70))
        return
    for L in range(3):
        lab = k.newlab("lbs")
        k(f"s_add_u32 s68, s{S_WV}, {9 + 3*L}")
        if L == 2: k(f"s_cmp_ge_u32 s68, 18\n s_cbranch_scc1 {lab}")
        dma_kstep_setup(k, 68, 69, 70)
        for u in range(7): k(dma_op(u, 69, 70))
        if L == 2: k.label(lab)
```

```python
from mk_common import *

T_WAVE = 16896; T_SLOT = 8448; T_ROW = 528
KC_OFF = 67584; KC_CH = 1536
KEO_OFF = 73728; KEO_CH = 8320; O_REL = 4160
U_OFF = 107008; U_CH = 4608
YT_OFF = 73728; YT_CH = 10240

def pk_cmul_inplace(k, ar, ai, br, bi, t, t2):
    k(f"v_pk_mul_f32 v[{t}:{t+1}], v[{ar}:{ar+1}], v[{br}:{br+1}]")
    k(f"v_pk_mul_f32 v[{t2}:{t2+1}], v[{ar}:{ar+1}], v[{bi}:{bi+1}]")
    k(f"v_pk_fma_f32 v[{ar}:{ar+1}], v[{ai}:{ai+1}], v[{bi}:{bi+1}], v[{t}:{t+1}] neg_lo:[1,0,0] neg_hi:[1,0,0]")
    k(f"v_pk_fma_f32 v[{ai}:{ai+1}], v[{ai}:{ai+1}], v[{br}:{br+1}], v[{t2}:{t2+1}]")
def pk_cmul(k, dr, di, ar, ai, br, bi, t, t2):
    k(f"v_pk_mul_f32 v[{t}:{t+1}], v[{ar}:{ar+1}], v[{br}:{br+1}]")
    k(f"v_pk_mul_f32 v[{t2}:{t2+1}], v[{ar}:{ar+1}], v[{bi}:{bi+1}]")
    k(f"v_pk_fma_f32 v[{dr}:{dr+1}], v[{ai}:{ai+1}], v[{bi}:{bi+1}], v[{t}:{t+1}] neg_lo:[1,0,0] neg_hi:[1,0,0]")
    k(f"v_pk_fma_f32 v[{di}:{di+1}], v[{ai}:{ai+1}], v[{br}:{br+1}], v[{t2}:{t2+1}]")
def pk_csq(k, dr, di, ar, ai, t):
    k(f"v_pk_mul_f32 v[{t}:{t+1}], v[{ai}:{ai+1}], v[{ai}:{ai+1}]")
    k(f"v_pk_add_f32 v[{di}:{di+1}], v[{ar}:{ar+1}], v[{ar}:{ar+1}]")
    k(f"v_pk_fma_f32 v[{dr}:{dr+1}], v[{ar}:{ar+1}], v[{ar}:{ar+1}], v[{t}:{t+1}] neg_lo:[0,0,1] neg_hi:[0,0,1]")
    k(f"v_pk_mul_f32 v[{di}:{di+1}], v[{di}:{di+1}], v[{ai}:{ai+1}]")

def gen_conv(k):
    k.c("======== role A: K-gen + conv ========")
    X = 8
    ST = 24
    P = 40
    k("s_lshl_b32 s5, s4, 3")
    k(f"s_add_u32 s64, s{P_LDT}, s5\n s_addc_u32 s65, s{P_LDT+1}, 0")
    k(f"s_add_u32 s66, s{P_DSK}, s5\n s_addc_u32 s67, s{P_DSK+1}, 0")
    k("s_load_dwordx2 s[68:69], s[64:65], 0")
    k("s_load_dwordx2 s[6:7], s[66:67], 0")
    k(f"s_lshl_b32 s70, s4, 2\n s_add_u32 s70, s70, s{S_WV}\n s_lshl_b32 s70, s70, 8")
    k(f"v_lshlrev_b32 v5, 2, v{V_LANE}\n v_add_u32 v5, s70, v5")
    for i, p in enumerate((P_ARE, P_AIM, P_BRE, P_BIM, P_CRE, P_CIM)):
        k(f"global_load_dword v{56+i}, v5, s[{p}:{p+1}]")
    k("v_mov_b32 v64, 0\n v_mov_b32 v65, 0\n v_mov_b32 v66, 0\n v_mov_b32 v67, 0")
    k(f"v_lshrrev_b32 v68, 5, v{V_TID}\n v_mul_u32_u24 v68, {U_CH}, v68\n v_and_b32 v69, 31, v{V_TID}\n v_lshl_add_u32 v68, v69, 4, v68\n v_add_u32 v68, {U_OFF}, v68")
    k(f"v_subrev_u32 v70, 128, v{V_TID}\n v_lshrrev_b32 v71, 4, v70\n v_mul_u32_u24 v71, {KEO_CH}, v71\n v_bfe_u32 v72, v70, 3, 1\n v_mul_u32_u24 v72, {O_REL}, v72\n v_add_u32 v71, v71, v72")
    k(f"v_and_b32 v72, 7, v70\n v_lshl_add_u32 v71, v72, 2, v71\n v_add_u32 v71, {KEO_OFF + 4096}, v71")
    k(f"s_cmp_ge_u32 s{S_WV}, 2\n s_cbranch_scc1 conv_z1")
    k("ds_write_b128 v68, v[64:67]")
    k.label("conv_z1")
    k(f"s_cmp_lg_u32 s{S_WV}, 2\n s_cbranch_scc1 conv_z2")
    k("ds_write_b32 v71, v64")
    k.label("conv_z2")
    for jq in range(2):
        for j in range(5):
            d = 8 + 5*jq + j
            k(f"v_lshlrev_b32 v22, 2, v{V_TID}")
            k(f"v_sub_u32 v22, {2047 - 1024*jq - j}, v22")
            k("v_cvt_f32_i32 v23, v22")
            k("v_cvt_pk_bf16_f32 v23, v23, v23")
            k("v_and_b32 v23, 0xffff, v23\n v_subrev_u32 v23, 17024, v23")
            k("v_cmp_gt_i32 vcc, 128, v22\n s_nop 1\n v_cndmask_b32 v23, v23, v22, vcc")
            if jq == 1 and j == 4:
                k("v_cmp_gt_i32 vcc, 0, v22\n v_mov_b32 v21, 641\n s_nop 0\n v_cndmask_b32 v23, v23, v21, vcc")
            k(f"v_lshlrev_b32 v{d}, 1, v23\n v_add_u32 v{d}, {KC_OFF}, v{d}")
    k(f"s_mul_i32 s70, s{S_WV}, {KC_CH}\n s_add_u32 s70, s70, {KC_OFF}")
    k(f"v_lshlrev_b32 v18, 5, v{V_R}\n v_lshl_add_u32 v18, v{V_G}, 3, v18\n v_add_u32 v18, s70, v18")
    k(f"v_lshlrev_b32 v19, 4, v{V_R}\n v_lshl_add_u32 v19, v{V_G}, 3, v19\n v_add_u32 v19, 512, v19")
    k(f"v_lshlrev_b32 v20, 3, v{V_R}\n v_lshl_add_u32 v20, v{V_G}, 7, v20\n v_add_u32 v20, 512, v20")
    k(f"v_cmp_gt_u32 vcc, 2, v{V_G}\n s_nop 1\n v_cndmask_b32 v19, v20, v19, vcc\n v_add_u32 v19, s70, v19")
    k(f"v_lshlrev_b32 v20, 2, v{V_R}\n v_lshl_add_u32 v20, v{V_G}, 7, v20\n v_add_u32 v20, 1024, v20\n v_add_u32 v20, s70, v20")
    k(f"s_mul_i32 s70, s{S_WV}, {T_WAVE}")
    k(f"v_lshlrev_b32 v106, 3, v{V_LANE}\n v_add_u32 v106, s70, v106")
    k(f"v_mul_u32_u24 v107, {T_ROW}, v{V_R}\n v_lshl_add_u32 v107, v{V_G}, 4, v107\n v_add_u32 v107, s70, v107")
    k("s_waitcnt lgkmcnt(0)")
    k(f"s_cmp_ge_u32 s{S_WV}, 2\n s_cselect_b32 s70, s69, s68\n s_and_b32 s71, s{S_WV}, 1\n s_lshl_b32 s71, s71, 4\n s_lshr_b32 s70, s70, s71\n s_lshl_b32 s70, s70, 16")
    k(f"v_mov_b32 v64, {LOG2E:#x}\n v_mul_f32 v64, s70, v64\n v_exp_f32 v64, v64\n s_nop 0")
    bf16_round(k, 64)
    k("v_mov_b32 v65, v64")
    k("s_waitcnt vmcnt(0)")
    stamp(k)
    stamp(k, "kg")
    for i in range(6):
        k(f"v_lshlrev_b32 v{66+2*i}, 16, v{56+i}\n v_and_b32 v{67+2*i}, 0xffff0000, v{56+i}")
    k(f"s_mov_b32 s70, {LOG2E:#x}\n s_mov_b32 s72, {INV2PI:#x}")
    k("v_pk_mul_f32 v[66:67], v[66:67], v[64:65]\n v_pk_mul_f32 v[68:69], v[68:69], v[64:65]")
    k("v_pk_mul_f32 v[70:71], v[70:71], v[64:65]\n v_pk_mul_f32 v[72:73], v[72:73], v[64:65]")
    k("v_pk_mul_f32 v[66:67], v[66:67], s[70:71] op_sel_hi:[1,0]")
    k("v_pk_mul_f32 v[68:69], v[68:69], s[72:73] op_sel_hi:[1,0]")
    pk_cmul(k, 78, 80, 74, 76, 70, 72, 56, 58)
    def direct(dr, di, e):
        k(f"s_mov_b32 s74, {f2h(e)}")
        k("v_pk_mul_f32 v[56:57], v[66:67], s[74:75] op_sel_hi:[1,0]")
        k("v_pk_mul_f32 v[58:59], v[68:69], s[74:75] op_sel_hi:[1,0]")
        k("v_exp_f32 v56, v56\n v_exp_f32 v57, v57\n v_fract_f32 v58, v58\n v_fract_f32 v59, v59")
        k(f"v_cos_f32 v{dr}, v58\n v_cos_f32 v{dr+1}, v59\n v_sin_f32 v{di}, v58\n v_sin_f32 v{di+1}, v59\n s_nop 0")
        k(f"v_pk_mul_f32 v[{dr}:{dr+1}], v[{dr}:{dr+1}], v[56:57]\n v_pk_mul_f32 v[{di}:{di+1}], v[{di}:{di+1}], v[56:57]")
    Z1, Z16, Z256, Z2, Z4, Z8 = (82, 84), (86, 88), (90, 92), (94, 96), (98, 100), (102, 104)
    direct(*Z1, 1); direct(*Z16, 16); direct(*Z256, 256)
    pk_csq(k, *Z2, *Z1, 56); pk_csq(k, *Z4, *Z2, 56); pk_csq(k, *Z8, *Z4, 56)
    stamp(k, "kg")
    CR, CI = 78, 80
    pk = [108, 110, 112, 114]; cnt = [0]
    def put(slot, row, re, im, neg=False):
        p = pk[cnt[0] % 4]; cnt[0] += 1
        n = "-" if neg else ""
        k(f"v_cvt_pk_bf16_f32 v{p}, v{re}, {n}v{im}\n v_cvt_pk_bf16_f32 v{p+1}, v{re+1}, {n}v{im+1}")
        k(f"ds_write_b64 v106, v[{p}:{p+1}] offset:{slot*T_SLOT + row*T_ROW}")
    A1, A2 = (116, 118), (120, 122)
    T1, T2, T3, T4 = 56, 58, 60, 62
    def mov2(d, s):
        k(f"v_pk_mov_b32 v[{d[0]}:{d[0]+1}], v[{s[0]}:{s[0]+1}], v[{s[0]}:{s[0]+1}] op_sel:[0,1]")
        k(f"v_pk_mov_b32 v[{d[1]}:{d[1]+1}], v[{s[1]}:{s[1]+1}], v[{s[1]}:{s[1]+1}] op_sel:[0,1]")
    k(f"v_mov_b32 v{A1[0]}, 1.0\n v_mov_b32 v{A1[0]+1}, 1.0\n v_mov_b32 v{A1[1]}, 0\n v_mov_b32 v{A1[1]+1}, 0")
    put(0, 0, *A1, True)
    mov2(A1, Z16); mov2(A2, (CR, CI))
    put(0, 1, *A1, True); put(1, 0, *A2)
    def cvt2(re, im, neg=False):
        p = pk[cnt[0] % 4]; cnt[0] += 1
        n = "-" if neg else ""
        k(f"v_cvt_pk_bf16_f32 v{p}, v{re}, {n}v{im}\n v_cvt_pk_bf16_f32 v{p+1}, v{re+1}, {n}v{im+1}")
        return p
    def wr(p, slot, row): k(f"ds_write_b64 v106, v[{p}:{p+1}] offset:{slot*T_SLOT + row*T_ROW}")
    pend = None
    for i in range(1, 16):
        pk_cmul_inplace(k, *A2, *Z1, T1, T2)
        if pend: wr(*pend); pend = None
        p = cvt2(*A2); pendA2 = (p, 1, i)
        if i >= 2:
            pk_cmul_inplace(k, *A1, *Z16, T3, T4)
            wr(*pendA2)
            p = cvt2(*A1, True); pend = (p, 0, i)
        else:
            wr(*pendA2)
    if pend: wr(*pend)
    stamp(k, "kg")
    OF = 128; AFa = 160; AFb = 192
    for ks in range(8): k(f"ds_read_b128 v[{OF+4*ks}:{OF+4*ks+3}], v107 offset:{64*ks}")
    for ks in range(8): k(f"ds_read_b128 v[{AFa+4*ks}:{AFa+4*ks+3}], v107 offset:{T_SLOT + 64*ks}")
    pk_cmul(k, *A1, CR, CI, *Z256, T1, T2)
    mov2(A2, A1)
    put(0, 0, *A2)
    for r in range(1, 8):
        pk_cmul_inplace(k, *A2, *Z2, T1, T2); put(0, r, *A2)
    for j in (2, 3):
        pk_cmul_inplace(k, *A1, *Z256, T3, T4)
        mov2(A2, A1)
        put(0, 8 + 4*(j-2), *A2)
        for r in range(1, 4):
            pk_cmul_inplace(k, *A2, *Z4, T1, T2); put(0, 8 + 4*(j-2) + r, *A2)
    for j in range(4):
        pk_cmul_inplace(k, *A1, *Z256, T3, T4)
        put(1, 2*j, *A1)
        pk_cmul(k, *A2, *A1, *Z8, T1, T2)
        put(1, 2*j+1, *A2)
    pk_cmul_inplace(k, *A1, *Z256, T3, T4)
    put(1, 8, *A1)
    k("v_mov_b32 v56, 0\n v_mov_b32 v57, 0")
    for r in range(9, 16): k(f"ds_write_b64 v106, v[56:57] offset:{T_SLOT + r*T_ROW}")
    stamp(k, "kg")
    D0, D1, D2 = 224, 228, 232
    k("s_waitcnt lgkmcnt(0)")
    for ks in range(8):
        k(f"v_mfma_f32_16x16x32_bf16 v[{D0}:{D0+3}], v[{AFa+4*ks}:{AFa+4*ks+3}], v[{OF+4*ks}:{OF+4*ks+3}], {'0' if ks == 0 else f'v[{D0}:{D0+3}]'}")
    for ks in range(8): k(f"ds_read_b128 v[{AFb+4*ks}:{AFb+4*ks+3}], v107 offset:{64*ks}")
    for ks in range(8): k(f"ds_read_b128 v[{AFa+4*ks}:{AFa+4*ks+3}], v107 offset:{T_SLOT + 64*ks}")
    k("s_waitcnt lgkmcnt(8)")
    for ks in range(8):
        k(f"v_mfma_f32_16x16x32_bf16 v[{D1}:{D1+3}], v[{AFb+4*ks}:{AFb+4*ks+3}], v[{OF+4*ks}:{OF+4*ks+3}], {'0' if ks == 0 else f'v[{D1}:{D1+3}]'}")
    k("s_waitcnt lgkmcnt(0)")
    for ks in range(8):
        k(f"v_mfma_f32_16x16x32_bf16 v[{D2}:{D2+3}], v[{AFa+4*ks}:{AFa+4*ks+3}], v[{OF+4*ks}:{OF+4*ks+3}], {'0' if ks == 0 else f'v[{D2}:{D2+3}]'}")
    k(f"v_lshlrev_b32 v122, 3, v{V_TID}\n v_add_u32 v122, {KEO_OFF}, v122\n s_nop 7")
    stamp(k, "kg")
    for t, Dt in enumerate((D0, D1, D2)):
        k(f"v_cvt_pk_bf16_f32 v{60+2*t}, v{Dt}, v{Dt+1}\n v_cvt_pk_bf16_f32 v{61+2*t}, v{Dt+2}, v{Dt+3}")
    k("ds_write_b64 v18, v[60:61]\n ds_write_b64 v19, v[62:63]\n ds_write_b32 v20, v64\n ds_write_b32 v20, v65 offset:64")
    k("s_waitcnt lgkmcnt(0)\n s_barrier")
    stamp(k)
    stamp(k, "kg")
    for c in range(4):
        for jq in range(2):
            for j in range(5): k(f"ds_read_u16 v{128+10*c+5*jq+j}, v{8+5*jq+j} offset:{c*KC_CH}")
    for c in range(4):
        k(f"s_waitcnt lgkmcnt({min(15, 30 - 10*c)})")
        for jq in range(2):
            b = 128 + 10*c + 5*jq; o = 168 + 8*c + 4*jq
            k(f"v_lshl_or_b32 v{o}, v{b+1}, 16, v{b}\n v_lshl_or_b32 v{o+1}, v{b+3}, 16, v{b+2}")
            k(f"v_lshl_or_b32 v{o+2}, v{b+2}, 16, v{b+1}\n v_lshl_or_b32 v{o+3}, v{b+4}, 16, v{b+3}")
    return X, ST, P

def gen_conv2(k, X, ST, P):
    for c in range(4):
        for jq in range(2):
            o = 168 + 8*c + 4*jq
            k(f"ds_write_b64 v122, v[{o}:{o+1}] offset:{c*KEO_CH + 2048*jq}")
            k(f"ds_write_b64 v122, v[{o+2}:{o+3}] offset:{c*KEO_CH + O_REL + 2048*jq}")
    stamp(k, "kg")
    k(f"v_lshlrev_b32 v123, 1, v{V_R}\n v_sub_u32 v123, 4062, v123\n v_lshl_add_u32 v123, v{V_G}, 4, v123")
    k(f"v_and_b32 v124, 1, v{V_R}\n v_cmp_eq_u32 vcc, 0, v124\n v_mov_b32 v124, 4158\n s_nop 0\n v_cndmask_b32 v124, 0, v124, vcc\n v_add_u32 v123, v123, v124")
    k(f"s_mul_i32 s70, s{S_WV}, {KEO_CH}\n s_add_u32 s70, s70, {KEO_OFF}")
    AA = 124
    for p in range(4):
        k(f"s_sub_u32 s71, s70, {512*(2*p+1)}")
        k(f"v_add_u32 v{AA+p}, s71, v123")
    k(f"s_mul_i32 s70, s{S_WV}, {U_CH}\n s_add_u32 s70, s70, {U_OFF + 480}")
    k(f"v_lshlrev_b32 v119, 5, v{V_R}\n v_lshl_add_u32 v119, v{V_G}, 4, v119\n v_add_u32 v119, s70, v119")
    stamp(k); stamp(k, "kg")
    k("s_mov_b32 s64, 128")
    poll_val(k, SRD_DBG, 64, 1, sleep=1)
    stamp(k)
    k(f"v_lshlrev_b32 v6, 4, v{V_TID}")
    k(f"s_lshl_b32 s71, s4, 14\n s_add_u32 s71, s71, {WS_XB}")
    for jj in range(4):
        k(f"s_mov_b32 s70, {WS_STATS1 + jj*4096}")
        k(f"buffer_load_dwordx4 v[{ST+4*jj}:{ST+4*jj+3}], v6, s[{SRD_WS}:{SRD_WS+3}], s70 offen sc1")
        k(f"buffer_load_dwordx4 v[{X+4*jj}:{X+4*jj+3}], v6, s[{SRD_WS}:{SRD_WS+3}], s71 offen sc1")
        if jj < 3: k("s_add_u32 s71, s71, 4096")
    dma_setup(k, 57)
    for i in range(32): k(f"v_mov_b32 v{128+i}, 0")
    k(f"v_lshlrev_b32 v7, 2, v{V_TID}\n v_add_u32 v7, {U_OFF + 512}, v7")
    for jj in range(4):
        k(f"s_waitcnt vmcnt({6 - 2*jj})")
        for par in range(2):
            m = ST + 4*jj + 2*par
            k(f"v_mul_f32 v{m}, -v{m}, v{m+1}")
        for par in range(2):
            for h in range(2):
                r = X + 4*jj + 2*par + h
                k(f"v_lshlrev_b32 v{56+4*par+2*h}, 16, v{r}\n v_and_b32 v{57+4*par+2*h}, 0xffff0000, v{r}")
        for par in range(2):
            m = ST + 4*jj + 2*par
            for h in range(2):
                d = 56 + 4*par + 2*h
                k(f"v_pk_fma_f32 v[{d}:{d+1}], v[{d}:{d+1}], v[{m}:{m+1}], v[{m}:{m+1}] op_sel:[0,1,0] op_sel_hi:[1,1,0]")
        for c in range(4):
            k(f"v_cvt_pk_bf16_f32 v{P+4*jj+c}, v{56+c}, v{60+c}")
            k(f"ds_write_b32 v7, v{P+4*jj+c} offset:{c*U_CH + 1024*jj}")
    k("s_waitcnt lgkmcnt(0)\n s_barrier")
    stamp(k)
    ACC = 128; BF = (160, 192); AF = 224; BA = 119
    def loadB(st, J): return f"ds_read_b128 v[{BF[st]+4*J}:{BF[st]+4*J+3}], v{BA} offset:{512*J}"
    def loadA(a, h):
        p = a // 2; off = (128 if a % 2 == 0 else 0) + 2*h
        return f"ds_read2_b32 v[{AF+4*a+2*h}:{AF+4*a+2*h+1}], v{AA+p} offset0:{off} offset1:{off+1}"
    def stepA(p): return f"v_subrev_u32 v{AA+p}, 64, v{AA+p}"
    for J in range(8): k(loadB(0, J))
    k(f"v_subrev_u32 v{BA}, 64, v{BA}")
    for a in range(6):
        k(loadA(a, 0)); k(loadA(a, 1))
    k(loadA(6, 0))
    for p in range(3): k(stepA(p))
    def iteration(st, dmas):
        fill = {g: [] for g in range(36)}
        fill[0].append(loadA(6, 1)); fill[1].append(loadA(7, 0)); fill[2].append(loadA(7, 1)); fill[3].append(stepA(3))
        for J in range(8): fill[J].append(loadB(1-st, J))
        fill[8].append(f"v_subrev_u32 v{BA}, 64, v{BA}")
        ends = {0: 8, 1: 15, 2: 21, 3: 26, 4: 30, 5: 33}
        for a, g in ends.items():
            fill[g].append(loadA(a, 0)); fill[g+1].append(loadA(a, 1))
        fill[17].append(stepA(0)); fill[28].append(stepA(1)); fill[35].append(stepA(2))
        fill[35].append(loadA(6, 0))
        slots = [11, 18, 23, 12]
        for i, d in enumerate(dmas): fill[slots[i]].append(d)
        g = 0
        k("s_waitcnt lgkmcnt(1)")
        for a in range(8):
            if a == 6: k("s_waitcnt lgkmcnt(12)")
            for J in range(a, 8):
                k(f"v_mfma_f32_16x16x32_bf16 v[{ACC+4*J}:{ACC+4*J+3}], v[{AF+4*a}:{AF+4*a+3}], v[{BF[st]+4*(J-a)}:{BF[st]+4*(J-a)+3}], v[{ACC+4*J}:{ACC+4*J+3}]")
                for f in fill[g]: k(f)
                g += 1
    k("s_mov_b32 s70, 0")
    dma_listA_step(k, 0, 68)
    dma_kstep_setup(k, 68, 72, 73)
    k.label("conv_loop")
    iteration(0, [dma_op(u, 72, 73) for u in range(4)])
    iteration(1, [dma_op(u, 72, 73) for u in range(4, 7)])
    k(f"s_add_u32 s68, s{S_WV}, 4\n s_cmp_lt_u32 s{S_WV}, 2\n s_cselect_b32 s71, 8, 16\n s_add_u32 s71, s71, s{S_WV}\n s_cmp_eq_u32 s70, 0\n s_cselect_b32 s68, s68, s71")
    dma_kstep_setup(k, 68, 72, 73)
    k("s_add_u32 s70, s70, 1\n s_cmp_lt_u32 s70, 3\n s_cbranch_scc1 conv_loop")
    k(f"v_mov_b32 v81, 132\n buffer_load_dword v80, v81, s[{SRD_DBG}:{SRD_DBG+3}], 0 offen sc1")
    iteration(0, [])
    iteration(1, [])
    stamp(k)
    stamp(k, "s2")
    k(f"s_cmp_lg_u32 s{S_WV}, 1\n s_cbranch_scc1 conv_w1")
    k("s_waitcnt vmcnt(0)\n v_cmp_ne_u32 vcc, 0, v80\n s_cbranch_vccnz conv_wok")
    spin_flag(k, SRD_DBG, 132, 80)
    k.label("conv_wok")
    cb_issue(k, 82)
    k.label("conv_w1")
    k("s_waitcnt lgkmcnt(0)\n s_barrier")
    stamp(k, "s2")
    k(f"s_mul_i32 s70, s{S_WV}, {YT_CH}\n s_add_u32 s70, s70, {YT_OFF}")
    k(f"v_mul_u32_u24 v56, 80, v{V_R}\n v_lshl_add_u32 v56, v{V_G}, 4, v56\n v_add_u32 v56, s70, v56")
    k("s_nop 4")
    for J in range(8):
        k(f"ds_write_b128 v56, v[{ACC+4*J}:{ACC+4*J+3}] offset:{1280*J}")
    k("s_waitcnt lgkmcnt(0)\n s_barrier")
    k(f"v_lshrrev_b32 v56, 3, v{V_TID}\n v_lshlrev_b32 v56, 4, v56\n v_lshl_add_u32 v56, v{V_TID}, 3, v56\n v_add_u32 v56, {YT_OFF}, v56")
    for jj in range(4):
        for c in range(4):
            k(f"ds_read_b64 v[{128+8*jj+2*c}:{128+8*jj+2*c+1}], v56 offset:{c*YT_CH + jj*2560}")
    k("s_lshl_b32 s72, s6, 16\n s_and_b32 s73, s6, 0xffff0000\n s_lshl_b32 s74, s7, 16\n s_and_b32 s75, s7, 0xffff0000")
    k(f"v_lshrrev_b32 v57, 4, v{V_TID}\n v_mul_u32_u24 v57, 40960, v57\n v_and_b32 v58, 15, v{V_TID}\n v_lshl_add_u32 v57, v58, 4, v57")
    k("s_lshr_b32 s70, s4, 3\n s_lshl_b32 s70, s70, 11\n s_bfe_u32 s71, s4, 0x10002\n s_lshl_b32 s71, s71, 10\n s_add_u32 s70, s70, s71")
    k(f"s_and_b32 s71, s4, 3\n s_lshl_b32 s71, s71, 8\n s_add_u32 s70, s70, s71\n s_add_u32 s70, s70, {WS_HF}")
    for jj in range(4):
        k(f"s_waitcnt lgkmcnt({12 - 4*jj})")
        for par in range(2):
            for h in range(2):
                r = X + 4*jj + 2*par + h
                k(f"v_lshlrev_b32 v{64+4*par+2*h}, 16, v{r}\n v_and_b32 v{65+4*par+2*h}, 0xffff0000, v{r}")
        for c in range(4):
            k(f"v_lshlrev_b32 v{72+c}, 16, v{P+4*jj+c}\n v_and_b32 v{76+c}, 0xffff0000, v{P+4*jj+c}")
        for par in range(2):
            for c in range(4):
                y = 128 + 8*jj + 2*c + par
                k(f"v_fma_f32 v{72+4*par+c}, v{72+4*par+c}, s{72+c}, v{y}")
        for i in range(8): k(f"v_add_f32 v{64+i}, v{64+i}, v{72+i}")
        o = 160 + 4*jj
        for i in range(4): k(f"v_cvt_pk_bf16_f32 v{o+i}, v{64+2*i}, v{65+2*i}")
        k(f"buffer_store_dwordx4 v[{o}:{o+3}], v57, s[{SRD_WS}:{SRD_WS+3}], s70 offen sc1")
        if jj < 3: k(f"s_add_u32 s70, s70, {16*40960}")
    k(f"s_cmp_lg_u32 s{S_WV}, 1\n s_cbranch_scc1 conv_cb2")
    k("s_waitcnt vmcnt(4)")
    cb_write(k, 82)
    k.label("conv_cb2")
    stamp(k)
    k("s_and_b32 s79, s4, 15")
```

```python
from mk_common import *

W1_LDS = 143360
LDS_TOTAL = W1_LDS + 1024

W2A = 56
W2V = 176
def w2_reg(i, p):
    if i < 10: return f"a[{W2A+20*i+4*p}:{W2A+20*i+4*p+3}]"
    return f"v[{W2V+20*(i-10)+4*p}:{W2V+20*(i-10)+4*p+3}]"
def w2_ops():
    ops = []
    for p in range(5):
        for g0 in (0, 4, 8, 12):
            for i in range(g0, min(g0 + 4, 14)):
                pre = ""
                if i == g0: pre = f"s_add_u32 s78, s76, {p*54*1024 + g0*1024}\n "
                if i == 13: pre = "s_add_u32 s78, s78, s77\n "
                ops.append(pre + f"buffer_load_dwordx4 {w2_reg(i, p)}, v5, s[{SRD_WS}:{SRD_WS+3}], s78 offen offset:{(i-g0)*1024} sc1")
    return ops
def w2_frag(i, p):
    return w2_reg(i, p)

def residual_loads(k):
    k(f"s_lshl_b32 s64, s6, 1\n s_lshr_b32 s65, s{S_WV}, 1\n s_add_u32 s64, s64, s65")
    k(f"s_mul_i32 s66, s64, 40960\n s_and_b32 s67, s{S_WV}, 1\n s_lshl_b32 s67, s67, 3\n s_add_u32 s66, s66, s67\n s_add_u32 s66, s66, {WS_HF}")
    k("s_mul_i32 s67, s7, 20")
    for p in range(5):
        if p < 4: k(f"v_lshlrev_b32 v18, 1, v{V_G}\n v_add_u32 v18, {8*(p>>1) + (p&1)}, v18")
        else: k(f"v_add_u32 v18, 16, v{V_G}")
        k("v_add_u32 v18, s67, v18")
        k("v_lshrrev_b32 v19, 3, v18\n v_lshlrev_b32 v19, 11, v19\n v_bfe_u32 v20, v18, 2, 1\n v_lshl_add_u32 v19, v20, 10, v19")
        k(f"v_and_b32 v20, 3, v18\n v_lshl_add_u32 v19, v20, 8, v19\n v_lshl_add_u32 v19, v{V_R}, 4, v19")
        k(f"buffer_load_dwordx2 v[{8+2*p}:{9+2*p}], v19, s[{SRD_WS}:{SRD_WS+3}], s66 offen sc1")

def gen_gemm1(k):
    k.c("======== GEMM1 ========")
    b = S_WG
    k(f"s_mov_b32 s4, s{S_MB}\n s_mov_b32 s5, s{S_FT0}")
    k(f"s_and_b32 s6, s{b}, 7\n s_lshr_b32 s6, s6, 1\n s_lshl_b32 s6, s6, 3\n s_lshr_b32 s64, s{b}, 3\n s_and_b32 s64, s64, 7\n s_add_u32 s6, s6, s64")
    k(f"s_and_b32 s7, s{b}, 1\n s_lshl_b32 s7, s7, 2\n s_lshr_b32 s64, s{b}, 6\n s_add_u32 s7, s7, s64")
    stamp(k, "s2")
    k("s_waitcnt lgkmcnt(0)\n s_barrier")
    labB = k.newlab("lb")
    k(f"s_cmp_eq_u32 s79, -1\n s_cbranch_scc1 {labB}\n s_cmp_eq_u32 s{S_WV}, 0\n s_cbranch_scc1 {labB}")
    dma_listB(k)
    k.label(labB)
    stamp(k, "s2")
    k(f"v_lshlrev_b32 v5, 4, v{V_LANE}")
    k(f"v_lshrrev_b32 v6, 2, v{V_LANE}\n v_mul_u32_u24 v6, 224, v6\n v_and_b32 v7, 3, v{V_LANE}\n v_lshl_add_u32 v6, v7, 3, v6")
    k("v_add_u32 v8, 0x10000, v6\n v_add_u32 v9, 0x20000, v6")
    stamp(k)
    B = 96
    k(f"s_lshl_b32 s64, s4, 2\n s_add_u32 s64, s64, s{S_WV}")
    k(f"s_mul_i32 s74, s64, 40960\n s_add_u32 s74, s74, {WS_HF}")
    k(f"s_mul_i32 s68, s{S_WV}, 14\n s_cmp_eq_u32 s{S_WV}, 3\n s_cselect_b32 s69, 1, 0\n s_sub_u32 s68, s68, s69")
    k(f"s_mul_i32 s76, s7, 270\n s_add_u32 s76, s76, s68\n s_lshl_b32 s76, s76, 10\n s_add_u32 s76, s76, {WS_WF2}")
    k(f"s_cmp_ge_u32 s{S_WV}, 2\n s_cselect_b32 s77, 0x40000000, 0")
    ACC = 24; S1 = 80; S2 = 88
    k("v_mov_b32 v20, 0x3f803f80\n v_mov_b32 v21, 0x3f803f80\n v_mov_b32 v22, 0x3f803f80\n v_mov_b32 v23, 0x3f803f80")
    k(f"s_mov_b32 s75, s74")
    NB = 6; PRE = 5
    vm = []
    def loadB(s):
        r = B + 8*(s % NB)
        k(f"buffer_load_dwordx4 v[{r}:{r+3}], v5, s[{SRD_WS}:{SRD_WS+3}], s74 offen sc1"); vm.append(("B", s))
        k(f"buffer_load_dwordx4 v[{r+4}:{r+7}], v5, s[{SRD_WS}:{SRD_WS+3}], s74 offen offset:1024 sc1"); vm.append(("B", s))
        if s < 19: k("s_add_u32 s74, s74, 2048")
    lab = k.newlab("prb"); done = k.newlab("prbd"); skip = k.newlab("prbs")
    k(f"s_cmp_lg_u32 s{S_WV}, 0\n s_cbranch_scc1 {skip}")
    for i in range(3):
        k(f"v_add_u32 v12, {64*i}, v{V_LANE}\n v_lshrrev_b32 v13, 3, v12\n v_lshlrev_b32 v13, 11, v13\n v_bfe_u32 v14, v12, 2, 1\n v_lshl_add_u32 v13, v14, 10, v13\n v_and_b32 v14, 3, v12\n v_lshl_add_u32 v{16+i}, v14, 8, v13")
    k(f"v_min_u32 v18, {19*2048 + 1024 + 3*256}, v18")
    k(f"s_mov_b32 s72, {WS_HF + 63*40960 + 240}\n s_mov_b32 s73, 0")
    k.label(lab)
    for i in range(3): k(f"buffer_load_dword v{12+i}, v{16+i}, s[{SRD_WS}:{SRD_WS+3}], s72 offen sc1")
    k("s_add_u32 s73, s73, 1\n s_waitcnt vmcnt(0)\n v_max3_u32 v12, v12, v13, v14")
    k(f"v_cmp_eq_u32 vcc, -1, v12\n s_cmp_gt_u32 s73, {SPIN_MAX}\n s_cbranch_scc1 {done}\n s_cbranch_vccz {done}\n s_sleep 1\n s_branch {lab}")
    k.label(done)
    k.label(skip)
    stamp(k, "s2")
    k("s_waitcnt vmcnt(0)")
    stamp(k, "s2")
    k("s_barrier")
    stamp(k); stamp(k, "s2")
    k("s_mov_b32 s71, 0")
    k.label("g1_retry")
    k("s_mov_b32 s74, s75")
    for s in range(PRE): loadB(s)
    def readA1(s, buf, ftl, hh):
        o = s*7168 + ftl*32 + 3584*hh
        reg = (6, 8, 9)[o // 65536]
        a0 = 28*buf + 4*ftl + 2*hh
        k(f"ds_read_b64_tr_b16 a[{a0}:{a0+1}], v{reg} offset:{o % 65536}")
    w2q = w2_ops()
    def wait_swap(s):
        last = max(i for i, e in enumerate(vm) if e == ("B", s))
        k(f"s_waitcnt vmcnt({len(vm) - 1 - last})")
        if s in (0, 1, 2, 4, 7, 10, 13, 16, 19): stamp(k, "g1")
        b0 = B + 8*(s % NB)
        if s == 0: k(f"v_max3_u32 v10, v{b0}, v{b0+1}, v{b0+2}\n v_max3_u32 v11, v{b0+3}, v{b0+4}, v{b0+5}\n v_max3_u32 v10, v10, v{b0+6}, v{b0+7}")
        else: k(f"v_max3_u32 v10, v10, v{b0}, v{b0+1}\n v_max3_u32 v11, v11, v{b0+2}, v{b0+3}\n v_max3_u32 v10, v10, v{b0+4}, v{b0+5}\n v_max3_u32 v11, v11, v{b0+6}, v{b0+7}")
        k(f"v_swap_b32 v{b0+2}, v{b0+4}\n v_swap_b32 v{b0+3}, v{b0+5}")
    for ftl in range(7):
        for hh in range(2): readA1(0, 0, ftl, hh)
    wait_swap(0)
    for s in range(20):
        buf = s % 2
        b0 = B + 8*(s % NB)
        k("s_waitcnt lgkmcnt(0)")
        if s == 0: k("s_nop 0")
        fill = [(ftl, hh) for ftl in range(7) for hh in range(2)] if s < 19 else []
        seq = []
        for ftl in range(7):
            for tt in range(2):
                c = ACC + 4*(ftl*2+tt); a0 = 28*buf + 4*ftl
                cin = "0" if s == 0 else f"v[{c}:{c+3}]"
                seq.append(f"v_mfma_f32_16x16x32_bf16 v[{c}:{c+3}], a[{a0}:{a0+3}], v[{b0+4*tt}:{b0+4*tt+3}], {cin}")
        for tt in range(2):
            c1 = "0" if s == 0 else f"v[{S1+4*tt}:{S1+4*tt+3}]"; c2 = "0" if s == 0 else f"v[{S2+4*tt}:{S2+4*tt+3}]"
            seq.append(f"v_mfma_f32_16x16x32_bf16 v[{S1+4*tt}:{S1+4*tt+3}], v[20:23], v[{b0+4*tt}:{b0+4*tt+3}], {c1}")
            seq.append(f"v_mfma_f32_16x16x32_bf16 v[{S2+4*tt}:{S2+4*tt+3}], v[{b0+4*tt}:{b0+4*tt+3}], v[{b0+4*tt}:{b0+4*tt+3}], {c2}")
        for i, m in enumerate(seq):
            k(m)
            if i < len(fill): readA1(s+1, 1-buf, *fill[i])
            if i == 14:
                if s + 1 < 20: wait_swap(s + 1)
            if i == 15 and s + PRE < 20: loadB(s + PRE)
            if i in (16, 17) and w2q:
                k(w2q.pop(0)); vm.append(("W", 0))
    k("v_max_u32 v10, v10, v11\n v_cmp_eq_u32 vcc, -1, v10\n s_cbranch_vccnz g1_redo")
    k.label("g1_ok")
    k.tail.append(f"g1_redo:\n  s_add_u32 s71, s71, 1\n  s_cmp_gt_u32 s71, 20000\n  s_cbranch_scc1 g1_ok\n  s_sleep 8\n  s_branch g1_retry")
    stamp(k); stamp(k, "g1")
    k("s_nop 1")
    k(f"v_and_b32 v10, 3, v{V_R}\n v_lshrrev_b32 v11, 2, v{V_R}\n v_lshl_add_u32 v11, v11, 4, v{V_R}\n v_lshlrev_b32 v11, 2, v11")
    k("v_cmp_eq_u32 s[64:65], 1, v10\n v_cmp_eq_u32 s[66:67], 2, v10\n v_cmp_eq_u32 s[68:69], 3, v10")
    CS = (104, 112); B1 = (108, 116)
    k(f"v_lshlrev_b32 v7, 4, v{V_G}\n v_add_u32 v7, {CB_OFF}, v7")
    k(f"ds_read_b128 v[{CS[0]}:{CS[0]+3}], v7\n ds_read_b128 v[{B1[0]}:{B1[0]+3}], v7 offset:448")
    for q, sp in ((1, 64), (2, 66), (3, 68)):
        for tt in range(2):
            bb = S2 + 4*tt
            k(f"v_cndmask_b32 v{bb}, v{bb}, v{bb+q}, s[{sp}:{sp+1}]")
    for tt in range(2):
        k(f"ds_bpermute_b32 v{S2+4*tt+1}, v11, v{S2+4*tt}")
    RR = (96, 100)
    for tt in range(2): k(f"v_mul_f32 v{S1+4*tt}, 0x3acccccd, v{S1+4*tt}")
    k(f"s_lshl_b32 s64, s4, 2\n s_add_u32 s64, s64, s{S_WV}\n s_mul_i32 s64, s64, {108*1024}\n s_lshl_b32 s65, s5, 10\n s_add_u32 s64, s64, s65\n s_add_u32 s64, s64, {WS_ACT}")
    k(f"s_mov_b32 s70, {LOG2E:#x}")
    k("s_waitcnt lgkmcnt(0)")
    Q = [S2 + 1, S2 + 5]; M = [S1, S1 + 4]
    def both(f):
        for tt in range(2): k(f(tt))
    both(lambda t: f"v_mul_f32 v{Q[t]}, 0x3acccccd, v{Q[t]}")
    both(lambda t: f"v_fma_f32 v{Q[t]}, -v{M[t]}, v{M[t]}, v{Q[t]}")
    both(lambda t: f"v_max_f32 v{Q[t]}, 0, v{Q[t]}")
    both(lambda t: f"v_cvt_pk_bf16_f32 v{Q[t]}, v{Q[t]}, v{Q[t]}")
    both(lambda t: f"v_lshlrev_b32 v{Q[t]}, 16, v{Q[t]}")
    both(lambda t: f"v_add_f32 v{Q[t]}, 0x3727c5ac, v{Q[t]}")
    both(lambda t: f"v_cvt_pk_bf16_f32 v{Q[t]}, v{Q[t]}, v{Q[t]}")
    both(lambda t: f"v_lshlrev_b32 v{Q[t]}, 16, v{Q[t]}")
    both(lambda t: f"v_sqrt_f32 v{Q[t]}, v{Q[t]}")
    both(lambda t: f"v_cvt_pk_bf16_f32 v{M[t]}, v{M[t]}, v{M[t]}")
    both(lambda t: f"v_cvt_pk_bf16_f32 v{Q[t]}, v{Q[t]}, v{Q[t]}")
    both(lambda t: f"v_lshlrev_b32 v{M[t]}, 16, v{M[t]}")
    both(lambda t: f"v_lshlrev_b32 v{Q[t]}, 16, v{Q[t]}")
    both(lambda t: f"v_rcp_f32 v{RR[t]}, v{Q[t]}")
    k("s_nop 0")
    both(lambda t: f"v_mul_f32 v{RR[t]+2}, -v{M[t]}, v{RR[t]}")
    TM = 120; E = (128, 136); PP = (144, 152); OUT = (160, 164)
    def stageA(ftl):
        bsel = ftl % 2; e0 = E[bsel]; out = []
        for tt in range(2):
            c = ACC + 4*(ftl*2+tt); nrm = RR[tt] + 2; t = TM + 4*tt
            for h in range(2): out.append(f"v_pk_fma_f32 v[{t+2*h}:{t+2*h+1}], v[{CS[bsel]+2*h}:{CS[bsel]+2*h+1}], v[{nrm}:{nrm+1}], v[{B1[bsel]+2*h}:{B1[bsel]+2*h+1}] op_sel_hi:[1,0,1]")
        for tt in range(2):
            c = ACC + 4*(ftl*2+tt); r = RR[tt]; t = TM + 4*tt
            for h in range(2): out.append(f"v_pk_fma_f32 v[{c+2*h}:{c+2*h+1}], v[{c+2*h}:{c+2*h+1}], v[{r}:{r+1}], v[{t+2*h}:{t+2*h+1}] op_sel_hi:[1,0,1]")
        for tt in range(2):
            c = ACC + 4*(ftl*2+tt); e = e0 + 4*tt
            for h in range(2): out.append(f"v_pk_mul_f32 v[{e+2*h}:{e+2*h+1}], v[{c+2*h}:{c+2*h+1}], s[70:71] op_sel_hi:[1,0]")
        return out
    def stageExp(ftl): return [f"v_exp_f32 v{E[ftl%2]+i}, v{E[ftl%2]+i}" for i in range(8)]
    def stageB(ftl):
        e0 = E[ftl % 2]; p0 = PP[ftl % 2]; out = []
        for j in range(4): out.append(f"v_pk_add_f32 v[{p0+2*j}:{p0+2*j+1}], v[{e0+2*j}:{e0+2*j+1}], 2.0 op_sel_hi:[1,0]")
        for j in range(4): out.append(f"v_pk_fma_f32 v[{p0+2*j}:{p0+2*j+1}], v[{e0+2*j}:{e0+2*j+1}], v[{p0+2*j}:{p0+2*j+1}], 2.0 op_sel_hi:[1,1,0]")
        return out
    def stageRcp(ftl): return [f"v_rcp_f32 v{PP[ftl%2]+i}, v{PP[ftl%2]+i}" for i in range(8)]
    def stageC(ftl):
        p0 = PP[ftl % 2]; o = OUT[ftl % 2]; out = []
        for j in range(4): out.append(f"v_pk_fma_f32 v[{p0+2*j}:{p0+2*j+1}], v[{p0+2*j}:{p0+2*j+1}], -2.0, 1.0 op_sel_hi:[1,0,0]")
        for tt in range(2):
            c = ACC + 4*(ftl*2+tt)
            for h in range(2): out.append(f"v_pk_mul_f32 v[{p0+4*tt+2*h}:{p0+4*tt+2*h+1}], v[{p0+4*tt+2*h}:{p0+4*tt+2*h+1}], v[{c+2*h}:{c+2*h+1}]")
        for tt in range(2):
            out.append(f"v_cvt_pk_bf16_f32 v{o+2*tt}, v{p0+4*tt}, v{p0+4*tt+1}"); out.append(f"v_cvt_pk_bf16_f32 v{o+2*tt+1}, v{p0+4*tt+2}, v{p0+4*tt+3}")
        return out
    def ilv(a, b):
        out = []; na, nb = len(a), len(b); i = j = 0
        while i < na or j < nb:
            if i < na: out.append(a[i]); i += 1
            if j < nb and (i * nb >= j * na or i >= na): out.append(b[j]); j += 1
        return out
    def emit(seq, nload):
        n = len(seq); done = 0
        for i, x in enumerate(seq):
            k(x)
            if nload and w2q and done < nload and (i + 1) * nload >= (done + 1) * n - n // 2:
                k(w2q.pop(0)); done += 1
    for f in range(8):
        if f < 7 and f + 1 < 7:
            nb = (f + 1) % 2
            k(f"ds_read_b128 v[{CS[nb]}:{CS[nb]+3}], v7 offset:{64*(f+1)}\n ds_read_b128 v[{B1[nb]}:{B1[nb]+3}], v7 offset:{448 + 64*(f+1)}")
        A_ = stageA(f) if f < 7 else []
        R_ = stageRcp(f-1) if f >= 1 else []
        emit(ilv(R_, A_), 0)
        X_ = stageExp(f) if f < 7 else []
        C_ = stageC(f-1) if f >= 1 else []
        if f >= 1 and f == 7: k("s_nop 0")
        emit(ilv(X_, C_), 0)
        if f >= 1:
            o = OUT[(f-1) % 2]
            k(f"buffer_store_dwordx4 v[{o}:{o+3}], v5, s[{SRD_WS}:{SRD_WS+3}], s64 offen sc1")
            if f < 7: k("s_add_u32 s64, s64, 1024")
        if f < 7:
            k("s_nop 0")
            for x in stageB(f): k(x)
            if f + 1 < 7: k("s_waitcnt lgkmcnt(0)")
    stamp(k); stamp(k, "g2")
    k(f"s_and_b32 s65, s{S_WG}, 1\n s_lshl_b32 s65, s65, 3\n s_lshr_b32 s66, s{S_WG}, 5\n s_add_u32 s65, s65, s66\n s_lshl_b32 s65, s65, 2")
    k(f"s_add_u32 s64, s4, 33\n s_lshl_b32 s64, s64, 7\n s_add_u32 s64, s64, s65\n s_add_u32 s64, s64, {WS_SYNC}")
    lab = k.newlab("s3f")
    k(f"s_waitcnt vmcnt(0)\n s_barrier\n s_cmp_lg_u32 s{S_WV}, 0\n s_cbranch_scc1 {lab}")
    k(f"v_mov_b32 v4, 1\n v_mov_b32 v7, 0\n s_mov_b64 exec, 1\n buffer_store_dword v4, v7, s[{SRD_WS}:{SRD_WS+3}], s64 offen sc1\n s_mov_b64 exec, -1")
    k.label(lab)
    for x in w2q: k(x)

def gen_gemm2(k):
    k.c("======== GEMM2 ========")
    k(f"s_lshr_b32 s64, s6, 1\n s_add_u32 s64, s64, 33\n s_lshl_b32 s64, s64, 7\n s_add_u32 s64, s64, {WS_SYNC}")
    stamp(k, "g2")
    poll_flags(k, SRD_WS, 64, 16, sleep=1)
    stamp(k); stamp(k, "g2")
    ACC = 24; RING = 104; NR = 4
    k(f"s_mul_i32 s68, s{S_WV}, 14\n s_cmp_eq_u32 s{S_WV}, 3\n s_cselect_b32 s69, 1, 0\n s_sub_u32 s68, s68, s69")
    k(f"s_mul_i32 s70, s6, 216\n s_lshl_b32 s71, s68, 1\n s_add_u32 s70, s70, s71\n s_lshl_b32 s70, s70, 10\n s_add_u32 s70, s70, {WS_ACT}")
    def issue(i):
        st = RING + 16*(i % NR)
        for Tl in range(2):
            k(f"s_add_u32 s71, s70, {Tl*108*1024 + i*2048}")
            if i == 13: k("s_add_u32 s71, s71, s77")
            k(f"buffer_load_dwordx4 v[{st+8*Tl}:{st+8*Tl+3}], v5, s[{SRD_WS}:{SRD_WS+3}], s71 offen sc1")
            k(f"buffer_load_dwordx4 v[{st+8*Tl+4}:{st+8*Tl+7}], v5, s[{SRD_WS}:{SRD_WS+3}], s71 offen offset:1024 sc1")
    for i in range(NR): issue(i)
    def issue_ops(i):
        st = RING + 16*(i % NR); ops = []
        for Tl in range(2):
            pre = f"s_add_u32 s{71+Tl}, s70, {Tl*108*1024 + i*2048}"
            if i == 13: pre += f"\n s_add_u32 s{71+Tl}, s{71+Tl}, s77"
            ops.append(pre + f"\n buffer_load_dwordx4 v[{st+8*Tl}:{st+8*Tl+3}], v5, s[{SRD_WS}:{SRD_WS+3}], s{71+Tl} offen sc1")
            ops.append(f"buffer_load_dwordx4 v[{st+8*Tl+4}:{st+8*Tl+7}], v5, s[{SRD_WS}:{SRD_WS+3}], s{71+Tl} offen offset:1024 sc1")
        return ops
    residual_loads(k)
    vm2 = [i for i in range(NR) for _ in range(4)] + [-1]*5
    def wait_swap2(i):
        last = max(j for j, e in enumerate(vm2) if e == i)
        k(f"s_waitcnt vmcnt({len(vm2) - 1 - last})")
        if i in (0, 1, 3, 6, 9, 13): stamp(k, "g2")
        st = RING + 16*(i % NR)
        for Tl in range(2):
            b0 = st + 8*Tl
            k(f"v_swap_b32 v{b0+2}, v{b0+4}\n v_swap_b32 v{b0+3}, v{b0+5}")
    wait_swap2(0)
    k("s_nop 0")
    for i in range(14):
        st = RING + 16*(i % NR)
        pend = issue_ops(i - 1 + NR) if (i >= 1 and i - 1 + NR < 14) else []
        n = 0
        for p in range(5):
            for tt in range(4):
                c = ACC + 4*(p*4+tt)
                cin = "0" if i == 0 else f"v[{c}:{c+3}]"
                k(f"v_mfma_f32_16x16x32_bf16 v[{c}:{c+3}], {w2_frag(i, p)}, v[{st+4*tt}:{st+4*tt+3}], {cin}")
                n += 1
                if pend and n in (1, 3, 5, 7):
                    k(pend.pop(0)); vm2.append(i - 1 + NR)
                if n == 14 and i + 1 < 14: wait_swap2(i + 1)
    stamp(k); stamp(k, "g2")
    k(f"s_mul_i32 s64, s{S_WV}, 20480\n v_add_u32 v18, s64, v5")
    k("s_nop 6")
    for tt in range(4):
        lab = k.newlab("skipw")
        k(f"s_cmp_eq_u32 s{S_WV}, {tt}\n s_cbranch_scc1 {lab}")
        for p in range(5):
            c = ACC + 4*(p*4+tt)
            k(f"ds_write_b128 v18, v[{c}:{c+3}] offset:{tt*5120 + p*1024}")
        k.label(lab)
    for tt in range(4):
        lab = k.newlab("skipm")
        k(f"s_cmp_lg_u32 s{S_WV}, {tt}\n s_cbranch_scc1 {lab}")
        for p in range(5):
            c = ACC + 4*(p*4+tt)
            k(f"v_pk_mov_b32 v[{104+4*p}:{105+4*p}], v[{c}:{c+1}], v[{c}:{c+1}] op_sel:[0,1]\n v_pk_mov_b32 v[{106+4*p}:{107+4*p}], v[{c+2}:{c+3}], v[{c+2}:{c+3}] op_sel:[0,1]")
        k.label(lab)
    k("s_waitcnt lgkmcnt(0)\n s_barrier")
    for j in range(1, 4):
        k(f"s_add_u32 s64, s{S_WV}, {j}\n s_and_b32 s64, s64, 3\n s_mul_i32 s64, s64, 20480\n s_mul_i32 s65, s{S_WV}, 5120\n s_add_u32 s64, s64, s65")
        k(f"v_add_u32 v18, s64, v5")
        for p in range(5):
            d = 124 + 20*(j-1) + 4*p
            k(f"ds_read_b128 v[{d}:{d+3}], v18 offset:{p*1024}")
    k("s_waitcnt lgkmcnt(0)")
    for j in range(3):
        for i in range(0, 20, 2):
            k(f"v_pk_add_f32 v[{104+i}:{105+i}], v[{104+i}:{105+i}], v[{124+20*j+i}:{125+20*j+i}]")
    for p in range(5):
        for h in range(2):
            k(f"v_lshlrev_b32 v18, 16, v{8+2*p+h}\n v_and_b32 v19, 0xffff0000, v{8+2*p+h}")
            k(f"v_pk_add_f32 v[{104+4*p+2*h}:{105+4*p+2*h}], v[{104+4*p+2*h}:{105+4*p+2*h}], v[18:19]")
    for p in range(5):
        k(f"v_cvt_pk_bf16_f32 v{24+2*p}, v{104+4*p}, v{105+4*p}\n v_cvt_pk_bf16_f32 v{25+2*p}, v{106+4*p}, v{107+4*p}")
    k(f"s_lshl_b32 s64, s6, 1\n s_lshr_b32 s65, s{S_WV}, 1\n s_add_u32 s64, s64, s65\n s_lshl_b32 s64, s64, 5\n s_and_b32 s65, s{S_WV}, 1\n s_add_u32 s64, s64, s65")
    k("s_mul_i32 s64, s64, 1280\n s_mul_i32 s65, s7, 160\n s_add_u32 s64, s64, s65")
    k(f"v_mul_u32_u24 v18, 2560, v{V_R}\n v_lshl_add_u32 v19, v{V_G}, 4, v18\n v_lshl_add_u32 v20, v{V_G}, 3, v18")
    k(f"buffer_store_dwordx4 v[24:27], v19, s[{SRD_OUT}:{SRD_OUT+3}], s64 offen")
    k(f"buffer_store_dwordx4 v[28:31], v19, s[{SRD_OUT}:{SRD_OUT+3}], s64 offen offset:64")
    k(f"buffer_store_dwordx2 v[32:33], v20, s[{SRD_OUT}:{SRD_OUT+3}], s64 offen offset:128")
```

```python
from mk_common import *

def gen_prep(k):
    k.c("======== role B: stats / colsum / w2 relayout ========")
    k("s_cmp_ge_u32 s4, 64")
    k("s_cbranch_scc1 prep_nostats")
    k(f"s_cmp_lg_u32 s4, 0\n s_cbranch_scc1 prep_nz\n s_cmp_lg_u32 s{S_WV}, 3\n s_cbranch_scc1 prep_nz")
    k(f"v_mov_b32 v64, 0\n v_mov_b32 v65, 0\n v_mov_b32 v66, 0\n v_mov_b32 v67, 0\n v_lshlrev_b32 v68, 4, v{V_LANE}\n s_mov_b32 s64, {WS_SYNC}")
    for i in range(12):
        k(f"buffer_store_dwordx4 v[64:67], v68, s[{SRD_WS}:{SRD_WS+3}], s64 offen sc1")
        if i < 11: k("s_add_u32 s64, s64, 1024")
    k.label("prep_nz")
    k(f"v_mul_u32_u24 v6, 1280, v{V_G}")
    k(f"v_lshl_add_u32 v6, v{V_R}, 4, v6")
    k(f"s_lshl_b32 s64, s4, 5\n s_lshl_b32 s65, s{S_WV}, 3\n s_add_u32 s64, s64, s65")
    k("s_mul_i32 s65, s64, 1280")
    k("s_add_u32 s66, s65, 5120")
    for rd in range(2):
        for j in range(5):
            b = 16 + 20*rd + 4*j
            k(f"buffer_load_dwordx4 v[{b}:{b+3}], v6, s[{SRD_X}:{SRD_X+3}], s{65+rd} offen offset:{256*j}")
    k("s_mov_b32 s67, 0x3f803f80")
    k(f"v_lshlrev_b32 v7, 3, v{V_G}")
    k(f"s_lshl_b32 s68, s64, 3\n s_add_u32 s68, s68, {WS_STATS1}")
    k(f"v_mul_u32_u24 v8, 1296, v{V_G}\n v_lshl_add_u32 v8, v{V_R}, 4, v8\n s_mul_i32 s69, s{S_WV}, {8*1296}\n v_add_u32 v8, s69, v8")
    k(f"v_mul_u32_u24 v10, 2592, v{V_R}\n v_lshl_add_u32 v10, v{V_G}, 3, v10\n s_mul_i32 s69, s{S_WV}, 320\n v_add_u32 v10, s69, v10")
    k(f"v_lshlrev_b32 v9, 14, v{V_G}\n v_lshl_add_u32 v9, v{V_R}, 4, v9")
    k(f"s_mul_i32 s69, s{S_WV}, {40*16384}\n s_lshl_b32 s70, s4, 8\n s_add_u32 s69, s69, s70\n s_add_u32 s69, s69, {WS_XB}")
    k(f"v_cmp_eq_u32 s[72:73], 0, v{V_R}")
    for i in range(8): k(f"v_mov_b32 v{60+i}, 0")
    for rd in range(2):
        k(f"s_waitcnt vmcnt({5 if rd == 0 else 0})")
        if rd == 0: stamp(k)
        stamp(k, "st")
        for j in range(5):
            b = 16 + 20*rd + 4*j
            k(f"ds_write_b128 v8, v[{b}:{b+3}] offset:{rd*4*1296 + j*256}")
    k("s_waitcnt lgkmcnt(0)\n s_barrier")
    stamp(k, "st")
    for q in range(10):
        k(f"ds_read2_b64 v[{72+4*q}:{75+4*q}], v10 offset0:{4*q} offset1:{162+4*q}")
    nst = 0
    for i in range(20):
        for rd in range(2):
            r = 16 + 20*rd + i
            k(f"v_dot2_f32_bf16 v{60+4*rd+(i&1)}, v{r}, s67, v{60+4*rd+(i&1)}")
            k(f"v_dot2_f32_bf16 v{62+4*rd+(i&1)}, v{r}, v{r}, v{62+4*rd+(i&1)}")
        if i % 2 == 1:
            q = nst; nst += 1
            k(f"s_waitcnt lgkmcnt({9-q})")
            k(f"buffer_store_dwordx4 v[{72+4*q}:{75+4*q}], v9, s[{SRD_WS}:{SRD_WS+3}], s69 offen sc1")
            if q < 9: k(f"s_add_u32 s69, s69, {4*16384}")
    stamp(k, "st")
    k("s_nop 1")
    k("v_add_f32 v60, v60, v61\n v_add_f32 v64, v64, v65\n v_add_f32 v61, v62, v63\n v_add_f32 v65, v66, v67\n s_nop 0")
    for (src, dst, ctl) in ((0, 2, "quad_perm:[1,0,3,2]"), (2, 0, "quad_perm:[2,3,0,1]"), (0, 2, "row_half_mirror"), (2, 0, "row_mirror")):
        for base in (60, 64):
            for o in range(2):
                k(f"v_add_f32_dpp v{base+dst+o}, v{base+src+o}, v{base+src+o} {ctl} row_mask:0xf bank_mask:0xf")
    M = (60, 64); Q = (61, 65); R = (63, 67)
    def both(f):
        for t in range(2): k(f(t))
    both(lambda t: f"v_mul_f32 v{M[t]}, 0x3acccccd, v{M[t]}")
    both(lambda t: f"v_mul_f32 v{Q[t]}, 0x3acccccd, v{Q[t]}")
    both(lambda t: f"v_fma_f32 v{Q[t]}, -v{M[t]}, v{M[t]}, v{Q[t]}")
    both(lambda t: f"v_max_f32 v{Q[t]}, 0, v{Q[t]}")
    both(lambda t: f"v_cvt_pk_bf16_f32 v{Q[t]}, v{Q[t]}, v{Q[t]}")
    both(lambda t: f"v_lshlrev_b32 v{Q[t]}, 16, v{Q[t]}")
    both(lambda t: f"v_add_f32 v{Q[t]}, 0x3727c5ac, v{Q[t]}")
    both(lambda t: f"v_cvt_pk_bf16_f32 v{Q[t]}, v{Q[t]}, v{Q[t]}")
    both(lambda t: f"v_lshlrev_b32 v{Q[t]}, 16, v{Q[t]}")
    both(lambda t: f"v_sqrt_f32 v{Q[t]}, v{Q[t]}")
    both(lambda t: f"v_cvt_pk_bf16_f32 v{M[t]}, v{M[t]}, v{M[t]}")
    both(lambda t: f"v_cvt_pk_bf16_f32 v{Q[t]}, v{Q[t]}, v{Q[t]}")
    both(lambda t: f"v_lshlrev_b32 v{M[t]+2}, 16, v{M[t]}")
    both(lambda t: f"v_lshlrev_b32 v{Q[t]}, 16, v{Q[t]}")
    both(lambda t: f"v_rcp_f32 v{R[t]}, v{Q[t]}")
    k("s_and_saveexec_b64 s[70:71], s[72:73]")
    k(f"buffer_store_dwordx2 v[62:63], v7, s[{SRD_WS}:{SRD_WS+3}], s68 offen sc1")
    k(f"buffer_store_dwordx2 v[66:67], v7, s[{SRD_WS}:{SRD_WS+3}], s68 offen offset:32 sc1")
    k("s_mov_b64 exec, s[70:71]")
    stamp(k, "st")
    k("s_waitcnt vmcnt(0)")
    stamp(k, "st")
    k("s_mov_b32 s64, 0")
    arrive_go(k, SRD_DBG, 64, 64, 128)
    stamp(k, "st")
    stamp(k)
    k("s_cmp_ge_u32 s4, 56\n s_cbranch_scc1 prep_fill")
    k("s_mul_i32 s64, s4, 4682\n s_lshr_b32 s64, s64, 16\n s_mul_i32 s65, s64, 14\n s_sub_u32 s65, s4, s65")
    k(f"s_mul_i32 s66, s64, 160\n s_mul_i32 s67, s{S_WV}, 40\n s_add_u32 s66, s66, s67\n s_mul_i32 s66, s66, 3456\n s_lshl_b32 s67, s65, 8\n s_add_u32 s66, s66, s67")
    k(f"v_lshlrev_b32 v6, 2, v{V_LANE}")
    for i in range(40):
        k(f"buffer_load_dword v{16+i}, v6, s[{SRD_W1}:{SRD_W1+3}], s66 offen")
        if i < 39: k("s_add_u32 s66, s66, 3456")
    k("s_mov_b32 s67, 0x00003f80\n s_mov_b32 s68, 0x3f800000")
    for i in range(4): k(f"v_mov_b32 v{60+i}, 0")
    for i in range(40):
        if i % 10 == 0: k(f"s_waitcnt vmcnt({30 - i})")
        k(f"v_dot2_f32_bf16 v{60+2*(i&1)}, v{16+i}, s67, v{60+2*(i&1)}")
        k(f"v_dot2_f32_bf16 v{61+2*(i&1)}, v{16+i}, s68, v{61+2*(i&1)}")
    k("s_nop 2\n v_add_f32 v60, v60, v62\n v_add_f32 v61, v61, v63")
    k(f"v_lshlrev_b32 v7, 3, v{V_TID}")
    k("ds_write_b64 v7, v[60:61] offset:49152")
    k("s_waitcnt lgkmcnt(0)\n s_barrier")
    k(f"v_lshlrev_b32 v7, 3, v{V_LANE}")
    for q in range(4):
        k(f"ds_read_b64 v[{62+2*q}:{63+2*q}], v7 offset:{49152 + 512*q}")
    k("s_waitcnt lgkmcnt(0)")
    k("v_add_f32 v62, v62, v64\n v_add_f32 v63, v63, v65\n v_add_f32 v66, v66, v68\n v_add_f32 v67, v67, v69")
    k("v_add_f32 v62, v62, v66\n v_add_f32 v63, v63, v67")
    k(f"s_mul_i32 s66, s64, 7168\n s_lshl_b32 s67, s65, 9\n s_add_u32 s66, s66, s67\n s_add_u32 s66, s66, {WS_CS1}")
    k(f"s_cmp_lg_u32 s{S_WV}, 0\n s_cbranch_scc1 prep_fill")
    k(f"buffer_store_dwordx2 v[62:63], v7, s[{SRD_WS}:{SRD_WS+3}], s66 offen sc1")
    k("s_branch prep_fill")
    k.label("prep_nostats")
    srd(k, SRD_T, P_W2, P_W2+1, F*D*2)
    k("s_sub_u32 s5, s4, 64")
    k(f"v_lshlrev_b32 v15, 4, v{V_LANE}")
    k(f"s_mul_i32 s64, s5, 40960\n s_mul_i32 s65, s{S_WV}, 10240\n s_add_u32 s64, s64, s65")
    k("s_cmp_lt_u32 s5, 22\n s_cselect_b32 s66, 0, 0x40000000")
    k(f"s_add_u32 s67, s64, {32*40960}\n s_add_u32 s67, s67, s66")
    for a_ in range(2):
        for u in range(10):
            k(f"s_add_u32 m0, s65, {a_*40960 + u*1024}\n s_add_u32 s68, s{64 if a_ == 0 else 67}, {u*1024}\n buffer_load_dwordx4 v15, s[{SRD_T}:{SRD_T+3}], s68 offen lds")
    k(f"v_lshrrev_b32 v12, 2, v{V_LANE}\n v_mul_u32_u24 v12, 1280, v12\n s_mul_i32 s68, s{S_WV}, 320\n v_add_u32 v12, s68, v12\n v_and_b32 v14, 3, v{V_LANE}")
    k("v_lshl_add_u32 v13, v14, 3, v12\n v_lshl_add_u32 v12, v14, 4, v12")
    for a_ in range(2):
        k(f"s_waitcnt vmcnt({10 if a_ == 0 else 10})")
        k("s_barrier")
        if a_ == 1: k("s_cmp_ge_u32 s5, 22\n s_cbranch_scc1 prep_fill")
        for jj in range(10):
            p = jj % 5
            col = 160*(jj >= 5) + 2*((32*(p >> 1) + 4*(p & 1)) if p < 4 else 64)
            reg = 12 if p < 4 else 13
            d = 16 + 4*jj
            k(f"ds_read_b64_tr_b16 v[{d}:{d+1}], v{reg} offset:{a_*40960 + col}")
            k(f"ds_read_b64_tr_b16 v[{d+2}:{d+3}], v{reg} offset:{a_*40960 + col + 20480}")
        k(f"s_mul_i32 s68, s{S_WV}, {10*55296}\n s_add_u32 s69, s5, {32*a_}\n s_lshl_b32 s69, s69, 10\n s_add_u32 s68, s68, s69\n s_add_u32 s68, s68, {WS_WF2}")
        for jj in range(10):
            k(f"s_waitcnt lgkmcnt({min(15, 2*(9-jj))})")
            d = 16 + 4*jj
            k(f"buffer_store_dwordx4 v[{d}:{d+3}], v15, s[{SRD_WS}:{SRD_WS+3}], s68 offen sc1")
            if jj < 9: k("s_add_u32 s68, s68, 55296")
    k.label("prep_fill")
    srd(k, SRD_T, P_WS, P_WS+1, WS_ACT)
    k(f"v_mov_b32 v64, -1\n v_mov_b32 v65, -1\n v_mov_b32 v66, -1\n v_mov_b32 v67, -1\n v_lshlrev_b32 v68, 4, v{V_LANE}")
    k(f"s_lshl_b32 s64, s4, 2\n s_add_u32 s64, s64, s{S_WV}\n s_mul_i32 s64, s64, 7168\n s_add_u32 s64, s64, {WS_HF}")
    for i in range(7):
        k(f"buffer_store_dwordx4 v[64:67], v68, s[{SRD_T}:{SRD_T+3}], s64 offen sc1")
        if i < 6: k("s_add_u32 s64, s64, 1024")
    k.label("prep_done")
    stamp(k)
    k("s_mov_b32 s64, 64")
    arrive_go(k, SRD_DBG, 64, 96, 132)
    stamp(k)
    k("s_lshr_b32 s64, s4, 3")
    k(f"s_lshl_b32 s65, s64, 2\n s_add_u32 s65, s65, s{S_WV}")
    k(f"v_lshlrev_b32 v6, 4, v{V_LANE}")
    dma_setup(k)
    for L in range(3):
        dma_listA_step(k, L, 68)
        dma_kstep_setup(k, 68, 69, 70)
        for u in range(7): k(dma_op(u, 69, 70))
    dma_listB(k, all4=True)
    k(f"s_mul_i32 s66, s65, {6*3456}\n s_and_b32 s67, s4, 1\n s_mul_i32 s67, s67, 1792\n s_add_u32 s66, s66, s67\n s_add_u32 s66, s66, {320*3456}")
    for i in range(6):
        k(f"buffer_load_dwordx4 v[{128+8*i}:{131+8*i}], v6, s[{SRD_W1}:{SRD_W1+3}], s66 offen")
        k(f"buffer_load_dwordx4 v[{132+8*i}:{135+8*i}], v6, s[{SRD_W1}:{SRD_W1+3}], s66 offen offset:1024")
        if i < 5: k("s_add_u32 s66, s66, 3456")
    stamp(k)
    k("s_mov_b32 s64, 132")
    poll_val(k, SRD_DBG, 64, 1, sleep=8)
    k("s_mov_b32 s64, 128")
    poll_val(k, SRD_DBG, 64, 1, sleep=8)
    k(f"s_cmp_lg_u32 s{S_WV}, 1\n s_cbranch_scc1 prep_cb")
    cb_issue(k, 82)
    k("s_waitcnt vmcnt(0)")
    cb_write(k, 82)
    k.label("prep_cb")
    stamp(k)
    k(f"s_mul_i32 s66, s65, 23040\n s_and_b32 s67, s4, 1\n s_mul_i32 s67, s67, {20*54*1024}\n s_add_u32 s66, s66, s67\n s_add_u32 s66, s66, {WS_WF2}")
    for i in range(23):
        k(f"buffer_load_dwordx4 v[{128+4*i}:{131+4*i}], v6, s[{SRD_WS}:{SRD_WS+3}], s66 offen sc1")
        if i < 22: k("s_add_u32 s66, s66, 1024")
    stamp(k)
```

```python
import sys
from mk_common import *
from mk_prep import gen_prep
from mk_conv import gen_conv, gen_conv2
from mk_gemm import gen_gemm1, gen_gemm2, LDS_TOTAL
NAME = "sequential_preLN__ssm_conv_s4__dense_activation_mish__prompt"
REF = open("cdna_kernels/" + NAME + ".s.ref").read()
HEADER = REF.split("; Override launch")[0]
def build():
    k = K(NAME + "_kernel")
    k(f"s_cmp_ge_u32 s{S_WG}, 256")
    k("s_cbranch_scc1 mk_end")
    stamp_init(k)
    stamp(k, '' if __import__('lib').TAGS is None else list(__import__('lib').TAGS)[0])
    k("s_load_dwordx16 s[32:47], s[0:1], 0")
    k("s_load_dwordx16 s[48:63], s[0:1], 64")
    import lib
    if lib.CODEPF:
        k(f"s_cmp_lt_u32 s{S_WG}, 248\n s_cbranch_scc1 mk_nopf")
        k("s_getpc_b64 s[64:65]")
        k.label("mk_pc")
        k("v_lshlrev_b32 v5, 7, v0")
        k("global_load_dword v250, v5, s[64:65]")
        k("v_add_u32 v5, 32768, v5\n v_min_u32 v5, mk_codeend - mk_pc - 4, v5")
        k("global_load_dword v251, v5, s[64:65]")
        k.label("mk_nopf")
    k(f"v_and_b32 v{V_LANE}, 63, v0\n v_lshrrev_b32 v4, 6, v0\n v_and_b32 v{V_R}, 15, v{V_LANE}\n v_lshrrev_b32 v{V_G}, 4, v{V_LANE}")
    k(f"v_readfirstlane_b32 s{S_WV}, v4")
    k("s_waitcnt lgkmcnt(0)")
    srd(k, SRD_WS, P_WS, P_WS+1, WS_END)
    srd(k, SRD_DBG, P_DBG, P_DBG+1, 256)
    srd(k, SRD_X, P_X, P_X+1, L*D*2)
    srd(k, SRD_OUT, P_OUT, P_OUT+1, L*D*2)
    srd(k, SRD_W1, P_W1, P_W1+1, D*F*2)
    gemm1_mapping(k)
    if lib.BFIRST:
        k(f"s_cmp_lt_u32 s{S_WG}, 160")
        k("s_cbranch_scc1 mk_roleA")
        k(f"s_sub_u32 s4, s{S_WG}, 160")
        n0 = k.__dict__.get("nstamp", 0)
        gen_prep(k)
        k("s_mov_b32 s79, -1")
        k("s_branch mk_gemm")
        k.label("mk_roleA")
        if lib.TAGS is None: k.nstamp = 1
        k(f"s_and_b32 s4, s{S_WG}, 7\n s_mul_i32 s4, s4, 20\n s_lshr_b32 s64, s{S_WG}, 3\n s_add_u32 s4, s4, s64")
        X, ST, P = gen_conv(k)
        gen_conv2(k, X, ST, P)
        if lib.TAGS is None: k.nstamp = 8
    else:
        k(f"s_cmp_ge_u32 s{S_WG}, 160")
        k("s_cbranch_scc1 mk_roleB")
        k(f"s_and_b32 s4, s{S_WG}, 7\n s_mul_i32 s4, s4, 20\n s_lshr_b32 s64, s{S_WG}, 3\n s_add_u32 s4, s4, s64")
        X, ST, P = gen_conv(k)
        gen_conv2(k, X, ST, P)
        k("s_branch mk_gemm")
        k.label("mk_roleB")
        k(f"s_sub_u32 s4, s{S_WG}, 160")
        if lib.TAGS is None: k.nstamp = 1
        gen_prep(k)
        if lib.TAGS is None: k.nstamp = 8
        k("s_mov_b32 s79, -1")
    k.label("mk_gemm")
    gen_gemm1(k)
    gen_gemm2(k)
    if lib.HPROF_WG is not None and lib.PROFILE: stamp_flush_dbg(k, lib.HPROF_WG)
    else: stamp_flush(k, waves=(0, 3))
    k.label("mk_end")
    return k
def main(out):
    k = build()
    s = HEADER
    s += "; Override launch geometry by editing the next line (default: block=256,\n"
    s += f"; @launch grid=(256,1,1) block=(256,1,1) lds={LDS_TOTAL}\n"
    s += '.amdgcn_target "amdgcn-amd-amdhsa--gfx950"\n.text\n'
    n = NAME + "_kernel"
    s += f".globl {n}\n.p2align 8\n.type {n},@function\n{n}:\n" + k.text() + "\n  s_endpgm\n" + "\n".join(k.tail) + "\nmk_codeend:\n"
    s += '.section .rodata,"a"\n' + kdesc(n, 512, 102, 256)
    open(out, "w").write(s)
if __name__ == "__main__":
    if "--bfirst" in sys.argv:
        import lib; lib.BFIRST = True; sys.argv.remove("--bfirst")
    if "--codepf" in sys.argv:
        import lib; lib.CODEPF = True; sys.argv.remove("--codepf")
    if "--prof" in sys.argv:
        import lib; lib.PROFILE = True; sys.argv.remove("--prof")
        for a in list(sys.argv):
            if a.startswith("--hprof="): lib.HPROF_WG = int(a[8:]); sys.argv.remove(a); continue
            if a.startswith("--tags="): lib.TAGS = set(a[7:].split(",")); sys.argv.remove(a)
    main(sys.argv[1] if len(sys.argv) > 1 else "mk.s")
```

```python
import sys
from mk_common import *
from mk_prep import gen_prep
from mk_conv import gen_conv, gen_conv2
from mk_gemm import gen_gemm1, gen_gemm2, LDS_TOTAL
NAME = "sequential_preLN__ssm_conv_s4__dense_activation_mish__prompt"
REF = open("cdna_kernels/" + NAME + ".s.ref").read()
HEADER = REF.split("; Override launch")[0]
def build():
    k = K(NAME + "_kernel")
    k(f"s_cmp_ge_u32 s{S_WG}, 256")
    k("s_cbranch_scc1 mk_end")
    stamp_init(k)
    stamp(k, '' if __import__('lib').TAGS is None else list(__import__('lib').TAGS)[0])
    k("s_load_dwordx16 s[32:47], s[0:1], 0")
    k("s_load_dwordx16 s[48:63], s[0:1], 64")
    import lib
    if lib.CODEPF:
        k(f"s_cmp_lt_u32 s{S_WG}, 248\n s_cbranch_scc1 mk_nopf")
        k("s_getpc_b64 s[64:65]")
        k.label("mk_pc")
        k("v_lshlrev_b32 v5, 7, v0")
        k("global_load_dword v250, v5, s[64:65]")
        k("v_add_u32 v5, 32768, v5\n v_min_u32 v5, mk_codeend - mk_pc - 4, v5")
        k("global_load_dword v251, v5, s[64:65]")
        k.label("mk_nopf")
    k(f"v_and_b32 v{V_LANE}, 63, v0\n v_lshrrev_b32 v4, 6, v0\n v_and_b32 v{V_R}, 15, v{V_LANE}\n v_lshrrev_b32 v{V_G}, 4, v{V_LANE}")
    k(f"v_readfirstlane_b32 s{S_WV}, v4")
    k("s_waitcnt lgkmcnt(0)")
    srd(k, SRD_WS, P_WS, P_WS+1, WS_END)
    srd(k, SRD_DBG, P_DBG, P_DBG+1, 256)
    srd(k, SRD_X, P_X, P_X+1, L*D*2)
    srd(k, SRD_OUT, P_OUT, P_OUT+1, L*D*2)
    srd(k, SRD_W1, P_W1, P_W1+1, D*F*2)
    if lib.TLBPF:
        k(f"s_cmp_lt_u32 s{S_WG}, 248\n s_cbranch_scc1 mk_notlb")
        k("v_lshlrev_b32 v5, 16, v0")
        k(f"buffer_load_dword v252, v5, s[{SRD_WS}:{SRD_WS+3}], 0 offen")
        k(f"buffer_load_dword v253, v5, s[{SRD_OUT}:{SRD_OUT+3}], 0 offen")
        k(f"buffer_load_dword v254, v5, s[{SRD_W1}:{SRD_W1+3}], 0 offen")
        k.label("mk_notlb")
    gemm1_mapping(k)
    if lib.BFIRST:
        k(f"s_cmp_lt_u32 s{S_WG}, 160")
        k("s_cbranch_scc1 mk_roleA")
        k(f"s_sub_u32 s4, s{S_WG}, 160")
        n0 = k.__dict__.get("nstamp", 0)
        gen_prep(k)
        k("s_mov_b32 s79, -1")
        k("s_branch mk_gemm")
        k.label("mk_roleA")
        if lib.TAGS is None: k.nstamp = 1
        k(f"s_and_b32 s4, s{S_WG}, 7\n s_mul_i32 s4, s4, 20\n s_lshr_b32 s64, s{S_WG}, 3\n s_add_u32 s4, s4, s64")
        X, ST, P = gen_conv(k)
        gen_conv2(k, X, ST, P)
        if lib.TAGS is None: k.nstamp = 8
    else:
        k(f"s_cmp_ge_u32 s{S_WG}, 160")
        k("s_cbranch_scc1 mk_roleB")
        k(f"s_and_b32 s4, s{S_WG}, 7\n s_mul_i32 s4, s4, 20\n s_lshr_b32 s64, s{S_WG}, 3\n s_add_u32 s4, s4, s64")
        X, ST, P = gen_conv(k)
        gen_conv2(k, X, ST, P)
        k("s_branch mk_gemm")
        k.label("mk_roleB")
        k(f"s_sub_u32 s4, s{S_WG}, 160")
        if lib.TAGS is None: k.nstamp = 1
        gen_prep(k)
        if lib.TAGS is None: k.nstamp = 8
        k("s_mov_b32 s79, -1")
    k.label("mk_gemm")
    gen_gemm1(k)
    gen_gemm2(k)
    if lib.HPROF_WG is not None and lib.PROFILE: stamp_flush_dbg(k, lib.HPROF_WG)
    else: stamp_flush(k, waves=(0, 3))
    k.label("mk_end")
    return k
def main(out):
    k = build()
    s = HEADER
    s += "; Override launch geometry by editing the next line (default: block=256,\n"
    s += f"; @launch grid=(256,1,1) block=(256,1,1) lds={LDS_TOTAL}\n"
    s += '.amdgcn_target "amdgcn-amd-amdhsa--gfx950"\n.text\n'
    n = NAME + "_kernel"
    s += f".globl {n}\n.p2align 8\n.type {n},@function\n{n}:\n" + k.text() + "\n  s_endpgm\n" + "\n".join(k.tail) + "\nmk_codeend:\n"
    s += '.section .rodata,"a"\n' + kdesc(n, 512, 102, 256)
    open(out, "w").write(s)
if __name__ == "__main__":
    for a in list(sys.argv):
        if a.startswith("--outflag="):
            import lib; lib.OUTFLAG = a[10:].replace("+", " "); sys.argv.remove(a)
    if "--s1direct" in sys.argv:
        import lib; lib.S1DIRECT = True; sys.argv.remove("--s1direct")
    if "--xdirect" in sys.argv:
        import lib; lib.XDIRECT = True; sys.argv.remove("--xdirect")
    if "--tlbpf" in sys.argv:
        import lib; lib.TLBPF = True; sys.argv.remove("--tlbpf")
    if "--bfirst" in sys.argv:
        import lib; lib.BFIRST = True; sys.argv.remove("--bfirst")
    if "--codepf" in sys.argv:
        import lib; lib.CODEPF = True; sys.argv.remove("--codepf")
    if "--prof" in sys.argv:
        import lib; lib.PROFILE = True; sys.argv.remove("--prof")
        for a in list(sys.argv):
            if a.startswith("--hprof="): lib.HPROF_WG = int(a[8:]); sys.argv.remove(a); continue
            if a.startswith("--tags="): lib.TAGS = set(a[7:].split(",")); sys.argv.remove(a)
    main(sys.argv[1] if len(sys.argv) > 1 else "mk.s")
```

```python
class K:
    def __init__(self, name):
        self.name = name
        self.L = []
        self.nlab = 0
        self.tail = []
    def __call__(self, s):
        for line in s.split("\n"):
            line = line.strip()
            if line: self.L.append("  " + line)
    def label(self, l):
        self.L.append(l + ":")
    def newlab(self, base):
        self.nlab += 1
        return f"{self.name}_{base}_{self.nlab}"
    def c(self, s):
        self.L.append("  ; " + s)
    def text(self):
        return "\n".join(self.L)

def vr(a, n=1):
    return f"v{a}" if n == 1 else f"v[{a}:{a+n-1}]"
def sr(a, n=1):
    return f"s{a}" if n == 1 else f"s[{a}:{a+n-1}]"
def ar(a, n=1):
    return f"a{a}" if n == 1 else f"a[{a}:{a+n-1}]"

def srd(k, s, base_lo, base_hi, nbytes, off=0):
    if off:
        k(f"s_add_u32 s{s}, s{base_lo}, {off}")
        k(f"s_addc_u32 s{s+1}, s{base_hi}, 0")
    else:
        k(f"s_mov_b32 s{s}, s{base_lo}")
        k(f"s_mov_b32 s{s+1}, s{base_hi}")
    k(f"s_mov_b32 s{s+2}, {nbytes}")
    k(f"s_mov_b32 s{s+3}, 0x00020000")

def kdesc(name, vgpr, sgpr=96, accum=None):
    if accum is None: accum = (vgpr + 3) // 4 * 4
    return f""".p2align 6
.amdhsa_kernel {name}
  .amdhsa_next_free_vgpr {vgpr}
  .amdhsa_next_free_sgpr {sgpr}
  .amdhsa_accum_offset {accum}
  .amdhsa_group_segment_fixed_size 0
  .amdhsa_kernarg_size 128
  .amdhsa_user_sgpr_count 2
  .amdhsa_user_sgpr_kernarg_segment_ptr 1
  .amdhsa_system_sgpr_workgroup_id_x 1
.end_amdhsa_kernel
"""

def assemble_file(header, kernels):
    s = header
    for kk in kernels:
        s += f"; @launch kernel={kk['name']} grid=({kk['grid']},1,1) block=({kk['block']},1,1) lds={kk['lds']}\n"
    s += '.amdgcn_target "amdgcn-amd-amdhsa--gfx950"\n.text\n'
    seen = set()
    for kk in kernels:
        if kk['name'] in seen: continue
        seen.add(kk['name'])
        s += f".globl {kk['name']}\n.p2align 8\n.type {kk['name']},@function\n{kk['name']}:\n"
        s += kk['k'].text() + "\n  s_endpgm\n"
    s += '.section .rodata,"a"\n'
    seen = set()
    for kk in kernels:
        if kk['name'] in seen: continue
        seen.add(kk['name'])
        s += kdesc(kk['name'], kk['vgpr'], kk.get('sgpr', 102), kk.get('accum'))
    return s

def wave_sum_to_sgpr(k, v, t, sdst):
    k(f"s_nop 1")
    k(f"v_add_f32_dpp {vr(t)}, {vr(v)}, {vr(v)} quad_perm:[1,0,3,2] row_mask:0xf bank_mask:0xf")
    k(f"s_nop 1")
    k(f"v_add_f32_dpp {vr(v)}, {vr(t)}, {vr(t)} quad_perm:[2,3,0,1] row_mask:0xf bank_mask:0xf")
    k(f"s_nop 1")
    k(f"v_add_f32_dpp {vr(t)}, {vr(v)}, {vr(v)} row_half_mirror row_mask:0xf bank_mask:0xf")
    k(f"s_nop 1")
    k(f"v_add_f32_dpp {vr(v)}, {vr(t)}, {vr(t)} row_mirror row_mask:0xf bank_mask:0xf")
    k(f"s_nop 1")
    k(f"v_add_f32_dpp {vr(v)}, {vr(v)}, {vr(v)} row_bcast:15 row_mask:0xa bank_mask:0xf")
    k(f"s_nop 1")
    k(f"v_add_f32_dpp {vr(v)}, {vr(v)}, {vr(v)} row_bcast:31 row_mask:0xc bank_mask:0xf")
    k(f"s_nop 1")
    k(f"v_readlane_b32 s{sdst}, {vr(v)}, 63")

PROFILE = False
class Prof:
    n = 0
TAGS = None
def stamp(k, tag=""):
    import lib
    if not lib.PROFILE: return
    if lib.TAGS is not None and tag not in lib.TAGS: return
    if lib.TAGS is None and tag: return
    i = k.__dict__.setdefault("nstamp", 0)
    k(f"s_memtime s[98:99]")
    k("s_waitcnt lgkmcnt(0)")
    k(f"s_mov_b32 s{80+i}, s98")
    k.nstamp = i + 1
def stamp_init(k):
    import lib
    if not lib.PROFILE: return
    for i in range(80, 97): k(f"s_mov_b32 s{i}, 0x5a5a5a5a")
def stamp_flush(k, waves=(0, 3)):
    import lib
    if not lib.PROFILE: return
    n = k.__dict__.get("nstamp", 0)
    lab = k.newlab("pf")
    k("s_waitcnt vmcnt(0) lgkmcnt(0)")
    k(f"s_memtime s[98:99]")
    k("s_waitcnt lgkmcnt(0)")
    k(f"s_mov_b32 s{80+n}, s98")
    n += 1
    k("s_load_dwordx2 s[98:99], s[0:1], 120")
    k("s_waitcnt lgkmcnt(0)")
    k(f"s_add_u32 s98, s98, {200*1024*1024}\n s_addc_u32 s99, s99, 0")
    k(f"v_cmp_eq_u32 vcc, {64*waves[0]}, v0")
    k(f"v_mov_b32 v1, {64*waves[1]}")
    k("v_cmp_eq_u32 s[76:77], v1, v0")
    k("s_nop 1")
    k("v_cndmask_b32 v1, 0, 1, s[76:77]")
    k("v_lshlrev_b32 v1, 7, v1")
    k("s_lshl_b32 s78, s2, 8")
    k("v_add_u32 v1, s78, v1")
    k("s_or_b64 vcc, vcc, s[76:77]")
    k("s_and_saveexec_b64 s[76:77], vcc")
    k(f"s_cbranch_execz {lab}")
    for i in range(n):
        k(f"v_mov_b32 v2, s{80+i}")
        k(f"global_store_dword v1, v2, s[98:99] offset:{4*i}")
    k("s_waitcnt vmcnt(0)")
    k.label(lab)

HPROF_WG = None
def stamp_flush_dbg(k, wg):
    n = k.__dict__.get("nstamp", 0)
    lab = k.newlab("pf")
    k("s_waitcnt vmcnt(0) lgkmcnt(0)")
    k(f"s_memtime s[98:99]")
    k("s_waitcnt lgkmcnt(0)")
    k(f"s_mov_b32 s{80+n}, s98")
    n += 1
    k(f"s_cmp_lg_u32 s2, {wg}\n s_cbranch_scc1 {lab}")
    k("s_load_dwordx2 s[98:99], s[0:1], 112")
    k("s_waitcnt lgkmcnt(0)")
    k("v_cmp_eq_u32 vcc, 0, v0")
    k("s_and_saveexec_b64 s[76:77], vcc")
    k(f"s_cbranch_execz {lab}")
    k("v_mov_b32 v1, 0")
    for i in range(1, min(n, 15)):
        k(f"s_sub_u32 s78, s{80+i}, s80")
        k(f"v_mov_b32 v2, s78")
        k(f"global_store_dword v1, v2, s[98:99] offset:{4*(i+1)}")
    k("s_waitcnt vmcnt(0)")
    k.label(lab)

CODEPF = True
BFIRST = True
TLBPF = False
OUTFLAG = 'nt'
S1DIRECT = False
CONV_UNROLL = False
XDIRECT = True
```

```python
from mk_common import *

W1_LDS = 143360
LDS_TOTAL = W1_LDS + 1024

W2A = 56
W2V = 176
def w2_reg(i, p):
    if i < 10: return f"a[{W2A+20*i+4*p}:{W2A+20*i+4*p+3}]"
    return f"v[{W2V+20*(i-10)+4*p}:{W2V+20*(i-10)+4*p+3}]"
def w2_ops():
    ops = []
    for g0 in (0, 4, 8, 12):
        for p in range(5):
            for i in range(g0, min(g0 + 4, 14)):
                pre = ""
                if i == g0: pre = f"s_add_u32 s78, s76, {p*54*1024 + g0*1024}\n "
                if i == 13: pre = "s_add_u32 s78, s78, s77\n "
                ops.append(pre + f"buffer_load_dwordx4 {w2_reg(i, p)}, v5, s[{SRD_WS}:{SRD_WS+3}], s78 offen offset:{(i-g0)*1024} sc1")
    return ops
def w2_frag(i, p):
    return w2_reg(i, p)

def residual_loads(k):
    k(f"s_lshl_b32 s64, s6, 1\n s_lshr_b32 s65, s{S_WV}, 1\n s_add_u32 s64, s64, s65")
    k(f"s_mul_i32 s66, s64, 40960\n s_and_b32 s67, s{S_WV}, 1\n s_lshl_b32 s67, s67, 3\n s_add_u32 s66, s66, s67\n s_add_u32 s66, s66, {WS_HF}")
    k("s_mul_i32 s67, s7, 20")
    for p in range(5):
        if p < 4: k(f"v_lshlrev_b32 v18, 1, v{V_G}\n v_add_u32 v18, {8*(p>>1) + (p&1)}, v18")
        else: k(f"v_add_u32 v18, 16, v{V_G}")
        k("v_add_u32 v18, s67, v18")
        k("v_lshrrev_b32 v19, 3, v18\n v_lshlrev_b32 v19, 11, v19\n v_bfe_u32 v20, v18, 2, 1\n v_lshl_add_u32 v19, v20, 10, v19")
        k(f"v_and_b32 v20, 3, v18\n v_lshl_add_u32 v19, v20, 8, v19\n v_lshl_add_u32 v19, v{V_R}, 4, v19")
        k(f"buffer_load_dwordx2 v[{8+2*p}:{9+2*p}], v19, s[{SRD_WS}:{SRD_WS+3}], s66 offen sc1")

def gen_gemm1(k):
    k.c("======== GEMM1 ========")
    b = S_WG
    k(f"s_mov_b32 s4, s{S_MB}\n s_mov_b32 s5, s{S_FT0}")
    k(f"s_and_b32 s6, s{b}, 7\n s_lshr_b32 s6, s6, 1\n s_lshl_b32 s6, s6, 3\n s_lshr_b32 s64, s{b}, 3\n s_and_b32 s64, s64, 7\n s_add_u32 s6, s6, s64")
    k(f"s_and_b32 s7, s{b}, 1\n s_lshl_b32 s7, s7, 2\n s_lshr_b32 s64, s{b}, 6\n s_add_u32 s7, s7, s64")
    stamp(k, "s2")
    k("s_waitcnt lgkmcnt(0)\n s_barrier")
    labB = k.newlab("lb")
    k(f"s_cmp_eq_u32 s79, -1\n s_cbranch_scc1 {labB}\n s_cmp_eq_u32 s{S_WV}, 0\n s_cbranch_scc1 {labB}")
    dma_listB(k)
    k.label(labB)
    stamp(k, "s2")
    k(f"v_lshlrev_b32 v5, 4, v{V_LANE}")
    k(f"v_lshrrev_b32 v6, 2, v{V_LANE}\n v_mul_u32_u24 v6, 224, v6\n v_and_b32 v7, 3, v{V_LANE}\n v_lshl_add_u32 v6, v7, 3, v6")
    k("v_add_u32 v8, 0x10000, v6\n v_add_u32 v9, 0x20000, v6")
    stamp(k)
    B = 96
    k(f"s_lshl_b32 s64, s4, 2\n s_add_u32 s64, s64, s{S_WV}")
    k(f"s_mul_i32 s74, s64, 40960\n s_add_u32 s74, s74, {WS_HF}")
    k(f"s_mul_i32 s68, s{S_WV}, 14\n s_cmp_eq_u32 s{S_WV}, 3\n s_cselect_b32 s69, 1, 0\n s_sub_u32 s68, s68, s69")
    k(f"s_mul_i32 s76, s7, 270\n s_add_u32 s76, s76, s68\n s_lshl_b32 s76, s76, 10\n s_add_u32 s76, s76, {WS_WF2}")
    k(f"s_cmp_ge_u32 s{S_WV}, 2\n s_cselect_b32 s77, 0x40000000, 0")
    ACC = 24; S1 = 80; S2 = 88
    k("v_mov_b32 v20, 0x3f803f80\n v_mov_b32 v21, 0x3f803f80\n v_mov_b32 v22, 0x3f803f80\n v_mov_b32 v23, 0x3f803f80")
    k(f"s_mov_b32 s75, s74")
    NB = 6; PRE = 5
    vm = []
    def loadB(s):
        r = B + 8*(s % NB)
        k(f"buffer_load_dwordx4 v[{r}:{r+3}], v5, s[{SRD_WS}:{SRD_WS+3}], s74 offen sc1"); vm.append(("B", s))
        k(f"buffer_load_dwordx4 v[{r+4}:{r+7}], v5, s[{SRD_WS}:{SRD_WS+3}], s74 offen offset:1024 sc1"); vm.append(("B", s))
        if s < 19: k("s_add_u32 s74, s74, 2048")
    lab = k.newlab("prb"); done = k.newlab("prbd"); skip = k.newlab("prbs")
    k(f"s_cmp_lg_u32 s{S_WV}, 0\n s_cbranch_scc1 {skip}")
    for i in range(3):
        k(f"v_add_u32 v12, {64*i}, v{V_LANE}\n v_lshrrev_b32 v13, 3, v12\n v_lshlrev_b32 v13, 11, v13\n v_bfe_u32 v14, v12, 2, 1\n v_lshl_add_u32 v13, v14, 10, v13\n v_and_b32 v14, 3, v12\n v_lshl_add_u32 v{16+i}, v14, 8, v13")
    k(f"v_min_u32 v18, {19*2048 + 1024 + 3*256}, v18")
    k(f"s_mov_b32 s72, {WS_HF + 63*40960 + 240}\n s_mov_b32 s73, 0")
    k.label(lab)
    for i in range(3): k(f"buffer_load_dword v{12+i}, v{16+i}, s[{SRD_WS}:{SRD_WS+3}], s72 offen sc1")
    k("s_add_u32 s73, s73, 1\n s_waitcnt vmcnt(0)\n v_max3_u32 v12, v12, v13, v14")
    k(f"v_cmp_eq_u32 vcc, -1, v12\n s_cmp_gt_u32 s73, {SPIN_MAX}\n s_cbranch_scc1 {done}\n s_cbranch_vccz {done}\n s_sleep 1\n s_branch {lab}")
    k.label(done)
    k.label(skip)
    stamp(k, "s2")
    k("s_waitcnt vmcnt(0)")
    stamp(k, "s2")
    k("s_barrier")
    stamp(k); stamp(k, "s2")
    k("s_mov_b32 s71, 0")
    k.label("g1_retry")
    k("s_mov_b32 s74, s75")
    for s in range(PRE): loadB(s)
    def readA1(s, buf, ftl, hh):
        o = s*7168 + ftl*32 + 3584*hh
        reg = (6, 8, 9)[o // 65536]
        a0 = 28*buf + 4*ftl + 2*hh
        k(f"ds_read_b64_tr_b16 a[{a0}:{a0+1}], v{reg} offset:{o % 65536}")
    w2q = w2_ops()
    def wait_swap(s):
        last = max(i for i, e in enumerate(vm) if e == ("B", s))
        k(f"s_waitcnt vmcnt({len(vm) - 1 - last})")
        if s in (0, 1, 2, 4, 7, 10, 13, 16, 19): stamp(k, "g1")
        b0 = B + 8*(s % NB)
        if s == 0: k(f"v_max3_u32 v10, v{b0}, v{b0+1}, v{b0+2}\n v_max3_u32 v11, v{b0+3}, v{b0+4}, v{b0+5}\n v_max3_u32 v10, v10, v{b0+6}, v{b0+7}")
        else: k(f"v_max3_u32 v10, v10, v{b0}, v{b0+1}\n v_max3_u32 v11, v11, v{b0+2}, v{b0+3}\n v_max3_u32 v10, v10, v{b0+4}, v{b0+5}\n v_max3_u32 v11, v11, v{b0+6}, v{b0+7}")
        k(f"v_swap_b32 v{b0+2}, v{b0+4}\n v_swap_b32 v{b0+3}, v{b0+5}")
    for ftl in range(7):
        for hh in range(2): readA1(0, 0, ftl, hh)
    wait_swap(0)
    for s in range(20):
        buf = s % 2
        b0 = B + 8*(s % NB)
        k("s_waitcnt lgkmcnt(0)")
        if s == 0: k("s_nop 0")
        fill = [(ftl, hh) for ftl in range(7) for hh in range(2)] if s < 19 else []
        seq = []
        for ftl in range(7):
            for tt in range(2):
                c = ACC + 4*(ftl*2+tt); a0 = 28*buf + 4*ftl
                cin = "0" if s == 0 else f"v[{c}:{c+3}]"
                seq.append(f"v_mfma_f32_16x16x32_bf16 v[{c}:{c+3}], a[{a0}:{a0+3}], v[{b0+4*tt}:{b0+4*tt+3}], {cin}")
        for tt in range(2):
            c1 = "0" if s == 0 else f"v[{S1+4*tt}:{S1+4*tt+3}]"; c2 = "0" if s == 0 else f"v[{S2+4*tt}:{S2+4*tt+3}]"
            seq.append(f"v_mfma_f32_16x16x32_bf16 v[{S1+4*tt}:{S1+4*tt+3}], v[20:23], v[{b0+4*tt}:{b0+4*tt+3}], {c1}")
            seq.append(f"v_mfma_f32_16x16x32_bf16 v[{S2+4*tt}:{S2+4*tt+3}], v[{b0+4*tt}:{b0+4*tt+3}], v[{b0+4*tt}:{b0+4*tt+3}], {c2}")
        for i, m in enumerate(seq):
            k(m)
            if i < len(fill): readA1(s+1, 1-buf, *fill[i])
            if i == 14:
                if s + 1 < 20: wait_swap(s + 1)
            if i == 15 and s + PRE < 20: loadB(s + PRE)
            if (i in (16, 17) or (i == 13 and s % 2 == 0)) and w2q:
                k(w2q.pop(0)); vm.append(("W", 0))
    k("v_max_u32 v10, v10, v11\n v_cmp_eq_u32 vcc, -1, v10\n s_cbranch_vccnz g1_redo")
    k.label("g1_ok")
    k.tail.append(f"g1_redo:\n  s_add_u32 s71, s71, 1\n  s_cmp_gt_u32 s71, 20000\n  s_cbranch_scc1 g1_ok\n  s_sleep 8\n  s_branch g1_retry")
    stamp(k); stamp(k, "g1")
    k("s_nop 1")
    k(f"v_and_b32 v10, 3, v{V_R}\n v_lshrrev_b32 v11, 2, v{V_R}\n v_lshl_add_u32 v11, v11, 4, v{V_R}\n v_lshlrev_b32 v11, 2, v11")
    k("v_cmp_eq_u32 s[64:65], 1, v10\n v_cmp_eq_u32 s[66:67], 2, v10\n v_cmp_eq_u32 s[68:69], 3, v10")
    CS = (104, 112); B1 = (108, 116)
    k(f"v_lshlrev_b32 v7, 4, v{V_G}\n v_add_u32 v7, {CB_OFF}, v7")
    k(f"ds_read_b128 v[{CS[0]}:{CS[0]+3}], v7\n ds_read_b128 v[{B1[0]}:{B1[0]+3}], v7 offset:448")
    for q, sp in ((1, 64), (2, 66), (3, 68)):
        for tt in range(2):
            bb = S2 + 4*tt
            k(f"v_cndmask_b32 v{bb}, v{bb}, v{bb+q}, s[{sp}:{sp+1}]")
    for tt in range(2):
        k(f"ds_bpermute_b32 v{S2+4*tt+1}, v11, v{S2+4*tt}")
    RR = (96, 100)
    for tt in range(2): k(f"v_mul_f32 v{S1+4*tt}, 0x3acccccd, v{S1+4*tt}")
    k(f"s_lshl_b32 s64, s4, 2\n s_add_u32 s64, s64, s{S_WV}\n s_mul_i32 s64, s64, {108*1024}\n s_lshl_b32 s65, s5, 10\n s_add_u32 s64, s64, s65\n s_add_u32 s64, s64, {WS_ACT}")
    k(f"s_mov_b32 s70, {LOG2E:#x}")
    k("s_waitcnt lgkmcnt(0)")
    Q = [S2 + 1, S2 + 5]; M = [S1, S1 + 4]
    def both(f):
        for tt in range(2): k(f(tt))
    both(lambda t: f"v_mul_f32 v{Q[t]}, 0x3acccccd, v{Q[t]}")
    both(lambda t: f"v_fma_f32 v{Q[t]}, -v{M[t]}, v{M[t]}, v{Q[t]}")
    both(lambda t: f"v_max_f32 v{Q[t]}, 0, v{Q[t]}")
    both(lambda t: f"v_cvt_pk_bf16_f32 v{Q[t]}, v{Q[t]}, v{Q[t]}")
    both(lambda t: f"v_lshlrev_b32 v{Q[t]}, 16, v{Q[t]}")
    both(lambda t: f"v_add_f32 v{Q[t]}, 0x3727c5ac, v{Q[t]}")
    both(lambda t: f"v_cvt_pk_bf16_f32 v{Q[t]}, v{Q[t]}, v{Q[t]}")
    both(lambda t: f"v_lshlrev_b32 v{Q[t]}, 16, v{Q[t]}")
    both(lambda t: f"v_sqrt_f32 v{Q[t]}, v{Q[t]}")
    both(lambda t: f"v_cvt_pk_bf16_f32 v{M[t]}, v{M[t]}, v{M[t]}")
    both(lambda t: f"v_cvt_pk_bf16_f32 v{Q[t]}, v{Q[t]}, v{Q[t]}")
    both(lambda t: f"v_lshlrev_b32 v{M[t]}, 16, v{M[t]}")
    both(lambda t: f"v_lshlrev_b32 v{Q[t]}, 16, v{Q[t]}")
    both(lambda t: f"v_rcp_f32 v{RR[t]}, v{Q[t]}")
    k("s_nop 0")
    both(lambda t: f"v_mul_f32 v{RR[t]+2}, -v{M[t]}, v{RR[t]}")
    TM = 120; E = (128, 136); PP = (144, 152); OUT = (160, 164)
    def stageA(ftl):
        bsel = ftl % 2; e0 = E[bsel]; out = []
        for tt in range(2):
            c = ACC + 4*(ftl*2+tt); nrm = RR[tt] + 2; t = TM + 4*tt
            for h in range(2): out.append(f"v_pk_fma_f32 v[{t+2*h}:{t+2*h+1}], v[{CS[bsel]+2*h}:{CS[bsel]+2*h+1}], v[{nrm}:{nrm+1}], v[{B1[bsel]+2*h}:{B1[bsel]+2*h+1}] op_sel_hi:[1,0,1]")
        for tt in range(2):
            c = ACC + 4*(ftl*2+tt); r = RR[tt]; t = TM + 4*tt
            for h in range(2): out.append(f"v_pk_fma_f32 v[{c+2*h}:{c+2*h+1}], v[{c+2*h}:{c+2*h+1}], v[{r}:{r+1}], v[{t+2*h}:{t+2*h+1}] op_sel_hi:[1,0,1]")
        for tt in range(2):
            c = ACC + 4*(ftl*2+tt); e = e0 + 4*tt
            for h in range(2): out.append(f"v_pk_mul_f32 v[{e+2*h}:{e+2*h+1}], v[{c+2*h}:{c+2*h+1}], s[70:71] op_sel_hi:[1,0]")
        return out
    def stageExp(ftl): return [f"v_exp_f32 v{E[ftl%2]+i}, v{E[ftl%2]+i}" for i in range(8)]
    def stageB(ftl):
        e0 = E[ftl % 2]; p0 = PP[ftl % 2]; out = []
        for j in range(4): out.append(f"v_pk_add_f32 v[{p0+2*j}:{p0+2*j+1}], v[{e0+2*j}:{e0+2*j+1}], 2.0 op_sel_hi:[1,0]")
        for j in range(4): out.append(f"v_pk_fma_f32 v[{p0+2*j}:{p0+2*j+1}], v[{e0+2*j}:{e0+2*j+1}], v[{p0+2*j}:{p0+2*j+1}], 2.0 op_sel_hi:[1,1,0]")
        return out
    def stageRcp(ftl): return [f"v_rcp_f32 v{PP[ftl%2]+i}, v{PP[ftl%2]+i}" for i in range(8)]
    def stageC(ftl):
        p0 = PP[ftl % 2]; o = OUT[ftl % 2]; out = []
        for j in range(4): out.append(f"v_pk_fma_f32 v[{p0+2*j}:{p0+2*j+1}], v[{p0+2*j}:{p0+2*j+1}], -2.0, 1.0 op_sel_hi:[1,0,0]")
        for tt in range(2):
            c = ACC + 4*(ftl*2+tt)
            for h in range(2): out.append(f"v_pk_mul_f32 v[{p0+4*tt+2*h}:{p0+4*tt+2*h+1}], v[{p0+4*tt+2*h}:{p0+4*tt+2*h+1}], v[{c+2*h}:{c+2*h+1}]")
        for tt in range(2):
            out.append(f"v_cvt_pk_bf16_f32 v{o+2*tt}, v{p0+4*tt}, v{p0+4*tt+1}"); out.append(f"v_cvt_pk_bf16_f32 v{o+2*tt+1}, v{p0+4*tt+2}, v{p0+4*tt+3}")
        return out
    def ilv(a, b):
        out = []; na, nb = len(a), len(b); i = j = 0
        while i < na or j < nb:
            if i < na: out.append(a[i]); i += 1
            if j < nb and (i * nb >= j * na or i >= na): out.append(b[j]); j += 1
        return out
    def emit(seq, nload):
        n = len(seq); done = 0
        for i, x in enumerate(seq):
            k(x)
            if nload and w2q and done < nload and (i + 1) * nload >= (done + 1) * n - n // 2:
                k(w2q.pop(0)); done += 1
    for f in range(8):
        if f < 7 and f + 1 < 7:
            nb = (f + 1) % 2
            k(f"ds_read_b128 v[{CS[nb]}:{CS[nb]+3}], v7 offset:{64*(f+1)}\n ds_read_b128 v[{B1[nb]}:{B1[nb]+3}], v7 offset:{448 + 64*(f+1)}")
        A_ = stageA(f) if f < 7 else []
        R_ = stageRcp(f-1) if f >= 1 else []
        emit(ilv(R_, A_), 0)
        X_ = stageExp(f) if f < 7 else []
        C_ = stageC(f-1) if f >= 1 else []
        if f >= 1 and f == 7: k("s_nop 0")
        emit(ilv(X_, C_), 0)
        if f >= 1:
            o = OUT[(f-1) % 2]
            k(f"buffer_store_dwordx4 v[{o}:{o+3}], v5, s[{SRD_WS}:{SRD_WS+3}], s64 offen sc1")
            if f < 7: k("s_add_u32 s64, s64, 1024")
        if f < 7:
            k("s_nop 0")
            for x in stageB(f): k(x)
            if f + 1 < 7: k("s_waitcnt lgkmcnt(0)")
    stamp(k); stamp(k, "g2")
    k(f"s_and_b32 s65, s{S_WG}, 1\n s_lshl_b32 s65, s65, 3\n s_lshr_b32 s66, s{S_WG}, 5\n s_add_u32 s65, s65, s66\n s_lshl_b32 s65, s65, 2")
    k(f"s_add_u32 s64, s4, 33\n s_lshl_b32 s64, s64, 7\n s_add_u32 s64, s64, s65\n s_add_u32 s64, s64, {WS_SYNC}")
    lab = k.newlab("s3f")
    k(f"s_waitcnt vmcnt(0)\n s_barrier\n s_cmp_lg_u32 s{S_WV}, 0\n s_cbranch_scc1 {lab}")
    k(f"v_mov_b32 v4, 1\n v_mov_b32 v7, 0\n s_mov_b64 exec, 1\n buffer_store_dword v4, v7, s[{SRD_WS}:{SRD_WS+3}], s64 offen sc1\n s_mov_b64 exec, -1")
    k.label(lab)
    for x in w2q: k(x)

def gen_gemm2(k):
    k.c("======== GEMM2 ========")
    k(f"s_lshr_b32 s64, s6, 1\n s_add_u32 s64, s64, 33\n s_lshl_b32 s64, s64, 7\n s_add_u32 s64, s64, {WS_SYNC}")
    stamp(k, "g2")
    poll_flags(k, SRD_WS, 64, 16, sleep=1)
    stamp(k); stamp(k, "g2")
    ACC = 24; RING = 104; NR = 4
    k(f"s_mul_i32 s68, s{S_WV}, 14\n s_cmp_eq_u32 s{S_WV}, 3\n s_cselect_b32 s69, 1, 0\n s_sub_u32 s68, s68, s69")
    k(f"s_mul_i32 s70, s6, 216\n s_lshl_b32 s71, s68, 1\n s_add_u32 s70, s70, s71\n s_lshl_b32 s70, s70, 10\n s_add_u32 s70, s70, {WS_ACT}")
    def issue(i):
        st = RING + 16*(i % NR)
        for Tl in range(2):
            k(f"s_add_u32 s71, s70, {Tl*108*1024 + i*2048}")
            if i == 13: k("s_add_u32 s71, s71, s77")
            k(f"buffer_load_dwordx4 v[{st+8*Tl}:{st+8*Tl+3}], v5, s[{SRD_WS}:{SRD_WS+3}], s71 offen sc1")
            k(f"buffer_load_dwordx4 v[{st+8*Tl+4}:{st+8*Tl+7}], v5, s[{SRD_WS}:{SRD_WS+3}], s71 offen offset:1024 sc1")
    for i in range(NR): issue(i)
    def issue_ops(i):
        st = RING + 16*(i % NR); ops = []
        for Tl in range(2):
            pre = f"s_add_u32 s{71+Tl}, s70, {Tl*108*1024 + i*2048}"
            if i == 13: pre += f"\n s_add_u32 s{71+Tl}, s{71+Tl}, s77"
            ops.append(pre + f"\n buffer_load_dwordx4 v[{st+8*Tl}:{st+8*Tl+3}], v5, s[{SRD_WS}:{SRD_WS+3}], s{71+Tl} offen sc1")
            ops.append(f"buffer_load_dwordx4 v[{st+8*Tl+4}:{st+8*Tl+7}], v5, s[{SRD_WS}:{SRD_WS+3}], s{71+Tl} offen offset:1024 sc1")
        return ops
    residual_loads(k)
    vm2 = [i for i in range(NR) for _ in range(4)] + [-1]*5
    def wait_swap2(i):
        last = max(j for j, e in enumerate(vm2) if e == i)
        k(f"s_waitcnt vmcnt({len(vm2) - 1 - last})")
        if i in (0, 1, 3, 6, 9, 13): stamp(k, "g2")
        st = RING + 16*(i % NR)
        for Tl in range(2):
            b0 = st + 8*Tl
            k(f"v_swap_b32 v{b0+2}, v{b0+4}\n v_swap_b32 v{b0+3}, v{b0+5}")
    wait_swap2(0)
    k("s_nop 0")
    for i in range(14):
        st = RING + 16*(i % NR)
        pend = issue_ops(i - 1 + NR) if (i >= 1 and i - 1 + NR < 14) else []
        n = 0
        for p in range(5):
            for tt in range(4):
                c = ACC + 4*(p*4+tt)
                cin = "0" if i == 0 else f"v[{c}:{c+3}]"
                k(f"v_mfma_f32_16x16x32_bf16 v[{c}:{c+3}], {w2_frag(i, p)}, v[{st+4*tt}:{st+4*tt+3}], {cin}")
                n += 1
                if pend and n in (1, 3, 5, 7):
                    k(pend.pop(0)); vm2.append(i - 1 + NR)
                if n == 14 and i + 1 < 14: wait_swap2(i + 1)
    stamp(k); stamp(k, "g2")
    k(f"s_mul_i32 s64, s{S_WV}, 20480\n v_add_u32 v18, s64, v5")
    k("s_nop 6")
    for tt in range(4):
        lab = k.newlab("skipw")
        k(f"s_cmp_eq_u32 s{S_WV}, {tt}\n s_cbranch_scc1 {lab}")
        for p in range(5):
            c = ACC + 4*(p*4+tt)
            k(f"ds_write_b128 v18, v[{c}:{c+3}] offset:{tt*5120 + p*1024}")
        k.label(lab)
    for tt in range(4):
        lab = k.newlab("skipm")
        k(f"s_cmp_lg_u32 s{S_WV}, {tt}\n s_cbranch_scc1 {lab}")
        for p in range(5):
            c = ACC + 4*(p*4+tt)
            k(f"v_pk_mov_b32 v[{104+4*p}:{105+4*p}], v[{c}:{c+1}], v[{c}:{c+1}] op_sel:[0,1]\n v_pk_mov_b32 v[{106+4*p}:{107+4*p}], v[{c+2}:{c+3}], v[{c+2}:{c+3}] op_sel:[0,1]")
        k.label(lab)
    k("s_waitcnt lgkmcnt(0)\n s_barrier")
    for j in range(1, 4):
        k(f"s_add_u32 s64, s{S_WV}, {j}\n s_and_b32 s64, s64, 3\n s_mul_i32 s64, s64, 20480\n s_mul_i32 s65, s{S_WV}, 5120\n s_add_u32 s64, s64, s65")
        k(f"v_add_u32 v18, s64, v5")
        for p in range(5):
            d = 124 + 20*(j-1) + 4*p
            k(f"ds_read_b128 v[{d}:{d+3}], v18 offset:{p*1024}")
    k("s_waitcnt lgkmcnt(0)")
    for j in range(3):
        for i in range(0, 20, 2):
            k(f"v_pk_add_f32 v[{104+i}:{105+i}], v[{104+i}:{105+i}], v[{124+20*j+i}:{125+20*j+i}]")
    for p in range(5):
        for h in range(2):
            k(f"v_lshlrev_b32 v18, 16, v{8+2*p+h}\n v_and_b32 v19, 0xffff0000, v{8+2*p+h}")
            k(f"v_pk_add_f32 v[{104+4*p+2*h}:{105+4*p+2*h}], v[{104+4*p+2*h}:{105+4*p+2*h}], v[18:19]")
    for p in range(5):
        k(f"v_cvt_pk_bf16_f32 v{24+2*p}, v{104+4*p}, v{105+4*p}\n v_cvt_pk_bf16_f32 v{25+2*p}, v{106+4*p}, v{107+4*p}")
    k(f"s_lshl_b32 s64, s6, 1\n s_lshr_b32 s65, s{S_WV}, 1\n s_add_u32 s64, s64, s65\n s_lshl_b32 s64, s64, 5\n s_and_b32 s65, s{S_WV}, 1\n s_add_u32 s64, s64, s65")
    k("s_mul_i32 s64, s64, 1280\n s_mul_i32 s65, s7, 160\n s_add_u32 s64, s64, s65")
    k(f"v_mul_u32_u24 v18, 2560, v{V_R}\n v_lshl_add_u32 v19, v{V_G}, 4, v18\n v_lshl_add_u32 v20, v{V_G}, 3, v18")
    import lib
    fl = lib.OUTFLAG
    k(f"buffer_store_dwordx4 v[24:27], v19, s[{SRD_OUT}:{SRD_OUT+3}], s64 offen {fl}")
    k(f"buffer_store_dwordx4 v[28:31], v19, s[{SRD_OUT}:{SRD_OUT+3}], s64 offen offset:64 {fl}")
    k(f"buffer_store_dwordx2 v[32:33], v20, s[{SRD_OUT}:{SRD_OUT+3}], s64 offen offset:128 {fl}")
```

```python
from mk_common import *

T_WAVE = 16896; T_SLOT = 8448; T_ROW = 528
KC_OFF = 67584; KC_CH = 1536
KEO_OFF = 73728; KEO_CH = 8320; O_REL = 4160
U_OFF = 107008; U_CH = 4608
YT_OFF = 73728; YT_CH = 10240

def pk_cmul_inplace(k, ar, ai, br, bi, t, t2):
    k(f"v_pk_mul_f32 v[{t}:{t+1}], v[{ar}:{ar+1}], v[{br}:{br+1}]")
    k(f"v_pk_mul_f32 v[{t2}:{t2+1}], v[{ar}:{ar+1}], v[{bi}:{bi+1}]")
    k(f"v_pk_fma_f32 v[{ar}:{ar+1}], v[{ai}:{ai+1}], v[{bi}:{bi+1}], v[{t}:{t+1}] neg_lo:[1,0,0] neg_hi:[1,0,0]")
    k(f"v_pk_fma_f32 v[{ai}:{ai+1}], v[{ai}:{ai+1}], v[{br}:{br+1}], v[{t2}:{t2+1}]")
def pk_cmul(k, dr, di, ar, ai, br, bi, t, t2):
    k(f"v_pk_mul_f32 v[{t}:{t+1}], v[{ar}:{ar+1}], v[{br}:{br+1}]")
    k(f"v_pk_mul_f32 v[{t2}:{t2+1}], v[{ar}:{ar+1}], v[{bi}:{bi+1}]")
    k(f"v_pk_fma_f32 v[{dr}:{dr+1}], v[{ai}:{ai+1}], v[{bi}:{bi+1}], v[{t}:{t+1}] neg_lo:[1,0,0] neg_hi:[1,0,0]")
    k(f"v_pk_fma_f32 v[{di}:{di+1}], v[{ai}:{ai+1}], v[{br}:{br+1}], v[{t2}:{t2+1}]")
def pk_csq(k, dr, di, ar, ai, t):
    k(f"v_pk_mul_f32 v[{t}:{t+1}], v[{ai}:{ai+1}], v[{ai}:{ai+1}]")
    k(f"v_pk_add_f32 v[{di}:{di+1}], v[{ar}:{ar+1}], v[{ar}:{ar+1}]")
    k(f"v_pk_fma_f32 v[{dr}:{dr+1}], v[{ar}:{ar+1}], v[{ar}:{ar+1}], v[{t}:{t+1}] neg_lo:[0,0,1] neg_hi:[0,0,1]")
    k(f"v_pk_mul_f32 v[{di}:{di+1}], v[{di}:{di+1}], v[{ai}:{ai+1}]")

def gen_conv(k):
    k.c("======== role A: K-gen + conv ========")
    X = 8
    ST = 24
    P = 40
    k("s_lshl_b32 s5, s4, 3")
    k(f"s_add_u32 s64, s{P_LDT}, s5\n s_addc_u32 s65, s{P_LDT+1}, 0")
    k(f"s_add_u32 s66, s{P_DSK}, s5\n s_addc_u32 s67, s{P_DSK+1}, 0")
    k("s_load_dwordx2 s[68:69], s[64:65], 0")
    k("s_load_dwordx2 s[6:7], s[66:67], 0")
    k(f"s_lshl_b32 s70, s4, 2\n s_add_u32 s70, s70, s{S_WV}\n s_lshl_b32 s70, s70, 8")
    k(f"v_lshlrev_b32 v5, 2, v{V_LANE}\n v_add_u32 v5, s70, v5")
    for i, p in enumerate((P_ARE, P_AIM, P_BRE, P_BIM, P_CRE, P_CIM)):
        k(f"global_load_dword v{56+i}, v5, s[{p}:{p+1}]")
    k("v_mov_b32 v64, 0\n v_mov_b32 v65, 0\n v_mov_b32 v66, 0\n v_mov_b32 v67, 0")
    k(f"v_lshrrev_b32 v68, 5, v{V_TID}\n v_mul_u32_u24 v68, {U_CH}, v68\n v_and_b32 v69, 31, v{V_TID}\n v_lshl_add_u32 v68, v69, 4, v68\n v_add_u32 v68, {U_OFF}, v68")
    k(f"v_subrev_u32 v70, 128, v{V_TID}\n v_lshrrev_b32 v71, 4, v70\n v_mul_u32_u24 v71, {KEO_CH}, v71\n v_bfe_u32 v72, v70, 3, 1\n v_mul_u32_u24 v72, {O_REL}, v72\n v_add_u32 v71, v71, v72")
    k(f"v_and_b32 v72, 7, v70\n v_lshl_add_u32 v71, v72, 2, v71\n v_add_u32 v71, {KEO_OFF + 4096}, v71")
    k(f"s_cmp_ge_u32 s{S_WV}, 2\n s_cbranch_scc1 conv_z1")
    k("ds_write_b128 v68, v[64:67]")
    k.label("conv_z1")
    k(f"s_cmp_lg_u32 s{S_WV}, 2\n s_cbranch_scc1 conv_z2")
    k("ds_write_b32 v71, v64")
    k.label("conv_z2")
    for jq in range(2):
        for j in range(5):
            d = 8 + 5*jq + j
            k(f"v_lshlrev_b32 v22, 2, v{V_TID}")
            k(f"v_sub_u32 v22, {2047 - 1024*jq - j}, v22")
            k("v_cvt_f32_i32 v23, v22")
            k("v_cvt_pk_bf16_f32 v23, v23, v23")
            k("v_and_b32 v23, 0xffff, v23\n v_subrev_u32 v23, 17024, v23")
            k("v_cmp_gt_i32 vcc, 128, v22\n s_nop 1\n v_cndmask_b32 v23, v23, v22, vcc")
            if jq == 1 and j == 4:
                k("v_cmp_gt_i32 vcc, 0, v22\n v_mov_b32 v21, 641\n s_nop 0\n v_cndmask_b32 v23, v23, v21, vcc")
            k(f"v_lshlrev_b32 v{d}, 1, v23\n v_add_u32 v{d}, {KC_OFF}, v{d}")
    k(f"s_mul_i32 s70, s{S_WV}, {KC_CH}\n s_add_u32 s70, s70, {KC_OFF}")
    k(f"v_lshlrev_b32 v18, 5, v{V_R}\n v_lshl_add_u32 v18, v{V_G}, 3, v18\n v_add_u32 v18, s70, v18")
    k(f"v_lshlrev_b32 v19, 4, v{V_R}\n v_lshl_add_u32 v19, v{V_G}, 3, v19\n v_add_u32 v19, 512, v19")
    k(f"v_lshlrev_b32 v20, 3, v{V_R}\n v_lshl_add_u32 v20, v{V_G}, 7, v20\n v_add_u32 v20, 512, v20")
    k(f"v_cmp_gt_u32 vcc, 2, v{V_G}\n s_nop 1\n v_cndmask_b32 v19, v20, v19, vcc\n v_add_u32 v19, s70, v19")
    k(f"v_lshlrev_b32 v20, 2, v{V_R}\n v_lshl_add_u32 v20, v{V_G}, 7, v20\n v_add_u32 v20, 1024, v20\n v_add_u32 v20, s70, v20")
    k(f"s_mul_i32 s70, s{S_WV}, {T_WAVE}")
    k(f"v_lshlrev_b32 v106, 3, v{V_LANE}\n v_add_u32 v106, s70, v106")
    k(f"v_mul_u32_u24 v107, {T_ROW}, v{V_R}\n v_lshl_add_u32 v107, v{V_G}, 4, v107\n v_add_u32 v107, s70, v107")
    k("s_waitcnt lgkmcnt(0)")
    k(f"s_cmp_ge_u32 s{S_WV}, 2\n s_cselect_b32 s70, s69, s68\n s_and_b32 s71, s{S_WV}, 1\n s_lshl_b32 s71, s71, 4\n s_lshr_b32 s70, s70, s71\n s_lshl_b32 s70, s70, 16")
    k(f"v_mov_b32 v64, {LOG2E:#x}\n v_mul_f32 v64, s70, v64\n v_exp_f32 v64, v64\n s_nop 0")
    bf16_round(k, 64)
    k("v_mov_b32 v65, v64")
    k("s_waitcnt vmcnt(0)")
    stamp(k)
    stamp(k, "kg")
    for i in range(6):
        k(f"v_lshlrev_b32 v{66+2*i}, 16, v{56+i}\n v_and_b32 v{67+2*i}, 0xffff0000, v{56+i}")
    k(f"s_mov_b32 s70, {LOG2E:#x}\n s_mov_b32 s72, {INV2PI:#x}")
    k("v_pk_mul_f32 v[66:67], v[66:67], v[64:65]\n v_pk_mul_f32 v[68:69], v[68:69], v[64:65]")
    k("v_pk_mul_f32 v[70:71], v[70:71], v[64:65]\n v_pk_mul_f32 v[72:73], v[72:73], v[64:65]")
    k("v_pk_mul_f32 v[66:67], v[66:67], s[70:71] op_sel_hi:[1,0]")
    k("v_pk_mul_f32 v[68:69], v[68:69], s[72:73] op_sel_hi:[1,0]")
    pk_cmul(k, 78, 80, 74, 76, 70, 72, 56, 58)
    def direct(dr, di, e):
        k(f"s_mov_b32 s74, {f2h(e)}")
        k("v_pk_mul_f32 v[56:57], v[66:67], s[74:75] op_sel_hi:[1,0]")
        k("v_pk_mul_f32 v[58:59], v[68:69], s[74:75] op_sel_hi:[1,0]")
        k("v_exp_f32 v56, v56\n v_exp_f32 v57, v57\n v_fract_f32 v58, v58\n v_fract_f32 v59, v59")
        k(f"v_cos_f32 v{dr}, v58\n v_cos_f32 v{dr+1}, v59\n v_sin_f32 v{di}, v58\n v_sin_f32 v{di+1}, v59\n s_nop 0")
        k(f"v_pk_mul_f32 v[{dr}:{dr+1}], v[{dr}:{dr+1}], v[56:57]\n v_pk_mul_f32 v[{di}:{di+1}], v[{di}:{di+1}], v[56:57]")
    Z1, Z16, Z256, Z2, Z4, Z8 = (82, 84), (86, 88), (90, 92), (94, 96), (98, 100), (102, 104)
    direct(*Z1, 1); direct(*Z16, 16); direct(*Z256, 256)
    pk_csq(k, *Z2, *Z1, 56); pk_csq(k, *Z4, *Z2, 56); pk_csq(k, *Z8, *Z4, 56)
    stamp(k, "kg")
    CR, CI = 78, 80
    pk = [108, 110, 112, 114]; cnt = [0]
    def put(slot, row, re, im, neg=False):
        p = pk[cnt[0] % 4]; cnt[0] += 1
        n = "-" if neg else ""
        k(f"v_cvt_pk_bf16_f32 v{p}, v{re}, {n}v{im}\n v_cvt_pk_bf16_f32 v{p+1}, v{re+1}, {n}v{im+1}")
        k(f"ds_write_b64 v106, v[{p}:{p+1}] offset:{slot*T_SLOT + row*T_ROW}")
    A1, A2 = (116, 118), (120, 122)
    T1, T2, T3, T4 = 56, 58, 60, 62
    def mov2(d, s):
        k(f"v_pk_mov_b32 v[{d[0]}:{d[0]+1}], v[{s[0]}:{s[0]+1}], v[{s[0]}:{s[0]+1}] op_sel:[0,1]")
        k(f"v_pk_mov_b32 v[{d[1]}:{d[1]+1}], v[{s[1]}:{s[1]+1}], v[{s[1]}:{s[1]+1}] op_sel:[0,1]")
    k(f"v_mov_b32 v{A1[0]}, 1.0\n v_mov_b32 v{A1[0]+1}, 1.0\n v_mov_b32 v{A1[1]}, 0\n v_mov_b32 v{A1[1]+1}, 0")
    put(0, 0, *A1, True)
    mov2(A1, Z16); mov2(A2, (CR, CI))
    put(0, 1, *A1, True); put(1, 0, *A2)
    def cvt2(re, im, neg=False):
        p = pk[cnt[0] % 4]; cnt[0] += 1
        n = "-" if neg else ""
        k(f"v_cvt_pk_bf16_f32 v{p}, v{re}, {n}v{im}\n v_cvt_pk_bf16_f32 v{p+1}, v{re+1}, {n}v{im+1}")
        return p
    def wr(p, slot, row): k(f"ds_write_b64 v106, v[{p}:{p+1}] offset:{slot*T_SLOT + row*T_ROW}")
    pend = None
    for i in range(1, 16):
        pk_cmul_inplace(k, *A2, *Z1, T1, T2)
        if pend: wr(*pend); pend = None
        p = cvt2(*A2); pendA2 = (p, 1, i)
        if i >= 2:
            pk_cmul_inplace(k, *A1, *Z16, T3, T4)
            wr(*pendA2)
            p = cvt2(*A1, True); pend = (p, 0, i)
        else:
            wr(*pendA2)
    if pend: wr(*pend)
    stamp(k, "kg")
    OF = 128; AFa = 160; AFb = 192
    for ks in range(8): k(f"ds_read_b128 v[{OF+4*ks}:{OF+4*ks+3}], v107 offset:{64*ks}")
    for ks in range(8): k(f"ds_read_b128 v[{AFa+4*ks}:{AFa+4*ks+3}], v107 offset:{T_SLOT + 64*ks}")
    pk_cmul(k, *A1, CR, CI, *Z256, T1, T2)
    mov2(A2, A1)
    put(0, 0, *A2)
    for r in range(1, 8):
        pk_cmul_inplace(k, *A2, *Z2, T1, T2); put(0, r, *A2)
    for j in (2, 3):
        pk_cmul_inplace(k, *A1, *Z256, T3, T4)
        mov2(A2, A1)
        put(0, 8 + 4*(j-2), *A2)
        for r in range(1, 4):
            pk_cmul_inplace(k, *A2, *Z4, T1, T2); put(0, 8 + 4*(j-2) + r, *A2)
    for j in range(4):
        pk_cmul_inplace(k, *A1, *Z256, T3, T4)
        put(1, 2*j, *A1)
        pk_cmul(k, *A2, *A1, *Z8, T1, T2)
        put(1, 2*j+1, *A2)
    pk_cmul_inplace(k, *A1, *Z256, T3, T4)
    put(1, 8, *A1)
    k("v_mov_b32 v56, 0\n v_mov_b32 v57, 0")
    for r in range(9, 16): k(f"ds_write_b64 v106, v[56:57] offset:{T_SLOT + r*T_ROW}")
    stamp(k, "kg")
    D0, D1, D2 = 224, 228, 232
    k("s_waitcnt lgkmcnt(0)")
    for ks in range(8):
        k(f"v_mfma_f32_16x16x32_bf16 v[{D0}:{D0+3}], v[{AFa+4*ks}:{AFa+4*ks+3}], v[{OF+4*ks}:{OF+4*ks+3}], {'0' if ks == 0 else f'v[{D0}:{D0+3}]'}")
    for ks in range(8): k(f"ds_read_b128 v[{AFb+4*ks}:{AFb+4*ks+3}], v107 offset:{64*ks}")
    for ks in range(8): k(f"ds_read_b128 v[{AFa+4*ks}:{AFa+4*ks+3}], v107 offset:{T_SLOT + 64*ks}")
    k("s_waitcnt lgkmcnt(8)")
    for ks in range(8):
        k(f"v_mfma_f32_16x16x32_bf16 v[{D1}:{D1+3}], v[{AFb+4*ks}:{AFb+4*ks+3}], v[{OF+4*ks}:{OF+4*ks+3}], {'0' if ks == 0 else f'v[{D1}:{D1+3}]'}")
    k("s_waitcnt lgkmcnt(0)")
    for ks in range(8):
        k(f"v_mfma_f32_16x16x32_bf16 v[{D2}:{D2+3}], v[{AFa+4*ks}:{AFa+4*ks+3}], v[{OF+4*ks}:{OF+4*ks+3}], {'0' if ks == 0 else f'v[{D2}:{D2+3}]'}")
    k(f"v_lshlrev_b32 v122, 3, v{V_TID}\n v_add_u32 v122, {KEO_OFF}, v122\n s_nop 7")
    stamp(k, "kg")
    for t, Dt in enumerate((D0, D1, D2)):
        k(f"v_cvt_pk_bf16_f32 v{60+2*t}, v{Dt}, v{Dt+1}\n v_cvt_pk_bf16_f32 v{61+2*t}, v{Dt+2}, v{Dt+3}")
    k("ds_write_b64 v18, v[60:61]\n ds_write_b64 v19, v[62:63]\n ds_write_b32 v20, v64\n ds_write_b32 v20, v65 offset:64")
    k("s_waitcnt lgkmcnt(0)\n s_barrier")
    stamp(k)
    stamp(k, "kg")
    for c in range(4):
        for jq in range(2):
            for j in range(5): k(f"ds_read_u16 v{128+10*c+5*jq+j}, v{8+5*jq+j} offset:{c*KC_CH}")
    for c in range(4):
        k(f"s_waitcnt lgkmcnt({min(15, 30 - 10*c)})")
        for jq in range(2):
            b = 128 + 10*c + 5*jq; o = 168 + 8*c + 4*jq
            k(f"v_lshl_or_b32 v{o}, v{b+1}, 16, v{b}\n v_lshl_or_b32 v{o+1}, v{b+3}, 16, v{b+2}")
            k(f"v_lshl_or_b32 v{o+2}, v{b+2}, 16, v{b+1}\n v_lshl_or_b32 v{o+3}, v{b+4}, 16, v{b+3}")
    return X, ST, P

def gen_conv2(k, X, ST, P):
    for c in range(4):
        for jq in range(2):
            o = 168 + 8*c + 4*jq
            k(f"ds_write_b64 v122, v[{o}:{o+1}] offset:{c*KEO_CH + 2048*jq}")
            k(f"ds_write_b64 v122, v[{o+2}:{o+3}] offset:{c*KEO_CH + O_REL + 2048*jq}")
    stamp(k, "kg")
    k(f"v_lshlrev_b32 v123, 1, v{V_R}\n v_sub_u32 v123, 4062, v123\n v_lshl_add_u32 v123, v{V_G}, 4, v123")
    k(f"v_and_b32 v124, 1, v{V_R}\n v_cmp_eq_u32 vcc, 0, v124\n v_mov_b32 v124, 4158\n s_nop 0\n v_cndmask_b32 v124, 0, v124, vcc\n v_add_u32 v123, v123, v124")
    k(f"s_mul_i32 s70, s{S_WV}, {KEO_CH}\n s_add_u32 s70, s70, {KEO_OFF}")
    AA = 124
    for p in range(4):
        k(f"s_sub_u32 s71, s70, {512*(2*p+1)}")
        k(f"v_add_u32 v{AA+p}, s71, v123")
    k(f"s_mul_i32 s70, s{S_WV}, {U_CH}\n s_add_u32 s70, s70, {U_OFF + 480}")
    k(f"v_lshlrev_b32 v119, 5, v{V_R}\n v_lshl_add_u32 v119, v{V_G}, 4, v119\n v_add_u32 v119, s70, v119")
    stamp(k); stamp(k, "kg")
    import lib
    if lib.S1DIRECT:
        k("s_mov_b32 s64, 0")
        poll_val(k, SRD_DBG, 64, 64, sleep=2)
    else:
        k("s_mov_b32 s64, 128")
        poll_val(k, SRD_DBG, 64, 1, sleep=1)
    stamp(k)
    k(f"v_lshlrev_b32 v6, 4, v{V_TID}")
    k(f"s_lshl_b32 s71, s4, 14\n s_add_u32 s71, s71, {WS_XB}")
    for jj in range(4):
        k(f"s_mov_b32 s70, {WS_STATS1 + jj*4096}")
        k(f"buffer_load_dwordx4 v[{ST+4*jj}:{ST+4*jj+3}], v6, s[{SRD_WS}:{SRD_WS+3}], s70 offen sc1")
        k(f"buffer_load_dwordx4 v[{X+4*jj}:{X+4*jj+3}], v6, s[{SRD_WS}:{SRD_WS+3}], s71 offen sc1")
        if jj < 3: k("s_add_u32 s71, s71, 4096")
    AF = 224
    def loadA0(a, h):
        p = a // 2; off = (128 if a % 2 == 0 else 0) + 2*h
        return f"ds_read2_b32 v[{AF+4*a+2*h}:{AF+4*a+2*h+1}], v{AA+p} offset0:{off} offset1:{off+1}"
    for a in range(6):
        k(loadA0(a, 0)); k(loadA0(a, 1))
    k(loadA0(6, 0))
    for p in range(3): k(f"v_subrev_u32 v{AA+p}, 64, v{AA+p}")
    dma_setup(k, 57)
    for i in range(32): k(f"v_mov_b32 v{128+i}, 0")
    k(f"v_lshlrev_b32 v7, 2, v{V_TID}\n v_add_u32 v7, {U_OFF + 512}, v7")
    for jj in range(4):
        k(f"s_waitcnt vmcnt({6 - 2*jj})")
        for par in range(2):
            m = ST + 4*jj + 2*par
            k(f"v_mul_f32 v{m}, -v{m}, v{m+1}")
        for par in range(2):
            for h in range(2):
                r = X + 4*jj + 2*par + h
                k(f"v_lshlrev_b32 v{56+4*par+2*h}, 16, v{r}\n v_and_b32 v{57+4*par+2*h}, 0xffff0000, v{r}")
        for par in range(2):
            m = ST + 4*jj + 2*par
            for h in range(2):
                d = 56 + 4*par + 2*h
                k(f"v_pk_fma_f32 v[{d}:{d+1}], v[{d}:{d+1}], v[{m}:{m+1}], v[{m}:{m+1}] op_sel:[0,1,0] op_sel_hi:[1,1,0]")
        for c in range(4):
            k(f"v_cvt_pk_bf16_f32 v{P+4*jj+c}, v{56+c}, v{60+c}")
            k(f"ds_write_b32 v7, v{P+4*jj+c} offset:{c*U_CH + 1024*jj}")
    k("s_waitcnt lgkmcnt(0)\n s_barrier")
    stamp(k)
    ACC = 128; BF = (160, 192); AF = 224; BA = 119
    def loadB(st, J): return f"ds_read_b128 v[{BF[st]+4*J}:{BF[st]+4*J+3}], v{BA} offset:{512*J}"
    def loadA(a, h):
        p = a // 2; off = (128 if a % 2 == 0 else 0) + 2*h
        return f"ds_read2_b32 v[{AF+4*a+2*h}:{AF+4*a+2*h+1}], v{AA+p} offset0:{off} offset1:{off+1}"
    def stepA(p): return f"v_subrev_u32 v{AA+p}, 64, v{AA+p}"
    for J in range(8): k(loadB(0, J))
    k(f"v_subrev_u32 v{BA}, 64, v{BA}")
    def iteration(st, dmas):
        fill = {g: [] for g in range(36)}
        fill[0].append(loadA(6, 1)); fill[1].append(loadA(7, 0)); fill[2].append(loadA(7, 1)); fill[3].append(stepA(3))
        for J in range(8): fill[J].append(loadB(1-st, J))
        fill[8].append(f"v_subrev_u32 v{BA}, 64, v{BA}")
        ends = {0: 8, 1: 15, 2: 21, 3: 26, 4: 30, 5: 33}
        for a, g in ends.items():
            fill[g].append(loadA(a, 0)); fill[g+1].append(loadA(a, 1))
        fill[17].append(stepA(0)); fill[28].append(stepA(1)); fill[35].append(stepA(2))
        fill[35].append(loadA(6, 0))
        slots = [11, 18, 23, 12]
        for i, d in enumerate(dmas): fill[slots[i]].append(d)
        g = 0
        k("s_waitcnt lgkmcnt(1)")
        for a in range(8):
            if a == 6: k("s_waitcnt lgkmcnt(12)")
            for J in range(a, 8):
                k(f"v_mfma_f32_16x16x32_bf16 v[{ACC+4*J}:{ACC+4*J+3}], v[{AF+4*a}:{AF+4*a+3}], v[{BF[st]+4*(J-a)}:{BF[st]+4*(J-a)+3}], v[{ACC+4*J}:{ACC+4*J+3}]")
                for f in fill[g]: k(f)
                g += 1
    k("s_waitcnt lgkmcnt(0)")
    k("s_mov_b32 s70, 0")
    dma_listA_step(k, 0, 68)
    dma_kstep_setup(k, 68, 72, 73)
    k.label("conv_loop")
    iteration(0, [dma_op(u, 72, 73) for u in range(4)])
    iteration(1, [dma_op(u, 72, 73) for u in range(4, 7)])
    k(f"s_add_u32 s68, s{S_WV}, 4\n s_cmp_lt_u32 s{S_WV}, 2\n s_cselect_b32 s71, 8, 16\n s_add_u32 s71, s71, s{S_WV}\n s_cmp_eq_u32 s70, 0\n s_cselect_b32 s68, s68, s71")
    dma_kstep_setup(k, 68, 72, 73)
    k("s_add_u32 s70, s70, 1\n s_cmp_lt_u32 s70, 3\n s_cbranch_scc1 conv_loop")
    k(f"v_mov_b32 v81, 132\n buffer_load_dword v80, v81, s[{SRD_DBG}:{SRD_DBG+3}], 0 offen sc1")
    iteration(0, [])
    iteration(1, [])
    stamp(k)
    stamp(k, "s2")
    k(f"s_cmp_lg_u32 s{S_WV}, 1\n s_cbranch_scc1 conv_w1")
    k("s_waitcnt vmcnt(0)\n v_cmp_ne_u32 vcc, 0, v80\n s_cbranch_vccnz conv_wok")
    spin_flag(k, SRD_DBG, 132, 80)
    k.label("conv_wok")
    cb_issue(k, 82)
    k.label("conv_w1")
    k("s_waitcnt lgkmcnt(0)\n s_barrier")
    stamp(k, "s2")
    k(f"s_mul_i32 s70, s{S_WV}, {YT_CH}\n s_add_u32 s70, s70, {YT_OFF}")
    k(f"v_mul_u32_u24 v56, 80, v{V_R}\n v_lshl_add_u32 v56, v{V_G}, 4, v56\n v_add_u32 v56, s70, v56")
    k("s_nop 4")
    for J in range(8):
        k(f"ds_write_b128 v56, v[{ACC+4*J}:{ACC+4*J+3}] offset:{1280*J}")
    k("s_waitcnt lgkmcnt(0)\n s_barrier")
    k(f"v_lshrrev_b32 v56, 3, v{V_TID}\n v_lshlrev_b32 v56, 4, v56\n v_lshl_add_u32 v56, v{V_TID}, 3, v56\n v_add_u32 v56, {YT_OFF}, v56")
    for jj in range(4):
        for c in range(4):
            k(f"ds_read_b64 v[{128+8*jj+2*c}:{128+8*jj+2*c+1}], v56 offset:{c*YT_CH + jj*2560}")
    k("s_lshl_b32 s72, s6, 16\n s_and_b32 s73, s6, 0xffff0000\n s_lshl_b32 s74, s7, 16\n s_and_b32 s75, s7, 0xffff0000")
    k(f"v_lshrrev_b32 v57, 4, v{V_TID}\n v_mul_u32_u24 v57, 40960, v57\n v_and_b32 v58, 15, v{V_TID}\n v_lshl_add_u32 v57, v58, 4, v57")
    k("s_lshr_b32 s70, s4, 3\n s_lshl_b32 s70, s70, 11\n s_bfe_u32 s71, s4, 0x10002\n s_lshl_b32 s71, s71, 10\n s_add_u32 s70, s70, s71")
    k(f"s_and_b32 s71, s4, 3\n s_lshl_b32 s71, s71, 8\n s_add_u32 s70, s70, s71\n s_add_u32 s70, s70, {WS_HF}")
    for jj in range(4):
        k(f"s_waitcnt lgkmcnt({12 - 4*jj})")
        for par in range(2):
            for h in range(2):
                r = X + 4*jj + 2*par + h
                k(f"v_lshlrev_b32 v{64+4*par+2*h}, 16, v{r}\n v_and_b32 v{65+4*par+2*h}, 0xffff0000, v{r}")
        for c in range(4):
            k(f"v_lshlrev_b32 v{72+c}, 16, v{P+4*jj+c}\n v_and_b32 v{76+c}, 0xffff0000, v{P+4*jj+c}")
        for par in range(2):
            for c in range(4):
                y = 128 + 8*jj + 2*c + par
                k(f"v_fma_f32 v{72+4*par+c}, v{72+4*par+c}, s{72+c}, v{y}")
        for i in range(8): k(f"v_add_f32 v{64+i}, v{64+i}, v{72+i}")
        o = 160 + 4*jj
        for i in range(4): k(f"v_cvt_pk_bf16_f32 v{o+i}, v{64+2*i}, v{65+2*i}")
        k(f"buffer_store_dwordx4 v[{o}:{o+3}], v57, s[{SRD_WS}:{SRD_WS+3}], s70 offen sc1")
        if jj < 3: k(f"s_add_u32 s70, s70, {16*40960}")
    k(f"s_cmp_lg_u32 s{S_WV}, 1\n s_cbranch_scc1 conv_cb2")
    k("s_waitcnt vmcnt(4)")
    cb_write(k, 82)
    k.label("conv_cb2")
    stamp(k)
    k("s_and_b32 s79, s4, 15")
```

```python
from mk_common import *

W1_LDS = 143360
LDS_TOTAL = W1_LDS + 1024

W2A = 56
W2V = 176
def w2_reg(i, p):
    if i < 10: return f"a[{W2A+20*i+4*p}:{W2A+20*i+4*p+3}]"
    return f"v[{W2V+20*(i-10)+4*p}:{W2V+20*(i-10)+4*p+3}]"
def w2_ops():
    ops = []
    for g0 in (0, 4, 8, 12):
        for p in range(5):
            for i in range(g0, min(g0 + 4, 14)):
                pre = ""
                if i == g0: pre = f"s_add_u32 s78, s76, {p*54*1024 + g0*1024}\n "
                if i == 13: pre = "s_add_u32 s78, s78, s77\n "
                ops.append(pre + f"buffer_load_dwordx4 {w2_reg(i, p)}, v5, s[{SRD_WS}:{SRD_WS+3}], s78 offen offset:{(i-g0)*1024} sc1")
    return ops
def w2_frag(i, p):
    return w2_reg(i, p)

def residual_addr(k):
    k(f"s_lshl_b32 s64, s6, 1\n s_lshr_b32 s65, s{S_WV}, 1\n s_add_u32 s64, s64, s65")
    k(f"s_mul_i32 s79, s64, 40960\n s_and_b32 s67, s{S_WV}, 1\n s_lshl_b32 s67, s67, 3\n s_add_u32 s79, s79, s67\n s_add_u32 s79, s79, {WS_HF}")
    k("s_mul_i32 s67, s7, 20")
    for p in range(5):
        if p < 4: k(f"v_lshlrev_b32 v8, 1, v{V_G}\n v_add_u32 v8, {8*(p>>1) + (p&1)}, v8")
        else: k(f"v_add_u32 v8, 16, v{V_G}")
        k("v_add_u32 v8, s67, v8")
        k("v_lshrrev_b32 v9, 3, v8\n v_lshlrev_b32 v9, 11, v9\n v_bfe_u32 v10, v8, 2, 1\n v_lshl_add_u32 v9, v10, 10, v9")
        k(f"v_and_b32 v10, 3, v8\n v_lshl_add_u32 v9, v10, 8, v9\n v_lshl_add_u32 v{18+p}, v{V_R}, 4, v9")
def residual_issue(k):
    for p in range(5):
        k(f"buffer_load_dwordx2 v[{8+2*p}:{9+2*p}], v{18+p}, s[{SRD_WS}:{SRD_WS+3}], s79 offen sc1")

def gen_gemm1(k):
    k.c("======== GEMM1 ========")
    b = S_WG
    k(f"s_mov_b32 s4, s{S_MB}\n s_mov_b32 s5, s{S_FT0}")
    k(f"s_and_b32 s6, s{b}, 7\n s_lshr_b32 s6, s6, 1\n s_lshl_b32 s6, s6, 3\n s_lshr_b32 s64, s{b}, 3\n s_and_b32 s64, s64, 7\n s_add_u32 s6, s6, s64")
    k(f"s_and_b32 s7, s{b}, 1\n s_lshl_b32 s7, s7, 2\n s_lshr_b32 s64, s{b}, 6\n s_add_u32 s7, s7, s64")
    stamp(k, "s2")
    k("s_waitcnt lgkmcnt(0)\n s_barrier")
    labB = k.newlab("lb")
    k(f"s_cmp_eq_u32 s79, -1\n s_cbranch_scc1 {labB}\n s_cmp_eq_u32 s{S_WV}, 0\n s_cbranch_scc1 {labB}")
    dma_listB(k)
    k.label(labB)
    stamp(k, "s2")
    k(f"v_lshlrev_b32 v5, 4, v{V_LANE}")
    k(f"v_lshrrev_b32 v6, 2, v{V_LANE}\n v_mul_u32_u24 v6, 224, v6\n v_and_b32 v7, 3, v{V_LANE}\n v_lshl_add_u32 v6, v7, 3, v6")
    k("v_add_u32 v8, 0x10000, v6\n v_add_u32 v9, 0x20000, v6")
    stamp(k)
    B = 96
    k(f"s_lshl_b32 s64, s4, 2\n s_add_u32 s64, s64, s{S_WV}")
    k(f"s_mul_i32 s74, s64, 40960\n s_add_u32 s74, s74, {WS_HF}")
    k(f"s_mul_i32 s68, s{S_WV}, 14\n s_cmp_eq_u32 s{S_WV}, 3\n s_cselect_b32 s69, 1, 0\n s_sub_u32 s68, s68, s69")
    k(f"s_mul_i32 s76, s7, 270\n s_add_u32 s76, s76, s68\n s_lshl_b32 s76, s76, 10\n s_add_u32 s76, s76, {WS_WF2}")
    k(f"s_cmp_ge_u32 s{S_WV}, 2\n s_cselect_b32 s77, 0x40000000, 0")
    ACC = 24; S1 = 80; S2 = 88
    k("v_mov_b32 v20, 0x3f803f80\n v_mov_b32 v21, 0x3f803f80\n v_mov_b32 v22, 0x3f803f80\n v_mov_b32 v23, 0x3f803f80")
    k(f"s_mov_b32 s75, s74")
    NB = 6; PRE = 5
    vm = []
    def loadB(s):
        r = B + 8*(s % NB)
        k(f"buffer_load_dwordx4 v[{r}:{r+3}], v5, s[{SRD_WS}:{SRD_WS+3}], s74 offen sc1"); vm.append(("B", s))
        k(f"buffer_load_dwordx4 v[{r+4}:{r+7}], v5, s[{SRD_WS}:{SRD_WS+3}], s74 offen offset:1024 sc1"); vm.append(("B", s))
        if s < 19: k("s_add_u32 s74, s74, 2048")
    lab = k.newlab("prb"); done = k.newlab("prbd"); skip = k.newlab("prbs")
    k(f"s_cmp_lg_u32 s{S_WV}, 0\n s_cbranch_scc1 {skip}")
    for i in range(3):
        k(f"v_add_u32 v12, {64*i}, v{V_LANE}\n v_lshrrev_b32 v13, 3, v12\n v_lshlrev_b32 v13, 11, v13\n v_bfe_u32 v14, v12, 2, 1\n v_lshl_add_u32 v13, v14, 10, v13\n v_and_b32 v14, 3, v12\n v_lshl_add_u32 v{16+i}, v14, 8, v13")
    k(f"v_min_u32 v18, {19*2048 + 1024 + 3*256}, v18")
    k(f"s_mov_b32 s72, {WS_HF + 63*40960 + 240}\n s_mov_b32 s73, 0")
    k.label(lab)
    for i in range(3): k(f"buffer_load_dword v{12+i}, v{16+i}, s[{SRD_WS}:{SRD_WS+3}], s72 offen sc1")
    k("s_add_u32 s73, s73, 1\n s_waitcnt vmcnt(0)\n v_max3_u32 v12, v12, v13, v14")
    k(f"v_cmp_eq_u32 vcc, -1, v12\n s_cmp_gt_u32 s73, {SPIN_MAX}\n s_cbranch_scc1 {done}\n s_cbranch_vccz {done}\n s_sleep 1\n s_branch {lab}")
    k.label(done)
    k.label(skip)
    stamp(k, "s2")
    k("s_waitcnt vmcnt(0)")
    stamp(k, "s2")
    k("s_barrier")
    stamp(k); stamp(k, "s2")
    k("s_mov_b32 s71, 0")
    k.label("g1_retry")
    k("s_mov_b32 s74, s75")
    for s in range(PRE): loadB(s)
    def readA1(s, buf, ftl, hh):
        o = s*7168 + ftl*32 + 3584*hh
        reg = (6, 8, 9)[o // 65536]
        a0 = 28*buf + 4*ftl + 2*hh
        k(f"ds_read_b64_tr_b16 a[{a0}:{a0+1}], v{reg} offset:{o % 65536}")
    w2q = w2_ops()
    def wait_swap(s):
        last = max(i for i, e in enumerate(vm) if e == ("B", s))
        k(f"s_waitcnt vmcnt({len(vm) - 1 - last})")
        if s in (0, 1, 2, 4, 7, 10, 13, 16, 19): stamp(k, "g1")
        b0 = B + 8*(s % NB)
        if s == 0: k(f"v_max3_u32 v10, v{b0}, v{b0+1}, v{b0+2}\n v_max3_u32 v11, v{b0+3}, v{b0+4}, v{b0+5}\n v_max3_u32 v10, v10, v{b0+6}, v{b0+7}")
        else: k(f"v_max3_u32 v10, v10, v{b0}, v{b0+1}\n v_max3_u32 v11, v11, v{b0+2}, v{b0+3}\n v_max3_u32 v10, v10, v{b0+4}, v{b0+5}\n v_max3_u32 v11, v11, v{b0+6}, v{b0+7}")
        k(f"v_swap_b32 v{b0+2}, v{b0+4}\n v_swap_b32 v{b0+3}, v{b0+5}")
    for ftl in range(7):
        for hh in range(2): readA1(0, 0, ftl, hh)
    wait_swap(0)
    for s in range(20):
        buf = s % 2
        b0 = B + 8*(s % NB)
        k("s_waitcnt lgkmcnt(0)")
        if s == 0: k("s_nop 0")
        fill = [(ftl, hh) for ftl in range(7) for hh in range(2)] if s < 19 else []
        seq = []
        for ftl in range(7):
            for tt in range(2):
                c = ACC + 4*(ftl*2+tt); a0 = 28*buf + 4*ftl
                cin = "0" if s == 0 else f"v[{c}:{c+3}]"
                seq.append(f"v_mfma_f32_16x16x32_bf16 v[{c}:{c+3}], a[{a0}:{a0+3}], v[{b0+4*tt}:{b0+4*tt+3}], {cin}")
        for tt in range(2):
            c1 = "0" if s == 0 else f"v[{S1+4*tt}:{S1+4*tt+3}]"; c2 = "0" if s == 0 else f"v[{S2+4*tt}:{S2+4*tt+3}]"
            seq.append(f"v_mfma_f32_16x16x32_bf16 v[{S1+4*tt}:{S1+4*tt+3}], v[20:23], v[{b0+4*tt}:{b0+4*tt+3}], {c1}")
            seq.append(f"v_mfma_f32_16x16x32_bf16 v[{S2+4*tt}:{S2+4*tt+3}], v[{b0+4*tt}:{b0+4*tt+3}], v[{b0+4*tt}:{b0+4*tt+3}], {c2}")
        for i, m in enumerate(seq):
            k(m)
            if i < len(fill): readA1(s+1, 1-buf, *fill[i])
            if i == 14:
                if s + 1 < 20: wait_swap(s + 1)
            if i == 15 and s + PRE < 20: loadB(s + PRE)
            if (i in (16, 17) or (i == 13 and s % 2 == 0)) and w2q:
                k(w2q.pop(0)); vm.append(("W", 0))
    k("v_max_u32 v10, v10, v11\n v_cmp_eq_u32 vcc, -1, v10\n s_cbranch_vccnz g1_redo")
    k.label("g1_ok")
    k.tail.append(f"g1_redo:\n  s_add_u32 s71, s71, 1\n  s_cmp_gt_u32 s71, 20000\n  s_cbranch_scc1 g1_ok\n  s_sleep 8\n  s_branch g1_retry")
    stamp(k); stamp(k, "g1")
    k("s_nop 1")
    k(f"v_and_b32 v10, 3, v{V_R}\n v_lshrrev_b32 v11, 2, v{V_R}\n v_lshl_add_u32 v11, v11, 4, v{V_R}\n v_lshlrev_b32 v11, 2, v11")
    k("v_cmp_eq_u32 s[64:65], 1, v10\n v_cmp_eq_u32 s[66:67], 2, v10\n v_cmp_eq_u32 s[68:69], 3, v10")
    CS = (104, 112); B1 = (108, 116)
    k(f"v_lshlrev_b32 v7, 4, v{V_G}\n v_add_u32 v7, {CB_OFF}, v7")
    k(f"ds_read_b128 v[{CS[0]}:{CS[0]+3}], v7\n ds_read_b128 v[{B1[0]}:{B1[0]+3}], v7 offset:448")
    for q, sp in ((1, 64), (2, 66), (3, 68)):
        for tt in range(2):
            bb = S2 + 4*tt
            k(f"v_cndmask_b32 v{bb}, v{bb}, v{bb+q}, s[{sp}:{sp+1}]")
    for tt in range(2):
        k(f"ds_bpermute_b32 v{S2+4*tt+1}, v11, v{S2+4*tt}")
    RR = (96, 100)
    for tt in range(2): k(f"v_mul_f32 v{S1+4*tt}, 0x3acccccd, v{S1+4*tt}")
    k(f"s_lshl_b32 s64, s4, 2\n s_add_u32 s64, s64, s{S_WV}\n s_mul_i32 s64, s64, {108*1024}\n s_lshl_b32 s65, s5, 10\n s_add_u32 s64, s64, s65\n s_add_u32 s64, s64, {WS_ACT}")
    k(f"s_mov_b32 s70, {LOG2E:#x}")
    k("s_waitcnt lgkmcnt(0)")
    Q = [S2 + 1, S2 + 5]; M = [S1, S1 + 4]
    def both(f):
        for tt in range(2): k(f(tt))
    both(lambda t: f"v_mul_f32 v{Q[t]}, 0x3acccccd, v{Q[t]}")
    both(lambda t: f"v_fma_f32 v{Q[t]}, -v{M[t]}, v{M[t]}, v{Q[t]}")
    both(lambda t: f"v_max_f32 v{Q[t]}, 0, v{Q[t]}")
    both(lambda t: f"v_cvt_pk_bf16_f32 v{Q[t]}, v{Q[t]}, v{Q[t]}")
    both(lambda t: f"v_lshlrev_b32 v{Q[t]}, 16, v{Q[t]}")
    both(lambda t: f"v_add_f32 v{Q[t]}, 0x3727c5ac, v{Q[t]}")
    both(lambda t: f"v_cvt_pk_bf16_f32 v{Q[t]}, v{Q[t]}, v{Q[t]}")
    both(lambda t: f"v_lshlrev_b32 v{Q[t]}, 16, v{Q[t]}")
    both(lambda t: f"v_sqrt_f32 v{Q[t]}, v{Q[t]}")
    both(lambda t: f"v_cvt_pk_bf16_f32 v{M[t]}, v{M[t]}, v{M[t]}")
    both(lambda t: f"v_cvt_pk_bf16_f32 v{Q[t]}, v{Q[t]}, v{Q[t]}")
    both(lambda t: f"v_lshlrev_b32 v{M[t]}, 16, v{M[t]}")
    both(lambda t: f"v_lshlrev_b32 v{Q[t]}, 16, v{Q[t]}")
    both(lambda t: f"v_rcp_f32 v{RR[t]}, v{Q[t]}")
    k("s_nop 0")
    both(lambda t: f"v_mul_f32 v{RR[t]+2}, -v{M[t]}, v{RR[t]}")
    TM = 120; E = (128, 136); PP = (144, 152); OUT = (160, 164)
    def stageA(ftl):
        bsel = ftl % 2; e0 = E[bsel]; out = []
        for tt in range(2):
            c = ACC + 4*(ftl*2+tt); nrm = RR[tt] + 2; t = TM + 4*tt
            for h in range(2): out.append(f"v_pk_fma_f32 v[{t+2*h}:{t+2*h+1}], v[{CS[bsel]+2*h}:{CS[bsel]+2*h+1}], v[{nrm}:{nrm+1}], v[{B1[bsel]+2*h}:{B1[bsel]+2*h+1}] op_sel_hi:[1,0,1]")
        for tt in range(2):
            c = ACC + 4*(ftl*2+tt); r = RR[tt]; t = TM + 4*tt
            for h in range(2): out.append(f"v_pk_fma_f32 v[{c+2*h}:{c+2*h+1}], v[{c+2*h}:{c+2*h+1}], v[{r}:{r+1}], v[{t+2*h}:{t+2*h+1}] op_sel_hi:[1,0,1]")
        for tt in range(2):
            c = ACC + 4*(ftl*2+tt); e = e0 + 4*tt
            for h in range(2): out.append(f"v_pk_mul_f32 v[{e+2*h}:{e+2*h+1}], v[{c+2*h}:{c+2*h+1}], s[70:71] op_sel_hi:[1,0]")
        return out
    def stageExp(ftl): return [f"v_exp_f32 v{E[ftl%2]+i}, v{E[ftl%2]+i}" for i in range(8)]
    def stageB(ftl):
        e0 = E[ftl % 2]; p0 = PP[ftl % 2]; out = []
        for j in range(4): out.append(f"v_pk_add_f32 v[{p0+2*j}:{p0+2*j+1}], v[{e0+2*j}:{e0+2*j+1}], 2.0 op_sel_hi:[1,0]")
        for j in range(4): out.append(f"v_pk_fma_f32 v[{p0+2*j}:{p0+2*j+1}], v[{e0+2*j}:{e0+2*j+1}], v[{p0+2*j}:{p0+2*j+1}], 2.0 op_sel_hi:[1,1,0]")
        return out
    def stageRcp(ftl): return [f"v_rcp_f32 v{PP[ftl%2]+i}, v{PP[ftl%2]+i}" for i in range(8)]
    def stageC(ftl):
        p0 = PP[ftl % 2]; o = OUT[ftl % 2]; out = []
        for j in range(4): out.append(f"v_pk_fma_f32 v[{p0+2*j}:{p0+2*j+1}], v[{p0+2*j}:{p0+2*j+1}], -2.0, 1.0 op_sel_hi:[1,0,0]")
        for tt in range(2):
            c = ACC + 4*(ftl*2+tt)
            for h in range(2): out.append(f"v_pk_mul_f32 v[{p0+4*tt+2*h}:{p0+4*tt+2*h+1}], v[{p0+4*tt+2*h}:{p0+4*tt+2*h+1}], v[{c+2*h}:{c+2*h+1}]")
        for tt in range(2):
            out.append(f"v_cvt_pk_bf16_f32 v{o+2*tt}, v{p0+4*tt}, v{p0+4*tt+1}"); out.append(f"v_cvt_pk_bf16_f32 v{o+2*tt+1}, v{p0+4*tt+2}, v{p0+4*tt+3}")
        return out
    def ilv(a, b):
        out = []; na, nb = len(a), len(b); i = j = 0
        while i < na or j < nb:
            if i < na: out.append(a[i]); i += 1
            if j < nb and (i * nb >= j * na or i >= na): out.append(b[j]); j += 1
        return out
    def emit(seq, nload):
        n = len(seq); done = 0
        for i, x in enumerate(seq):
            k(x)
            if nload and w2q and done < nload and (i + 1) * nload >= (done + 1) * n - n // 2:
                k(w2q.pop(0)); done += 1
    for f in range(8):
        if f < 7 and f + 1 < 7:
            nb = (f + 1) % 2
            k(f"ds_read_b128 v[{CS[nb]}:{CS[nb]+3}], v7 offset:{64*(f+1)}\n ds_read_b128 v[{B1[nb]}:{B1[nb]+3}], v7 offset:{448 + 64*(f+1)}")
        A_ = stageA(f) if f < 7 else []
        R_ = stageRcp(f-1) if f >= 1 else []
        emit(ilv(R_, A_), 0)
        X_ = stageExp(f) if f < 7 else []
        C_ = stageC(f-1) if f >= 1 else []
        if f >= 1 and f == 7: k("s_nop 0")
        emit(ilv(X_, C_), 0)
        if f >= 1:
            o = OUT[(f-1) % 2]
            k(f"buffer_store_dwordx4 v[{o}:{o+3}], v5, s[{SRD_WS}:{SRD_WS+3}], s64 offen sc1")
            if f < 7: k("s_add_u32 s64, s64, 1024")
        if f < 7:
            k("s_nop 0")
            for x in stageB(f): k(x)
            if f + 1 < 7: k("s_waitcnt lgkmcnt(0)")
    stamp(k); stamp(k, "g2")
    k(f"s_and_b32 s65, s{S_WG}, 1\n s_lshl_b32 s65, s65, 3\n s_lshr_b32 s66, s{S_WG}, 5\n s_add_u32 s65, s65, s66\n s_lshl_b32 s65, s65, 2")
    k(f"s_add_u32 s64, s4, 33\n s_lshl_b32 s64, s64, 7\n s_add_u32 s64, s64, s65\n s_add_u32 s64, s64, {WS_SYNC}")
    lab = k.newlab("s3f")
    k(f"s_waitcnt vmcnt(0)\n s_barrier\n s_cmp_lg_u32 s{S_WV}, 0\n s_cbranch_scc1 {lab}")
    k(f"v_mov_b32 v4, 1\n v_mov_b32 v7, 0\n s_mov_b64 exec, 1\n buffer_store_dword v4, v7, s[{SRD_WS}:{SRD_WS+3}], s64 offen sc1\n s_mov_b64 exec, -1")
    k.label(lab)
    for x in w2q: k(x)

def gen_gemm2(k):
    k.c("======== GEMM2 ========")
    ACC = 24; RING = 104; NR = 4
    k(f"s_mul_i32 s68, s{S_WV}, 14\n s_cmp_eq_u32 s{S_WV}, 3\n s_cselect_b32 s69, 1, 0\n s_sub_u32 s68, s68, s69")
    k(f"s_mul_i32 s70, s6, 216\n s_lshl_b32 s71, s68, 1\n s_add_u32 s70, s70, s71\n s_lshl_b32 s70, s70, 10\n s_add_u32 s70, s70, {WS_ACT}")
    residual_addr(k)
    k(f"s_lshr_b32 s64, s6, 1\n s_add_u32 s64, s64, 33\n s_lshl_b32 s64, s64, 7\n s_add_u32 s64, s64, {WS_SYNC}")
    stamp(k, "g2")
    poll_flags(k, SRD_WS, 64, 16, sleep=1)
    stamp(k); stamp(k, "g2")
    def issue(i):
        st = RING + 16*(i % NR)
        for Tl in range(2):
            k(f"s_add_u32 s71, s70, {Tl*108*1024 + i*2048}")
            if i == 13: k("s_add_u32 s71, s71, s77")
            k(f"buffer_load_dwordx4 v[{st+8*Tl}:{st+8*Tl+3}], v5, s[{SRD_WS}:{SRD_WS+3}], s71 offen sc1")
            k(f"buffer_load_dwordx4 v[{st+8*Tl+4}:{st+8*Tl+7}], v5, s[{SRD_WS}:{SRD_WS+3}], s71 offen offset:1024 sc1")
    for i in range(NR): issue(i)
    def issue_ops(i):
        st = RING + 16*(i % NR); ops = []
        for Tl in range(2):
            pre = f"s_add_u32 s{71+Tl}, s70, {Tl*108*1024 + i*2048}"
            if i == 13: pre += f"\n s_add_u32 s{71+Tl}, s{71+Tl}, s77"
            ops.append(pre + f"\n buffer_load_dwordx4 v[{st+8*Tl}:{st+8*Tl+3}], v5, s[{SRD_WS}:{SRD_WS+3}], s{71+Tl} offen sc1")
            ops.append(f"buffer_load_dwordx4 v[{st+8*Tl+4}:{st+8*Tl+7}], v5, s[{SRD_WS}:{SRD_WS+3}], s{71+Tl} offen offset:1024 sc1")
        return ops
    residual_issue(k)
    vm2 = [i for i in range(NR) for _ in range(4)] + [-1]*5
    def wait_swap2(i):
        last = max(j for j, e in enumerate(vm2) if e == i)
        k(f"s_waitcnt vmcnt({len(vm2) - 1 - last})")
        if i in (0, 1, 3, 6, 9, 13): stamp(k, "g2")
        st = RING + 16*(i % NR)
        for Tl in range(2):
            b0 = st + 8*Tl
            k(f"v_swap_b32 v{b0+2}, v{b0+4}\n v_swap_b32 v{b0+3}, v{b0+5}")
    wait_swap2(0)
    k("s_nop 0")
    for i in range(14):
        st = RING + 16*(i % NR)
        pend = issue_ops(i - 1 + NR) if (i >= 1 and i - 1 + NR < 14) else []
        n = 0
        for p in range(5):
            for tt in range(4):
                c = ACC + 4*(p*4+tt)
                cin = "0" if i == 0 else f"v[{c}:{c+3}]"
                k(f"v_mfma_f32_16x16x32_bf16 v[{c}:{c+3}], {w2_frag(i, p)}, v[{st+4*tt}:{st+4*tt+3}], {cin}")
                n += 1
                if pend and n in (1, 3, 5, 7):
                    k(pend.pop(0)); vm2.append(i - 1 + NR)
                if n == 14 and i + 1 < 14: wait_swap2(i + 1)
    stamp(k); stamp(k, "g2")
    k(f"s_mul_i32 s64, s{S_WV}, 20480\n v_add_u32 v18, s64, v5")
    k("s_nop 6")
    for tt in range(4):
        lab = k.newlab("skipw")
        k(f"s_cmp_eq_u32 s{S_WV}, {tt}\n s_cbranch_scc1 {lab}")
        for p in range(5):
            c = ACC + 4*(p*4+tt)
            k(f"ds_write_b128 v18, v[{c}:{c+3}] offset:{tt*5120 + p*1024}")
        k.label(lab)
    for tt in range(4):
        lab = k.newlab("skipm")
        k(f"s_cmp_lg_u32 s{S_WV}, {tt}\n s_cbranch_scc1 {lab}")
        for p in range(5):
            c = ACC + 4*(p*4+tt)
            k(f"v_pk_mov_b32 v[{104+4*p}:{105+4*p}], v[{c}:{c+1}], v[{c}:{c+1}] op_sel:[0,1]\n v_pk_mov_b32 v[{106+4*p}:{107+4*p}], v[{c+2}:{c+3}], v[{c+2}:{c+3}] op_sel:[0,1]")
        k.label(lab)
    k("s_waitcnt lgkmcnt(0)\n s_barrier")
    for j in range(1, 4):
        k(f"s_add_u32 s64, s{S_WV}, {j}\n s_and_b32 s64, s64, 3\n s_mul_i32 s64, s64, 20480\n s_mul_i32 s65, s{S_WV}, 5120\n s_add_u32 s64, s64, s65")
        k(f"v_add_u32 v18, s64, v5")
        for p in range(5):
            d = 124 + 20*(j-1) + 4*p
            k(f"ds_read_b128 v[{d}:{d+3}], v18 offset:{p*1024}")
    k("s_waitcnt lgkmcnt(0)")
    for j in range(3):
        for i in range(0, 20, 2):
            k(f"v_pk_add_f32 v[{104+i}:{105+i}], v[{104+i}:{105+i}], v[{124+20*j+i}:{125+20*j+i}]")
    for p in range(5):
        for h in range(2):
            k(f"v_lshlrev_b32 v18, 16, v{8+2*p+h}\n v_and_b32 v19, 0xffff0000, v{8+2*p+h}")
            k(f"v_pk_add_f32 v[{104+4*p+2*h}:{105+4*p+2*h}], v[{104+4*p+2*h}:{105+4*p+2*h}], v[18:19]")
    for p in range(5):
        k(f"v_cvt_pk_bf16_f32 v{24+2*p}, v{104+4*p}, v{105+4*p}\n v_cvt_pk_bf16_f32 v{25+2*p}, v{106+4*p}, v{107+4*p}")
    k(f"s_lshl_b32 s64, s6, 1\n s_lshr_b32 s65, s{S_WV}, 1\n s_add_u32 s64, s64, s65\n s_lshl_b32 s64, s64, 5\n s_and_b32 s65, s{S_WV}, 1\n s_add_u32 s64, s64, s65")
    k("s_mul_i32 s64, s64, 1280\n s_mul_i32 s65, s7, 160\n s_add_u32 s64, s64, s65")
    k(f"v_mul_u32_u24 v18, 2560, v{V_R}\n v_lshl_add_u32 v19, v{V_G}, 4, v18\n v_lshl_add_u32 v20, v{V_G}, 3, v18")
    import lib
    fl = lib.OUTFLAG
    k(f"buffer_store_dwordx4 v[24:27], v19, s[{SRD_OUT}:{SRD_OUT+3}], s64 offen {fl}")
    k(f"buffer_store_dwordx4 v[28:31], v19, s[{SRD_OUT}:{SRD_OUT+3}], s64 offen offset:64 {fl}")
    k(f"buffer_store_dwordx2 v[32:33], v20, s[{SRD_OUT}:{SRD_OUT+3}], s64 offen offset:128 {fl}")
```

```python
from lib import *
from layout import *
import struct
LOG2E = 0x3fb8aa3b
INV2PI = 0x3e22f983
def f2h(x): return "0x%08x" % struct.unpack("<I", struct.pack("<f", float(x)))[0]

S_WG = 2
S_WV = 3
SRD_WS = 8
SRD_DBG = 12
SRD_X = 16
SRD_OUT = 20
SRD_W1 = 24
SRD_T = 28
P_X=32; P_ARE=34; P_AIM=36; P_BRE=38; P_BIM=40; P_CRE=42; P_CIM=44; P_LDT=46
P_DSK=48; P_BX=50; P_W1=52; P_B1=54; P_W2=56; P_OUT=58; P_DBG=60; P_WS=62
V_TID=0; V_LANE=1; V_R=2; V_G=3

SPIN_MAX = 400000

def arrive_simple(k, srd_, s_off):
    lab = k.newlab("arr")
    k("s_waitcnt vmcnt(0)")
    k("s_barrier")
    k(f"s_cmp_lg_u32 s{S_WV}, 0")
    k(f"s_cbranch_scc1 {lab}")
    k("v_mov_b32 v4, 1\n v_mov_b32 v7, 0\n s_mov_b64 exec, 1")
    k(f"buffer_atomic_add v4, v7, s[{srd_}:{srd_+3}], s{s_off} offen")
    k("s_mov_b64 exec, -1")
    k.label(lab)

def arrive_go(k, srd_, s_off, count, go_off_imm, join=False, s_go=None):
    lab = k.newlab("arr")
    k("s_waitcnt vmcnt(0)")
    k("s_barrier")
    k(f"s_cmp_lg_u32 s{S_WV}, 0")
    k(f"s_cbranch_scc1 {lab}")
    k("v_mov_b32 v4, 1\n v_mov_b32 v7, 0\n s_mov_b64 exec, 1")
    k(f"buffer_atomic_add v4, v7, s[{srd_}:{srd_+3}], s{s_off} offen sc0")
    k("s_waitcnt vmcnt(0)")
    k("v_readfirstlane_b32 s67, v4")
    k(f"s_cmp_lg_u32 s67, {count-1}")
    k(f"s_cbranch_scc1 {lab}_x")
    if s_go is None:
        k(f"v_mov_b32 v4, 1\n s_mov_b32 s66, {go_off_imm}")
        k(f"buffer_store_dword v4, v7, s[{srd_}:{srd_+3}], s66 offen sc1")
    else:
        k(f"v_mov_b32 v4, 1\n s_nop 3")
        k(f"buffer_store_dword v4, v7, s[{srd_}:{srd_+3}], s{s_go} offen sc1")
    k.label(lab + "_x")
    k("s_mov_b64 exec, -1")
    k.label(lab)
    if join: k("s_barrier")

def arrive_s2(k, s_shard):
    lab = k.newlab("arr2")
    W = f"s[{SRD_WS}:{SRD_WS+3}]"
    stamp(k, "s2")
    k("s_waitcnt vmcnt(0)")
    stamp(k, "s2")
    k("s_barrier")
    stamp(k, "s2")
    k(f"s_cmp_lg_u32 s{S_WV}, 0\n s_cbranch_scc1 {lab}\n s_cmp_eq_u32 s{s_shard}, -1\n s_cbranch_scc1 {lab}")
    k(f"s_lshl_b32 s66, s{s_shard}, 7\n s_add_u32 s66, s66, {WS_SYNC}")
    k("v_mov_b32 v4, 1\n v_mov_b32 v7, 0\n s_mov_b64 exec, 1")
    k(f"buffer_atomic_add v4, v7, {W}, s66 offen sc0\n s_waitcnt vmcnt(0)\n v_readfirstlane_b32 s67, v4")
    k(f"s_cmp_lg_u32 s67, 9\n s_cbranch_scc1 {lab}_x")
    k(f"s_mov_b32 s66, {WS_SYNC + 16*128}\n v_mov_b32 v4, 1")
    k(f"buffer_atomic_add v4, v7, {W}, s66 offen sc0\n s_waitcnt vmcnt(0)\n v_readfirstlane_b32 s67, v4")
    k(f"s_cmp_lg_u32 s67, 15\n s_cbranch_scc1 {lab}_x")
    k(f"s_mov_b64 exec, 0xffff\n v_lshlrev_b32 v7, 7, v{V_LANE}\n v_mov_b32 v4, 1\n s_mov_b32 s66, {WS_SYNC + 17*128}")
    k(f"buffer_store_dword v4, v7, {W}, s66 offen sc1")
    k.label(lab + "_x")
    k("s_mov_b64 exec, -1")
    k.label(lab)
    k("s_barrier")

def poll_val(k, srd_, s_off, target, sleep=2, pre_wait=False, barrier=True):
    lab = k.newlab("poll"); done = k.newlab("polled"); skip = k.newlab("pskip")
    k(f"s_cmp_lg_u32 s{S_WV}, 0")
    k(f"s_cbranch_scc1 {skip}")
    k("v_mov_b32 v7, 0\n s_mov_b64 exec, 1\n s_mov_b32 s66, 0")
    k.label(lab)
    k(f"buffer_load_dword v4, v7, s[{srd_}:{srd_+3}], s{s_off} offen sc1")
    k("s_add_u32 s66, s66, 1")
    k("s_waitcnt vmcnt(0)")
    k(f"v_cmp_gt_u32 vcc, {target}, v4")
    k(f"s_cmp_gt_u32 s66, {SPIN_MAX}")
    k(f"s_cbranch_scc1 {done}")
    k(f"s_cbranch_vccz {done}")
    k(f"s_sleep {sleep}")
    k(f"s_branch {lab}")
    k.label(done)
    k("s_mov_b64 exec, -1")
    k.label(skip)
    if pre_wait: k("s_waitcnt vmcnt(0)")
    if barrier: k("s_barrier")

def bf16_round(k, v):
    k(f"v_cvt_pk_bf16_f32 v{v}, v{v}, v{v}")
    k(f"v_lshlrev_b32 v{v}, 16, v{v}")

def ln_finish(k, v_mean, v_var, v_r):
    k(f"v_max_f32 v{v_var}, 0, v{v_var}")
    bf16_round(k, v_var)
    k(f"v_add_f32 v{v_var}, 0x3727c5ac, v{v_var}")
    bf16_round(k, v_var)
    k(f"v_sqrt_f32 v{v_var}, v{v_var}")
    k("s_nop 0")
    bf16_round(k, v_var)
    k(f"v_rcp_f32 v{v_r}, v{v_var}")
    bf16_round(k, v_mean)

S_MB = 50; S_FT0 = 51; V_DMA = 100
def gemm1_mapping(k):
    b = S_WG
    k(f"s_and_b32 s{S_MB}, s{b}, 7\n s_lshr_b32 s{S_MB}, s{S_MB}, 1\n s_lshl_b32 s{S_MB}, s{S_MB}, 2\n s_lshr_b32 s64, s{b}, 3\n s_and_b32 s64, s64, 3\n s_add_u32 s{S_MB}, s{S_MB}, s64")
    k(f"s_and_b32 s{S_FT0}, s{b}, 1\n s_lshl_b32 s{S_FT0}, s{S_FT0}, 3\n s_lshr_b32 s64, s{b}, 5\n s_add_u32 s{S_FT0}, s{S_FT0}, s64\n s_mul_i32 s{S_FT0}, s{S_FT0}, 7\n s_min_u32 s{S_FT0}, s{S_FT0}, 101")
def dma_setup(k, t=8):
    a, b, c = t, t+1, t+2
    for u in range(7):
        k(f"v_add_u32 v{a}, {64*u}, v{V_LANE}\n v_mul_u32_u24 v{b}, 4682, v{a}\n v_lshrrev_b32 v{b}, 16, v{b}")
        k(f"v_mul_u32_u24 v{c}, 14, v{b}\n v_sub_u32 v{a}, v{a}, v{c}")
        k(f"v_mul_u32_u24 v{b}, 3456, v{b}\n v_lshl_add_u32 v{V_DMA+u}, v{a}, 4, v{b}")
def dma_kstep_setup(k, s_step, s_src, s_lds):
    k(f"s_mul_i32 s{s_src}, s{s_step}, 110592\n s_lshl_b32 s{s_lds}, s{S_FT0}, 5\n s_add_u32 s{s_src}, s{s_src}, s{s_lds}\n s_mul_i32 s{s_lds}, s{s_step}, 7168")
def dma_op(u, s_src, s_lds):
    return f"s_add_u32 m0, s{s_lds}, {u*1024}\n s_nop 0\n buffer_load_dwordx4 v{V_DMA+u}, s[{SRD_W1}:{SRD_W1+3}], s{s_src} offen lds"
def dma_listA_step(k, L, s_step):
    if L < 2: k(f"s_add_u32 s{s_step}, s{S_WV}, {4*L}")
    else: k(f"s_cmp_lt_u32 s{S_WV}, 2\n s_cselect_b32 s{s_step}, 8, 16\n s_add_u32 s{s_step}, s{s_step}, s{S_WV}")

CB_OFF = 143360
def cb_issue(k, vd):
    srd(k, SRD_T, P_B1, P_B1+1, F*2)
    k(f"v_lshlrev_b32 v{vd+9}, 3, v{V_LANE}\n v_lshlrev_b32 v{vd+10}, 2, v{V_LANE}")
    k(f"s_lshl_b32 s66, s{S_FT0}, 6\n s_add_u32 s66, s66, {WS_CS1}\n s_lshl_b32 s67, s{S_FT0}, 5")
    for q in range(4):
        k(f"buffer_load_dwordx2 v[{vd+2*q}:{vd+2*q+1}], v{vd+9}, s[{SRD_WS}:{SRD_WS+3}], s66 offen sc1")
        if q < 3: k("s_add_u32 s66, s66, 7168")
    k(f"buffer_load_dword v{vd+8}, v{vd+10}, s[{SRD_T}:{SRD_T+3}], s67 offen")
def cb_write(k, vd):
    for o in range(2):
        k(f"v_add_f32 v{vd+o}, v{vd+o}, v{vd+2+o}\n v_add_f32 v{vd+4+o}, v{vd+4+o}, v{vd+6+o}\n v_add_f32 v{vd+o}, v{vd+o}, v{vd+4+o}")
    k(f"v_and_b32 v{vd+3}, 0xffff0000, v{vd+8}\n v_lshlrev_b32 v{vd+2}, 16, v{vd+8}\n v_add_u32 v{vd+9}, {CB_OFF}, v{vd+9}")
    k("s_mov_b32 exec_lo, -1\n s_mov_b32 exec_hi, 0x00ffffff")
    k(f"ds_write_b64 v{vd+9}, v[{vd}:{vd+1}]\n ds_write_b64 v{vd+9}, v[{vd+2}:{vd+3}] offset:448")
    k("s_mov_b64 exec, -1")
def spin_flag(k, srd_, off_imm, vt, sleep=2):
    lab = k.newlab("spin"); done = k.newlab("spun")
    k(f"v_mov_b32 v{vt+1}, {off_imm}\n s_mov_b32 s66, 0")
    k.label(lab)
    k(f"buffer_load_dword v{vt}, v{vt+1}, s[{srd_}:{srd_+3}], 0 offen sc1\n s_add_u32 s66, s66, 1\n s_waitcnt vmcnt(0)")
    k(f"v_cmp_eq_u32 vcc, 0, v{vt}\n s_cmp_gt_u32 s66, {SPIN_MAX}\n s_cbranch_scc1 {done}\n s_cbranch_vccz {done}\n s_sleep {sleep}\n s_branch {lab}")
    k.label(done)

def poll_flags(k, srd_, s_off, n, sleep=1):
    lab = k.newlab("pf"); done = k.newlab("pfd"); skip = k.newlab("pfs")
    k(f"s_cmp_lg_u32 s{S_WV}, 0\n s_cbranch_scc1 {skip}")
    k(f"v_lshlrev_b32 v7, 2, v{V_LANE}\n s_mov_b64 exec, {(1<<n)-1}\n s_mov_b32 s66, 0")
    k.label(lab)
    k(f"buffer_load_dword v4, v7, s[{srd_}:{srd_+3}], s{s_off} offen sc1\n s_add_u32 s66, s66, 1\n s_waitcnt vmcnt(0)")
    k(f"v_cmp_eq_u32 vcc, 0, v4\n s_cmp_gt_u32 s66, {SPIN_MAX}\n s_cbranch_scc1 {done}\n s_cbranch_vccz {done}\n s_sleep {sleep}\n s_branch {lab}")
    k.label(done)
    k("s_mov_b64 exec, -1")
    k.label(skip)
    k("s_barrier")

def dma_listB(k, all4=False):
    if all4:
        for L in range(2):
            k(f"s_add_u32 s68, s{S_WV}, {10 + 4*L}")
            dma_kstep_setup(k, 68, 69, 70)
            for u in range(7): k(dma_op(u, 69, 70))
        return
    for L in range(3):
        lab = k.newlab("lbs")
        k(f"s_add_u32 s68, s{S_WV}, {9 + 3*L}")
        if L == 2: k(f"s_cmp_ge_u32 s68, 18\n s_cbranch_scc1 {lab}")
        dma_kstep_setup(k, 68, 69, 70)
        for u in range(7): k(dma_op(u, 69, 70))
        if L == 2: k.label(lab)

def w1_convert(k, s_blk, vtr, vlin, tmp=128):
    a, b = tmp + 28, tmp + 29
    k(f"v_add_u32 v{a}, s{s_blk}, v{vtr}\n v_add_u32 v{b}, s{s_blk}, v{vlin}")
    for ftl in range(7):
        for hh in range(2):
            k(f"ds_read_b64_tr_b16 v[{tmp+4*ftl+2*hh}:{tmp+4*ftl+2*hh+1}], v{a} offset:{ftl*32 + 3584*hh}")
    k("s_waitcnt lgkmcnt(0)")
    for ftl in range(7):
        k(f"ds_write_b128 v{b}, v[{tmp+4*ftl}:{tmp+4*ftl+3}] offset:{ftl*1024}")
```

```python
from mk_common import *

T_WAVE = 16896; T_SLOT = 8448; T_ROW = 528
KC_OFF = 67584; KC_CH = 1536
KEO_OFF = 73728; KEO_CH = 8320; O_REL = 4160
U_OFF = 107008; U_CH = 4608
YT_OFF = 73728; YT_CH = 10240

def pk_cmul_inplace(k, ar, ai, br, bi, t, t2):
    k(f"v_pk_mul_f32 v[{t}:{t+1}], v[{ar}:{ar+1}], v[{br}:{br+1}]")
    k(f"v_pk_mul_f32 v[{t2}:{t2+1}], v[{ar}:{ar+1}], v[{bi}:{bi+1}]")
    k(f"v_pk_fma_f32 v[{ar}:{ar+1}], v[{ai}:{ai+1}], v[{bi}:{bi+1}], v[{t}:{t+1}] neg_lo:[1,0,0] neg_hi:[1,0,0]")
    k(f"v_pk_fma_f32 v[{ai}:{ai+1}], v[{ai}:{ai+1}], v[{br}:{br+1}], v[{t2}:{t2+1}]")
def pk_cmul(k, dr, di, ar, ai, br, bi, t, t2):
    k(f"v_pk_mul_f32 v[{t}:{t+1}], v[{ar}:{ar+1}], v[{br}:{br+1}]")
    k(f"v_pk_mul_f32 v[{t2}:{t2+1}], v[{ar}:{ar+1}], v[{bi}:{bi+1}]")
    k(f"v_pk_fma_f32 v[{dr}:{dr+1}], v[{ai}:{ai+1}], v[{bi}:{bi+1}], v[{t}:{t+1}] neg_lo:[1,0,0] neg_hi:[1,0,0]")
    k(f"v_pk_fma_f32 v[{di}:{di+1}], v[{ai}:{ai+1}], v[{br}:{br+1}], v[{t2}:{t2+1}]")
def pk_csq(k, dr, di, ar, ai, t):
    k(f"v_pk_mul_f32 v[{t}:{t+1}], v[{ai}:{ai+1}], v[{ai}:{ai+1}]")
    k(f"v_pk_add_f32 v[{di}:{di+1}], v[{ar}:{ar+1}], v[{ar}:{ar+1}]")
    k(f"v_pk_fma_f32 v[{dr}:{dr+1}], v[{ar}:{ar+1}], v[{ar}:{ar+1}], v[{t}:{t+1}] neg_lo:[0,0,1] neg_hi:[0,0,1]")
    k(f"v_pk_mul_f32 v[{di}:{di+1}], v[{di}:{di+1}], v[{ai}:{ai+1}]")

def gen_conv(k):
    k.c("======== role A: K-gen + conv ========")
    X = 8
    ST = 24
    P = 40
    k("s_lshl_b32 s5, s4, 3")
    k(f"s_add_u32 s64, s{P_LDT}, s5\n s_addc_u32 s65, s{P_LDT+1}, 0")
    k(f"s_add_u32 s66, s{P_DSK}, s5\n s_addc_u32 s67, s{P_DSK+1}, 0")
    k("s_load_dwordx2 s[68:69], s[64:65], 0")
    k("s_load_dwordx2 s[6:7], s[66:67], 0")
    k(f"s_lshl_b32 s70, s4, 2\n s_add_u32 s70, s70, s{S_WV}\n s_lshl_b32 s70, s70, 8")
    k(f"v_lshlrev_b32 v5, 2, v{V_LANE}\n v_add_u32 v5, s70, v5")
    for i, p in enumerate((P_ARE, P_AIM, P_BRE, P_BIM, P_CRE, P_CIM)):
        k(f"global_load_dword v{56+i}, v5, s[{p}:{p+1}]")
    k("v_mov_b32 v64, 0\n v_mov_b32 v65, 0\n v_mov_b32 v66, 0\n v_mov_b32 v67, 0")
    k(f"v_lshrrev_b32 v68, 5, v{V_TID}\n v_mul_u32_u24 v68, {U_CH}, v68\n v_and_b32 v69, 31, v{V_TID}\n v_lshl_add_u32 v68, v69, 4, v68\n v_add_u32 v68, {U_OFF}, v68")
    k(f"v_subrev_u32 v70, 128, v{V_TID}\n v_lshrrev_b32 v71, 4, v70\n v_mul_u32_u24 v71, {KEO_CH}, v71\n v_bfe_u32 v72, v70, 3, 1\n v_mul_u32_u24 v72, {O_REL}, v72\n v_add_u32 v71, v71, v72")
    k(f"v_and_b32 v72, 7, v70\n v_lshl_add_u32 v71, v72, 2, v71\n v_add_u32 v71, {KEO_OFF + 4096}, v71")
    k(f"s_cmp_ge_u32 s{S_WV}, 2\n s_cbranch_scc1 conv_z1")
    k("ds_write_b128 v68, v[64:67]")
    k.label("conv_z1")
    k(f"s_cmp_lg_u32 s{S_WV}, 2\n s_cbranch_scc1 conv_z2")
    k("ds_write_b32 v71, v64")
    k.label("conv_z2")
    for jq in range(2):
        for j in range(5):
            d = 8 + 5*jq + j
            k(f"v_lshlrev_b32 v22, 2, v{V_TID}")
            k(f"v_sub_u32 v22, {2047 - 1024*jq - j}, v22")
            k("v_cvt_f32_i32 v23, v22")
            k("v_cvt_pk_bf16_f32 v23, v23, v23")
            k("v_and_b32 v23, 0xffff, v23\n v_subrev_u32 v23, 17024, v23")
            k("v_cmp_gt_i32 vcc, 128, v22\n s_nop 1\n v_cndmask_b32 v23, v23, v22, vcc")
            if jq == 1 and j == 4:
                k("v_cmp_gt_i32 vcc, 0, v22\n v_mov_b32 v21, 641\n s_nop 0\n v_cndmask_b32 v23, v23, v21, vcc")
            k(f"v_lshlrev_b32 v{d}, 1, v23\n v_add_u32 v{d}, {KC_OFF}, v{d}")
    k(f"s_mul_i32 s70, s{S_WV}, {KC_CH}\n s_add_u32 s70, s70, {KC_OFF}")
    k(f"v_lshlrev_b32 v18, 5, v{V_R}\n v_lshl_add_u32 v18, v{V_G}, 3, v18\n v_add_u32 v18, s70, v18")
    k(f"v_lshlrev_b32 v19, 4, v{V_R}\n v_lshl_add_u32 v19, v{V_G}, 3, v19\n v_add_u32 v19, 512, v19")
    k(f"v_lshlrev_b32 v20, 3, v{V_R}\n v_lshl_add_u32 v20, v{V_G}, 7, v20\n v_add_u32 v20, 512, v20")
    k(f"v_cmp_gt_u32 vcc, 2, v{V_G}\n s_nop 1\n v_cndmask_b32 v19, v20, v19, vcc\n v_add_u32 v19, s70, v19")
    k(f"v_lshlrev_b32 v20, 2, v{V_R}\n v_lshl_add_u32 v20, v{V_G}, 7, v20\n v_add_u32 v20, 1024, v20\n v_add_u32 v20, s70, v20")
    k(f"s_mul_i32 s70, s{S_WV}, {T_WAVE}")
    k(f"v_lshlrev_b32 v106, 3, v{V_LANE}\n v_add_u32 v106, s70, v106")
    k(f"v_mul_u32_u24 v107, {T_ROW}, v{V_R}\n v_lshl_add_u32 v107, v{V_G}, 4, v107\n v_add_u32 v107, s70, v107")
    k("s_waitcnt lgkmcnt(0)")
    k(f"s_cmp_ge_u32 s{S_WV}, 2\n s_cselect_b32 s70, s69, s68\n s_and_b32 s71, s{S_WV}, 1\n s_lshl_b32 s71, s71, 4\n s_lshr_b32 s70, s70, s71\n s_lshl_b32 s70, s70, 16")
    k(f"v_mov_b32 v64, {LOG2E:#x}\n v_mul_f32 v64, s70, v64\n v_exp_f32 v64, v64\n s_nop 0")
    bf16_round(k, 64)
    k("v_mov_b32 v65, v64")
    k("s_waitcnt vmcnt(0)")
    stamp(k)
    stamp(k, "kg")
    for i in range(6):
        k(f"v_lshlrev_b32 v{66+2*i}, 16, v{56+i}\n v_and_b32 v{67+2*i}, 0xffff0000, v{56+i}")
    k(f"s_mov_b32 s70, {LOG2E:#x}\n s_mov_b32 s72, {INV2PI:#x}")
    k("v_pk_mul_f32 v[66:67], v[66:67], v[64:65]\n v_pk_mul_f32 v[68:69], v[68:69], v[64:65]")
    k("v_pk_mul_f32 v[70:71], v[70:71], v[64:65]\n v_pk_mul_f32 v[72:73], v[72:73], v[64:65]")
    k("v_pk_mul_f32 v[66:67], v[66:67], s[70:71] op_sel_hi:[1,0]")
    k("v_pk_mul_f32 v[68:69], v[68:69], s[72:73] op_sel_hi:[1,0]")
    pk_cmul(k, 78, 80, 74, 76, 70, 72, 56, 58)
    def direct(dr, di, e):
        k(f"s_mov_b32 s74, {f2h(e)}")
        k("v_pk_mul_f32 v[56:57], v[66:67], s[74:75] op_sel_hi:[1,0]")
        k("v_pk_mul_f32 v[58:59], v[68:69], s[74:75] op_sel_hi:[1,0]")
        k("v_exp_f32 v56, v56\n v_exp_f32 v57, v57\n v_fract_f32 v58, v58\n v_fract_f32 v59, v59")
        k(f"v_cos_f32 v{dr}, v58\n v_cos_f32 v{dr+1}, v59\n v_sin_f32 v{di}, v58\n v_sin_f32 v{di+1}, v59\n s_nop 0")
        k(f"v_pk_mul_f32 v[{dr}:{dr+1}], v[{dr}:{dr+1}], v[56:57]\n v_pk_mul_f32 v[{di}:{di+1}], v[{di}:{di+1}], v[56:57]")
    Z1, Z16, Z256, Z2, Z4, Z8 = (82, 84), (86, 88), (90, 92), (94, 96), (98, 100), (102, 104)
    direct(*Z1, 1); direct(*Z16, 16); direct(*Z256, 256)
    pk_csq(k, *Z2, *Z1, 56); pk_csq(k, *Z4, *Z2, 56); pk_csq(k, *Z8, *Z4, 56)
    stamp(k, "kg")
    CR, CI = 78, 80
    pk = [108, 110, 112, 114]; cnt = [0]
    def put(slot, row, re, im, neg=False):
        p = pk[cnt[0] % 4]; cnt[0] += 1
        n = "-" if neg else ""
        k(f"v_cvt_pk_bf16_f32 v{p}, v{re}, {n}v{im}\n v_cvt_pk_bf16_f32 v{p+1}, v{re+1}, {n}v{im+1}")
        k(f"ds_write_b64 v106, v[{p}:{p+1}] offset:{slot*T_SLOT + row*T_ROW}")
    A1, A2 = (116, 118), (120, 122)
    T1, T2, T3, T4 = 56, 58, 60, 62
    def mov2(d, s):
        k(f"v_pk_mov_b32 v[{d[0]}:{d[0]+1}], v[{s[0]}:{s[0]+1}], v[{s[0]}:{s[0]+1}] op_sel:[0,1]")
        k(f"v_pk_mov_b32 v[{d[1]}:{d[1]+1}], v[{s[1]}:{s[1]+1}], v[{s[1]}:{s[1]+1}] op_sel:[0,1]")
    k(f"v_mov_b32 v{A1[0]}, 1.0\n v_mov_b32 v{A1[0]+1}, 1.0\n v_mov_b32 v{A1[1]}, 0\n v_mov_b32 v{A1[1]+1}, 0")
    put(0, 0, *A1, True)
    mov2(A1, Z16); mov2(A2, (CR, CI))
    put(0, 1, *A1, True); put(1, 0, *A2)
    def cvt2(re, im, neg=False):
        p = pk[cnt[0] % 4]; cnt[0] += 1
        n = "-" if neg else ""
        k(f"v_cvt_pk_bf16_f32 v{p}, v{re}, {n}v{im}\n v_cvt_pk_bf16_f32 v{p+1}, v{re+1}, {n}v{im+1}")
        return p
    def wr(p, slot, row): k(f"ds_write_b64 v106, v[{p}:{p+1}] offset:{slot*T_SLOT + row*T_ROW}")
    pend = None
    for i in range(1, 16):
        pk_cmul_inplace(k, *A2, *Z1, T1, T2)
        if pend: wr(*pend); pend = None
        p = cvt2(*A2); pendA2 = (p, 1, i)
        if i >= 2:
            pk_cmul_inplace(k, *A1, *Z16, T3, T4)
            wr(*pendA2)
            p = cvt2(*A1, True); pend = (p, 0, i)
        else:
            wr(*pendA2)
    if pend: wr(*pend)
    stamp(k, "kg")
    OF = 128; AFa = 160; AFb = 192
    for ks in range(8): k(f"ds_read_b128 v[{OF+4*ks}:{OF+4*ks+3}], v107 offset:{64*ks}")
    for ks in range(8): k(f"ds_read_b128 v[{AFa+4*ks}:{AFa+4*ks+3}], v107 offset:{T_SLOT + 64*ks}")
    pk_cmul(k, *A1, CR, CI, *Z256, T1, T2)
    mov2(A2, A1)
    put(0, 0, *A2)
    for r in range(1, 8):
        pk_cmul_inplace(k, *A2, *Z2, T1, T2); put(0, r, *A2)
    for j in (2, 3):
        pk_cmul_inplace(k, *A1, *Z256, T3, T4)
        mov2(A2, A1)
        put(0, 8 + 4*(j-2), *A2)
        for r in range(1, 4):
            pk_cmul_inplace(k, *A2, *Z4, T1, T2); put(0, 8 + 4*(j-2) + r, *A2)
    for j in range(4):
        pk_cmul_inplace(k, *A1, *Z256, T3, T4)
        put(1, 2*j, *A1)
        pk_cmul(k, *A2, *A1, *Z8, T1, T2)
        put(1, 2*j+1, *A2)
    pk_cmul_inplace(k, *A1, *Z256, T3, T4)
    put(1, 8, *A1)
    k("v_mov_b32 v56, 0\n v_mov_b32 v57, 0")
    for r in range(9, 16): k(f"ds_write_b64 v106, v[56:57] offset:{T_SLOT + r*T_ROW}")
    stamp(k, "kg")
    D0, D1, D2 = 224, 228, 232
    k("s_waitcnt lgkmcnt(0)")
    for ks in range(8):
        k(f"v_mfma_f32_16x16x32_bf16 v[{D0}:{D0+3}], v[{AFa+4*ks}:{AFa+4*ks+3}], v[{OF+4*ks}:{OF+4*ks+3}], {'0' if ks == 0 else f'v[{D0}:{D0+3}]'}")
    for ks in range(8): k(f"ds_read_b128 v[{AFb+4*ks}:{AFb+4*ks+3}], v107 offset:{64*ks}")
    for ks in range(8): k(f"ds_read_b128 v[{AFa+4*ks}:{AFa+4*ks+3}], v107 offset:{T_SLOT + 64*ks}")
    k("s_waitcnt lgkmcnt(8)")
    for ks in range(8):
        k(f"v_mfma_f32_16x16x32_bf16 v[{D1}:{D1+3}], v[{AFb+4*ks}:{AFb+4*ks+3}], v[{OF+4*ks}:{OF+4*ks+3}], {'0' if ks == 0 else f'v[{D1}:{D1+3}]'}")
    k("s_waitcnt lgkmcnt(0)")
    for ks in range(8):
        k(f"v_mfma_f32_16x16x32_bf16 v[{D2}:{D2+3}], v[{AFa+4*ks}:{AFa+4*ks+3}], v[{OF+4*ks}:{OF+4*ks+3}], {'0' if ks == 0 else f'v[{D2}:{D2+3}]'}")
    k(f"v_lshlrev_b32 v122, 3, v{V_TID}\n v_add_u32 v122, {KEO_OFF}, v122\n s_nop 7")
    stamp(k, "kg")
    for t, Dt in enumerate((D0, D1, D2)):
        k(f"v_cvt_pk_bf16_f32 v{60+2*t}, v{Dt}, v{Dt+1}\n v_cvt_pk_bf16_f32 v{61+2*t}, v{Dt+2}, v{Dt+3}")
    k("ds_write_b64 v18, v[60:61]\n ds_write_b64 v19, v[62:63]\n ds_write_b32 v20, v64\n ds_write_b32 v20, v65 offset:64")
    k("s_waitcnt lgkmcnt(0)\n s_barrier")
    stamp(k)
    stamp(k, "kg")
    for c in range(4):
        for jq in range(2):
            for j in range(5): k(f"ds_read_u16 v{128+10*c+5*jq+j}, v{8+5*jq+j} offset:{c*KC_CH}")
    for c in range(4):
        k(f"s_waitcnt lgkmcnt({min(15, 30 - 10*c)})")
        for jq in range(2):
            b = 128 + 10*c + 5*jq; o = 168 + 8*c + 4*jq
            k(f"v_lshl_or_b32 v{o}, v{b+1}, 16, v{b}\n v_lshl_or_b32 v{o+1}, v{b+3}, 16, v{b+2}")
            k(f"v_lshl_or_b32 v{o+2}, v{b+2}, 16, v{b+1}\n v_lshl_or_b32 v{o+3}, v{b+4}, 16, v{b+3}")
    return X, ST, P

def gen_conv2(k, X, ST, P):
    for c in range(4):
        for jq in range(2):
            o = 168 + 8*c + 4*jq
            k(f"ds_write_b64 v122, v[{o}:{o+1}] offset:{c*KEO_CH + 2048*jq}")
            k(f"ds_write_b64 v122, v[{o+2}:{o+3}] offset:{c*KEO_CH + O_REL + 2048*jq}")
    stamp(k, "kg")
    k(f"v_lshlrev_b32 v123, 1, v{V_R}\n v_sub_u32 v123, 4062, v123\n v_lshl_add_u32 v123, v{V_G}, 4, v123")
    k(f"v_and_b32 v124, 1, v{V_R}\n v_cmp_eq_u32 vcc, 0, v124\n v_mov_b32 v124, 4158\n s_nop 0\n v_cndmask_b32 v124, 0, v124, vcc\n v_add_u32 v123, v123, v124")
    k(f"s_mul_i32 s70, s{S_WV}, {KEO_CH}\n s_add_u32 s70, s70, {KEO_OFF}")
    AA = 124
    for p in range(4):
        k(f"s_sub_u32 s71, s70, {512*(2*p+1)}")
        k(f"v_add_u32 v{AA+p}, s71, v123")
    k(f"s_mul_i32 s70, s{S_WV}, {U_CH}\n s_add_u32 s70, s70, {U_OFF + 480}")
    k(f"v_lshlrev_b32 v119, 5, v{V_R}\n v_lshl_add_u32 v119, v{V_G}, 4, v119\n v_add_u32 v119, s70, v119")
    stamp(k); stamp(k, "kg")
    import lib
    if lib.S1DIRECT:
        k("s_mov_b32 s64, 0")
        poll_val(k, SRD_DBG, 64, 64, sleep=2)
    else:
        k("s_mov_b32 s64, 128")
        poll_val(k, SRD_DBG, 64, 1, sleep=1)
    stamp(k)
    k(f"v_lshlrev_b32 v6, 4, v{V_TID}")
    k(f"s_lshl_b32 s71, s4, 14\n s_add_u32 s71, s71, {WS_XB}")
    for jj in range(4):
        k(f"s_mov_b32 s70, {WS_STATS1 + jj*4096}")
        k(f"buffer_load_dwordx4 v[{ST+4*jj}:{ST+4*jj+3}], v6, s[{SRD_WS}:{SRD_WS+3}], s70 offen sc1")
        k(f"buffer_load_dwordx4 v[{X+4*jj}:{X+4*jj+3}], v6, s[{SRD_WS}:{SRD_WS+3}], s71 offen sc1")
        if jj < 3: k("s_add_u32 s71, s71, 4096")
    AF = 224
    def loadA0(a, h):
        p = a // 2; off = (128 if a % 2 == 0 else 0) + 2*h
        return f"ds_read2_b32 v[{AF+4*a+2*h}:{AF+4*a+2*h+1}], v{AA+p} offset0:{off} offset1:{off+1}"
    for a in range(6):
        k(loadA0(a, 0)); k(loadA0(a, 1))
    k(loadA0(6, 0))
    for p in range(3): k(f"v_subrev_u32 v{AA+p}, 64, v{AA+p}")
    dma_setup(k, 57)
    for i in range(32): k(f"v_mov_b32 v{128+i}, 0")
    k(f"v_lshlrev_b32 v7, 2, v{V_TID}\n v_add_u32 v7, {U_OFF + 512}, v7")
    for jj in range(4):
        k(f"s_waitcnt vmcnt({6 - 2*jj})")
        for par in range(2):
            m = ST + 4*jj + 2*par
            k(f"v_mul_f32 v{m}, -v{m}, v{m+1}")
        for par in range(2):
            for h in range(2):
                r = X + 4*jj + 2*par + h
                k(f"v_lshlrev_b32 v{56+4*par+2*h}, 16, v{r}\n v_and_b32 v{57+4*par+2*h}, 0xffff0000, v{r}")
        for par in range(2):
            m = ST + 4*jj + 2*par
            for h in range(2):
                d = 56 + 4*par + 2*h
                k(f"v_pk_fma_f32 v[{d}:{d+1}], v[{d}:{d+1}], v[{m}:{m+1}], v[{m}:{m+1}] op_sel:[0,1,0] op_sel_hi:[1,1,0]")
        for c in range(4):
            k(f"v_cvt_pk_bf16_f32 v{P+4*jj+c}, v{56+c}, v{60+c}")
            k(f"ds_write_b32 v7, v{P+4*jj+c} offset:{c*U_CH + 1024*jj}")
    k("s_waitcnt lgkmcnt(0)\n s_barrier")
    stamp(k)
    ACC = 128; BF = (160, 192); AF = 224; BA = 119
    def loadB(st, J): return f"ds_read_b128 v[{BF[st]+4*J}:{BF[st]+4*J+3}], v{BA} offset:{512*J}"
    def loadA(a, h):
        p = a // 2; off = (128 if a % 2 == 0 else 0) + 2*h
        return f"ds_read2_b32 v[{AF+4*a+2*h}:{AF+4*a+2*h+1}], v{AA+p} offset0:{off} offset1:{off+1}"
    def stepA(p): return f"v_subrev_u32 v{AA+p}, 64, v{AA+p}"
    for J in range(8): k(loadB(0, J))
    k(f"v_subrev_u32 v{BA}, 64, v{BA}")
    def iteration(st, dmas):
        fill = {g: [] for g in range(36)}
        fill[0].append(loadA(6, 1)); fill[1].append(loadA(7, 0)); fill[2].append(loadA(7, 1)); fill[3].append(stepA(3))
        for J in range(8): fill[J].append(loadB(1-st, J))
        fill[8].append(f"v_subrev_u32 v{BA}, 64, v{BA}")
        ends = {0: 8, 1: 15, 2: 21, 3: 26, 4: 30, 5: 33}
        for a, g in ends.items():
            fill[g].append(loadA(a, 0)); fill[g+1].append(loadA(a, 1))
        fill[17].append(stepA(0)); fill[28].append(stepA(1)); fill[35].append(stepA(2))
        fill[35].append(loadA(6, 0))
        slots = [11, 18, 23, 12]
        for i, d in enumerate(dmas): fill[slots[i]].append(d)
        g = 0
        k("s_waitcnt lgkmcnt(1)")
        for a in range(8):
            if a == 6: k("s_waitcnt lgkmcnt(12)")
            for J in range(a, 8):
                k(f"v_mfma_f32_16x16x32_bf16 v[{ACC+4*J}:{ACC+4*J+3}], v[{AF+4*a}:{AF+4*a+3}], v[{BF[st]+4*(J-a)}:{BF[st]+4*(J-a)+3}], v[{ACC+4*J}:{ACC+4*J+3}]")
                for f in fill[g]: k(f)
                g += 1
    import lib
    k("s_waitcnt lgkmcnt(0)")
    if lib.CONV_UNROLL:
        for L in range(3):
            dma_listA_step(k, L, 68)
            dma_kstep_setup(k, 68, 72, 73)
            iteration(0, [dma_op(u, 72, 73) for u in range(4)])
            iteration(1, [dma_op(u, 72, 73) for u in range(4, 7)])
    else:
        k("s_mov_b32 s70, 0")
        dma_listA_step(k, 0, 68)
        dma_kstep_setup(k, 68, 72, 73)
        k.label("conv_loop")
        iteration(0, [dma_op(u, 72, 73) for u in range(4)])
        iteration(1, [dma_op(u, 72, 73) for u in range(4, 7)])
        k(f"s_add_u32 s68, s{S_WV}, 4\n s_cmp_lt_u32 s{S_WV}, 2\n s_cselect_b32 s71, 8, 16\n s_add_u32 s71, s71, s{S_WV}\n s_cmp_eq_u32 s70, 0\n s_cselect_b32 s68, s68, s71")
        dma_kstep_setup(k, 68, 72, 73)
        k("s_add_u32 s70, s70, 1\n s_cmp_lt_u32 s70, 3\n s_cbranch_scc1 conv_loop")
    k(f"v_mov_b32 v81, 132\n buffer_load_dword v80, v81, s[{SRD_DBG}:{SRD_DBG+3}], 0 offen sc1")
    iteration(0, [])
    iteration(1, [])
    stamp(k)
    stamp(k, "s2")
    k(f"s_cmp_lg_u32 s{S_WV}, 1\n s_cbranch_scc1 conv_w1")
    k("s_waitcnt vmcnt(0)\n v_cmp_ne_u32 vcc, 0, v80\n s_cbranch_vccnz conv_wok")
    spin_flag(k, SRD_DBG, 132, 80)
    k.label("conv_wok")
    cb_issue(k, 82)
    k.label("conv_w1")
    k("s_waitcnt lgkmcnt(0)\n s_barrier")
    stamp(k, "s2")
    k(f"s_mul_i32 s70, s{S_WV}, {YT_CH}\n s_add_u32 s70, s70, {YT_OFF}")
    k(f"v_mul_u32_u24 v56, 80, v{V_R}\n v_lshl_add_u32 v56, v{V_G}, 4, v56\n v_add_u32 v56, s70, v56")
    k("s_nop 4")
    for J in range(8):
        k(f"ds_write_b128 v56, v[{ACC+4*J}:{ACC+4*J+3}] offset:{1280*J}")
    k("s_waitcnt lgkmcnt(0)\n s_barrier")
    k(f"v_lshrrev_b32 v56, 3, v{V_TID}\n v_lshlrev_b32 v56, 4, v56\n v_lshl_add_u32 v56, v{V_TID}, 3, v56\n v_add_u32 v56, {YT_OFF}, v56")
    for jj in range(4):
        for c in range(4):
            k(f"ds_read_b64 v[{128+8*jj+2*c}:{128+8*jj+2*c+1}], v56 offset:{c*YT_CH + jj*2560}")
    k("s_lshl_b32 s72, s6, 16\n s_and_b32 s73, s6, 0xffff0000\n s_lshl_b32 s74, s7, 16\n s_and_b32 s75, s7, 0xffff0000")
    k(f"v_lshrrev_b32 v57, 4, v{V_TID}\n v_mul_u32_u24 v57, 40960, v57\n v_and_b32 v58, 15, v{V_TID}\n v_lshl_add_u32 v57, v58, 4, v57")
    k("s_lshr_b32 s70, s4, 3\n s_lshl_b32 s70, s70, 11\n s_bfe_u32 s71, s4, 0x10002\n s_lshl_b32 s71, s71, 10\n s_add_u32 s70, s70, s71")
    k(f"s_and_b32 s71, s4, 3\n s_lshl_b32 s71, s71, 8\n s_add_u32 s70, s70, s71\n s_add_u32 s70, s70, {WS_HF}")
    for jj in range(4):
        k(f"s_waitcnt lgkmcnt({12 - 4*jj})")
        for par in range(2):
            for h in range(2):
                r = X + 4*jj + 2*par + h
                k(f"v_lshlrev_b32 v{64+4*par+2*h}, 16, v{r}\n v_and_b32 v{65+4*par+2*h}, 0xffff0000, v{r}")
        for c in range(4):
            k(f"v_lshlrev_b32 v{72+c}, 16, v{P+4*jj+c}\n v_and_b32 v{76+c}, 0xffff0000, v{P+4*jj+c}")
        for par in range(2):
            for c in range(4):
                y = 128 + 8*jj + 2*c + par
                k(f"v_fma_f32 v{72+4*par+c}, v{72+4*par+c}, s{72+c}, v{y}")
        for i in range(8): k(f"v_add_f32 v{64+i}, v{64+i}, v{72+i}")
        o = 160 + 4*jj
        for i in range(4): k(f"v_cvt_pk_bf16_f32 v{o+i}, v{64+2*i}, v{65+2*i}")
        k(f"buffer_store_dwordx4 v[{o}:{o+3}], v57, s[{SRD_WS}:{SRD_WS+3}], s70 offen sc1")
        if jj < 3: k(f"s_add_u32 s70, s70, {16*40960}")
    k(f"s_cmp_lg_u32 s{S_WV}, 1\n s_cbranch_scc1 conv_cb2")
    k("s_waitcnt vmcnt(4)")
    cb_write(k, 82)
    k.label("conv_cb2")
    stamp(k)
    k("s_and_b32 s79, s4, 15")
```

```python
from mk_common import *

W1_LDS = 143360
LDS_TOTAL = 163840

W2A = 56
W2V = 176
def w2_reg(i, p):
    if i < 10: return f"a[{W2A+20*i+4*p}:{W2A+20*i+4*p+3}]"
    return f"v[{W2V+20*(i-10)+4*p}:{W2V+20*(i-10)+4*p+3}]"
def w2_ops():
    ops = []
    for g0 in (0, 4, 8, 12):
        for p in range(5):
            for i in range(g0, min(g0 + 4, 14)):
                pre = ""
                if i == g0: pre = f"s_add_u32 s78, s76, {p*54*1024 + g0*1024}\n "
                if i == 13: pre = "s_add_u32 s78, s78, s77\n "
                ops.append(pre + f"buffer_load_dwordx4 {w2_reg(i, p)}, v5, s[{SRD_WS}:{SRD_WS+3}], s78 offen offset:{(i-g0)*1024} sc1")
    return ops
def w2_frag(i, p):
    return w2_reg(i, p)

def residual_addr(k):
    k(f"s_lshl_b32 s64, s6, 1\n s_lshr_b32 s65, s{S_WV}, 1\n s_add_u32 s64, s64, s65")
    k(f"s_mul_i32 s79, s64, 40960\n s_and_b32 s67, s{S_WV}, 1\n s_lshl_b32 s67, s67, 3\n s_add_u32 s79, s79, s67\n s_add_u32 s79, s79, {WS_HF}")
    k("s_mul_i32 s67, s7, 20")
    for p in range(5):
        if p < 4: k(f"v_lshlrev_b32 v8, 1, v{V_G}\n v_add_u32 v8, {8*(p>>1) + (p&1)}, v8")
        else: k(f"v_add_u32 v8, 16, v{V_G}")
        k("v_add_u32 v8, s67, v8")
        k("v_lshrrev_b32 v9, 3, v8\n v_lshlrev_b32 v9, 11, v9\n v_bfe_u32 v10, v8, 2, 1\n v_lshl_add_u32 v9, v10, 10, v9")
        k(f"v_and_b32 v10, 3, v8\n v_lshl_add_u32 v9, v10, 8, v9\n v_lshl_add_u32 v{18+p}, v{V_R}, 4, v9")
def residual_issue(k):
    for p in range(5):
        k(f"buffer_load_dwordx2 v[{8+2*p}:{9+2*p}], v{18+p}, s[{SRD_WS}:{SRD_WS+3}], s79 offen sc1")

def gen_gemm1(k):
    k.c("======== GEMM1 ========")
    b = S_WG
    k(f"s_mov_b32 s4, s{S_MB}\n s_mov_b32 s5, s{S_FT0}")
    k(f"s_and_b32 s6, s{b}, 7\n s_lshr_b32 s6, s6, 1\n s_lshl_b32 s6, s6, 3\n s_lshr_b32 s64, s{b}, 3\n s_and_b32 s64, s64, 7\n s_add_u32 s6, s6, s64")
    k(f"s_and_b32 s7, s{b}, 1\n s_lshl_b32 s7, s7, 2\n s_lshr_b32 s64, s{b}, 6\n s_add_u32 s7, s7, s64")
    k(f"v_lshlrev_b32 v5, 4, v{V_LANE}")
    k(f"v_lshrrev_b32 v6, 2, v{V_LANE}\n v_mul_u32_u24 v6, 224, v6\n v_and_b32 v7, 3, v{V_LANE}\n v_lshl_add_u32 v6, v7, 3, v6")
    k("v_add_u32 v8, 0x10000, v6\n v_add_u32 v9, 0x20000, v6")
    stamp(k, "s2")
    k("s_waitcnt vmcnt(4) lgkmcnt(0)\n s_barrier")
    labB = k.newlab("lb")
    k(f"s_cmp_eq_u32 s79, -1\n s_cbranch_scc1 {labB}")
    dma_listB(k)
    k.label(labB)
    stamp(k, "s2")
    stamp(k)
    B = 96
    k(f"s_lshl_b32 s64, s4, 2\n s_add_u32 s64, s64, s{S_WV}")
    k(f"s_mul_i32 s74, s64, 40960\n s_add_u32 s74, s74, {WS_HF}")
    k(f"s_mul_i32 s68, s{S_WV}, 14\n s_cmp_eq_u32 s{S_WV}, 3\n s_cselect_b32 s69, 1, 0\n s_sub_u32 s68, s68, s69")
    k(f"s_mul_i32 s76, s7, 270\n s_add_u32 s76, s76, s68\n s_lshl_b32 s76, s76, 10\n s_add_u32 s76, s76, {WS_WF2}")
    k(f"s_cmp_ge_u32 s{S_WV}, 2\n s_cselect_b32 s77, 0x40000000, 0")
    ACC = 24; S1 = 80; S2 = 88
    k("v_mov_b32 v20, 0x3f803f80\n v_mov_b32 v21, 0x3f803f80\n v_mov_b32 v22, 0x3f803f80\n v_mov_b32 v23, 0x3f803f80")
    k(f"s_mov_b32 s75, s74")
    NB = 6; PRE = 5
    vm = []
    def loadB(s):
        r = B + 8*(s % NB)
        k(f"buffer_load_dwordx4 v[{r}:{r+3}], v5, s[{SRD_WS}:{SRD_WS+3}], s74 offen sc1"); vm.append(("B", s))
        k(f"buffer_load_dwordx4 v[{r+4}:{r+7}], v5, s[{SRD_WS}:{SRD_WS+3}], s74 offen offset:1024 sc1"); vm.append(("B", s))
        if s < 19: k("s_add_u32 s74, s74, 2048")
    lab = k.newlab("prb"); done = k.newlab("prbd"); skip = k.newlab("prbs")
    k(f"s_cmp_lg_u32 s{S_WV}, 0\n s_cbranch_scc1 {skip}")
    for i in range(3):
        k(f"v_add_u32 v12, {64*i}, v{V_LANE}\n v_lshrrev_b32 v13, 3, v12\n v_lshlrev_b32 v13, 11, v13\n v_bfe_u32 v14, v12, 2, 1\n v_lshl_add_u32 v13, v14, 10, v13\n v_and_b32 v14, 3, v12\n v_lshl_add_u32 v{16+i}, v14, 8, v13")
    k(f"v_min_u32 v18, {19*2048 + 1024 + 3*256}, v18")
    k(f"s_mov_b32 s72, {WS_HF + 63*40960 + 240}\n s_mov_b32 s73, 0")
    k.label(lab)
    for i in range(3): k(f"buffer_load_dword v{12+i}, v{16+i}, s[{SRD_WS}:{SRD_WS+3}], s72 offen sc1")
    k("s_add_u32 s73, s73, 1\n s_waitcnt vmcnt(0)\n v_max3_u32 v12, v12, v13, v14")
    k(f"v_cmp_eq_u32 vcc, -1, v12\n s_cmp_gt_u32 s73, {SPIN_MAX}\n s_cbranch_scc1 {done}\n s_cbranch_vccz {done}\n s_sleep 1\n s_branch {lab}")
    k.label(done)
    k.label(skip)
    stamp(k, "s2")
    k("s_waitcnt vmcnt(0) lgkmcnt(0)")
    stamp(k, "s2")
    k("s_barrier")
    stamp(k); stamp(k, "s2")
    k("s_mov_b32 s71, 0")
    k.label("g1_retry")
    k("s_mov_b32 s74, s75")
    for s in range(PRE): loadB(s)
    def readA1(s, buf, ftl, hh):
        o = s*7168 + ftl*32 + 3584*hh
        reg = (6, 8, 9)[o // 65536]
        a0 = 28*buf + 4*ftl + 2*hh
        k(f"ds_read_b64_tr_b16 a[{a0}:{a0+1}], v{reg} offset:{o % 65536}")
    w2q = w2_ops()
    def wait_swap(s):
        last = max(i for i, e in enumerate(vm) if e == ("B", s))
        k(f"s_waitcnt vmcnt({len(vm) - 1 - last})")
        if s in (0, 1, 2, 4, 7, 10, 13, 16, 19): stamp(k, "g1")
        b0 = B + 8*(s % NB)
        if s == 0: k(f"v_max3_u32 v10, v{b0}, v{b0+1}, v{b0+2}\n v_max3_u32 v11, v{b0+3}, v{b0+4}, v{b0+5}\n v_max3_u32 v10, v10, v{b0+6}, v{b0+7}")
        else: k(f"v_max3_u32 v10, v10, v{b0}, v{b0+1}\n v_max3_u32 v11, v11, v{b0+2}, v{b0+3}\n v_max3_u32 v10, v10, v{b0+4}, v{b0+5}\n v_max3_u32 v11, v11, v{b0+6}, v{b0+7}")
        k(f"v_swap_b32 v{b0+2}, v{b0+4}\n v_swap_b32 v{b0+3}, v{b0+5}")
    for ftl in range(7):
        for hh in range(2): readA1(0, 0, ftl, hh)
    wait_swap(0)
    for s in range(20):
        buf = s % 2
        b0 = B + 8*(s % NB)
        k("s_waitcnt lgkmcnt(0)")
        if s == 0: k("s_nop 0")
        fill = [(ftl, hh) for ftl in range(7) for hh in range(2)] if s < 19 else []
        seq = []
        for ftl in range(7):
            for tt in range(2):
                c = ACC + 4*(ftl*2+tt); a0 = 28*buf + 4*ftl
                cin = "0" if s == 0 else f"v[{c}:{c+3}]"
                seq.append(f"v_mfma_f32_16x16x32_bf16 v[{c}:{c+3}], a[{a0}:{a0+3}], v[{b0+4*tt}:{b0+4*tt+3}], {cin}")
        for tt in range(2):
            c1 = "0" if s == 0 else f"v[{S1+4*tt}:{S1+4*tt+3}]"; c2 = "0" if s == 0 else f"v[{S2+4*tt}:{S2+4*tt+3}]"
            seq.append(f"v_mfma_f32_16x16x32_bf16 v[{S1+4*tt}:{S1+4*tt+3}], v[20:23], v[{b0+4*tt}:{b0+4*tt+3}], {c1}")
            seq.append(f"v_mfma_f32_16x16x32_bf16 v[{S2+4*tt}:{S2+4*tt+3}], v[{b0+4*tt}:{b0+4*tt+3}], v[{b0+4*tt}:{b0+4*tt+3}], {c2}")
        for i, m in enumerate(seq):
            k(m)
            if i < len(fill): readA1(s+1, 1-buf, *fill[i])
            if i == 14:
                if s + 1 < 20: wait_swap(s + 1)
            if i == 15 and s + PRE < 20: loadB(s + PRE)
            if (i in (16, 17) or (i == 13 and s % 2 == 0)) and w2q:
                k(w2q.pop(0)); vm.append(("W", 0))
    k("v_max_u32 v10, v10, v11\n v_cmp_eq_u32 vcc, -1, v10\n s_cbranch_vccnz g1_redo")
    k.label("g1_ok")
    k.tail.append(f"g1_redo:\n  s_add_u32 s71, s71, 1\n  s_cmp_gt_u32 s71, 20000\n  s_cbranch_scc1 g1_ok\n  s_sleep 8\n  s_branch g1_retry")
    stamp(k); stamp(k, "g1")
    k("s_nop 1")
    k(f"v_and_b32 v10, 3, v{V_R}\n v_lshrrev_b32 v11, 2, v{V_R}\n v_lshl_add_u32 v11, v11, 4, v{V_R}\n v_lshlrev_b32 v11, 2, v11")
    k("v_cmp_eq_u32 s[64:65], 1, v10\n v_cmp_eq_u32 s[66:67], 2, v10\n v_cmp_eq_u32 s[68:69], 3, v10")
    CS = (104, 112); B1 = (108, 116)
    k(f"v_lshlrev_b32 v7, 4, v{V_G}\n v_add_u32 v7, {CB_OFF}, v7")
    k(f"ds_read_b128 v[{CS[0]}:{CS[0]+3}], v7\n ds_read_b128 v[{B1[0]}:{B1[0]+3}], v7 offset:448")
    for q, sp in ((1, 64), (2, 66), (3, 68)):
        for tt in range(2):
            bb = S2 + 4*tt
            k(f"v_cndmask_b32 v{bb}, v{bb}, v{bb+q}, s[{sp}:{sp+1}]")
    for tt in range(2):
        k(f"ds_bpermute_b32 v{S2+4*tt+1}, v11, v{S2+4*tt}")
    RR = (96, 100)
    for tt in range(2): k(f"v_mul_f32 v{S1+4*tt}, 0x3acccccd, v{S1+4*tt}")
    k(f"s_lshl_b32 s64, s4, 2\n s_add_u32 s64, s64, s{S_WV}\n s_mul_i32 s64, s64, {108*1024}\n s_lshl_b32 s65, s5, 10\n s_add_u32 s64, s64, s65\n s_add_u32 s64, s64, {WS_ACT}")
    k(f"s_mov_b32 s70, {LOG2E:#x}")
    k("s_waitcnt lgkmcnt(0)")
    Q = [S2 + 1, S2 + 5]; M = [S1, S1 + 4]
    def both(f):
        for tt in range(2): k(f(tt))
    both(lambda t: f"v_mul_f32 v{Q[t]}, 0x3acccccd, v{Q[t]}")
    both(lambda t: f"v_fma_f32 v{Q[t]}, -v{M[t]}, v{M[t]}, v{Q[t]}")
    both(lambda t: f"v_max_f32 v{Q[t]}, 0, v{Q[t]}")
    both(lambda t: f"v_cvt_pk_bf16_f32 v{Q[t]}, v{Q[t]}, v{Q[t]}")
    both(lambda t: f"v_lshlrev_b32 v{Q[t]}, 16, v{Q[t]}")
    both(lambda t: f"v_add_f32 v{Q[t]}, 0x3727c5ac, v{Q[t]}")
    both(lambda t: f"v_cvt_pk_bf16_f32 v{Q[t]}, v{Q[t]}, v{Q[t]}")
    both(lambda t: f"v_lshlrev_b32 v{Q[t]}, 16, v{Q[t]}")
    both(lambda t: f"v_sqrt_f32 v{Q[t]}, v{Q[t]}")
    both(lambda t: f"v_cvt_pk_bf16_f32 v{M[t]}, v{M[t]}, v{M[t]}")
    both(lambda t: f"v_cvt_pk_bf16_f32 v{Q[t]}, v{Q[t]}, v{Q[t]}")
    both(lambda t: f"v_lshlrev_b32 v{M[t]}, 16, v{M[t]}")
    both(lambda t: f"v_lshlrev_b32 v{Q[t]}, 16, v{Q[t]}")
    both(lambda t: f"v_rcp_f32 v{RR[t]}, v{Q[t]}")
    k("s_nop 0")
    both(lambda t: f"v_mul_f32 v{RR[t]+2}, -v{M[t]}, v{RR[t]}")
    TM = 120; E = (128, 136); PP = (144, 152); OUT = (160, 164)
    def stageA(ftl):
        bsel = ftl % 2; e0 = E[bsel]; out = []
        for tt in range(2):
            c = ACC + 4*(ftl*2+tt); nrm = RR[tt] + 2; t = TM + 4*tt
            for h in range(2): out.append(f"v_pk_fma_f32 v[{t+2*h}:{t+2*h+1}], v[{CS[bsel]+2*h}:{CS[bsel]+2*h+1}], v[{nrm}:{nrm+1}], v[{B1[bsel]+2*h}:{B1[bsel]+2*h+1}] op_sel_hi:[1,0,1]")
        for tt in range(2):
            c = ACC + 4*(ftl*2+tt); r = RR[tt]; t = TM + 4*tt
            for h in range(2): out.append(f"v_pk_fma_f32 v[{c+2*h}:{c+2*h+1}], v[{c+2*h}:{c+2*h+1}], v[{r}:{r+1}], v[{t+2*h}:{t+2*h+1}] op_sel_hi:[1,0,1]")
        for tt in range(2):
            c = ACC + 4*(ftl*2+tt); e = e0 + 4*tt
            for h in range(2): out.append(f"v_pk_mul_f32 v[{e+2*h}:{e+2*h+1}], v[{c+2*h}:{c+2*h+1}], s[70:71] op_sel_hi:[1,0]")
        return out
    def stageExp(ftl): return [f"v_exp_f32 v{E[ftl%2]+i}, v{E[ftl%2]+i}" for i in range(8)]
    def stageB(ftl):
        e0 = E[ftl % 2]; p0 = PP[ftl % 2]; out = []
        for j in range(4): out.append(f"v_pk_add_f32 v[{p0+2*j}:{p0+2*j+1}], v[{e0+2*j}:{e0+2*j+1}], 2.0 op_sel_hi:[1,0]")
        for j in range(4): out.append(f"v_pk_fma_f32 v[{p0+2*j}:{p0+2*j+1}], v[{e0+2*j}:{e0+2*j+1}], v[{p0+2*j}:{p0+2*j+1}], 2.0 op_sel_hi:[1,1,0]")
        return out
    def stageRcp(ftl): return [f"v_rcp_f32 v{PP[ftl%2]+i}, v{PP[ftl%2]+i}" for i in range(8)]
    def stageC(ftl):
        p0 = PP[ftl % 2]; o = OUT[ftl % 2]; out = []
        for j in range(4): out.append(f"v_pk_fma_f32 v[{p0+2*j}:{p0+2*j+1}], v[{p0+2*j}:{p0+2*j+1}], -2.0, 1.0 op_sel_hi:[1,0,0]")
        for tt in range(2):
            c = ACC + 4*(ftl*2+tt)
            for h in range(2): out.append(f"v_pk_mul_f32 v[{p0+4*tt+2*h}:{p0+4*tt+2*h+1}], v[{p0+4*tt+2*h}:{p0+4*tt+2*h+1}], v[{c+2*h}:{c+2*h+1}]")
        for tt in range(2):
            out.append(f"v_cvt_pk_bf16_f32 v{o+2*tt}, v{p0+4*tt}, v{p0+4*tt+1}"); out.append(f"v_cvt_pk_bf16_f32 v{o+2*tt+1}, v{p0+4*tt+2}, v{p0+4*tt+3}")
        return out
    def ilv(a, b):
        out = []; na, nb = len(a), len(b); i = j = 0
        while i < na or j < nb:
            if i < na: out.append(a[i]); i += 1
            if j < nb and (i * nb >= j * na or i >= na): out.append(b[j]); j += 1
        return out
    def emit(seq, nload):
        n = len(seq); done = 0
        for i, x in enumerate(seq):
            k(x)
            if nload and w2q and done < nload and (i + 1) * nload >= (done + 1) * n - n // 2:
                k(w2q.pop(0)); done += 1
    for f in range(8):
        if f < 7 and f + 1 < 7:
            nb = (f + 1) % 2
            k(f"ds_read_b128 v[{CS[nb]}:{CS[nb]+3}], v7 offset:{64*(f+1)}\n ds_read_b128 v[{B1[nb]}:{B1[nb]+3}], v7 offset:{448 + 64*(f+1)}")
        A_ = stageA(f) if f < 7 else []
        R_ = stageRcp(f-1) if f >= 1 else []
        emit(ilv(R_, A_), 0)
        X_ = stageExp(f) if f < 7 else []
        C_ = stageC(f-1) if f >= 1 else []
        if f >= 1 and f == 7: k("s_nop 0")
        emit(ilv(X_, C_), 0)
        if f >= 1:
            o = OUT[(f-1) % 2]
            k(f"buffer_store_dwordx4 v[{o}:{o+3}], v5, s[{SRD_WS}:{SRD_WS+3}], s64 offen sc1")
            if f < 7: k("s_add_u32 s64, s64, 1024")
        if f < 7:
            k("s_nop 0")
            for x in stageB(f): k(x)
            if f + 1 < 7: k("s_waitcnt lgkmcnt(0)")
    stamp(k); stamp(k, "g2")
    k(f"s_and_b32 s65, s{S_WG}, 1\n s_lshl_b32 s65, s65, 3\n s_lshr_b32 s66, s{S_WG}, 5\n s_add_u32 s65, s65, s66\n s_lshl_b32 s65, s65, 2")
    k(f"s_add_u32 s64, s4, 33\n s_lshl_b32 s64, s64, 7\n s_add_u32 s64, s64, s65\n s_add_u32 s64, s64, {WS_SYNC}")
    lab = k.newlab("s3f")
    k(f"s_waitcnt vmcnt(0)\n s_barrier\n s_cmp_lg_u32 s{S_WV}, 0\n s_cbranch_scc1 {lab}")
    k(f"v_mov_b32 v4, 1\n v_mov_b32 v7, 0\n s_mov_b64 exec, 1\n buffer_store_dword v4, v7, s[{SRD_WS}:{SRD_WS+3}], s64 offen sc1\n s_mov_b64 exec, -1")
    k.label(lab)
    for x in w2q: k(x)

def gen_gemm2(k):
    k.c("======== GEMM2 ========")
    ACC = 24; RING = 104; NR = 4
    k(f"s_mul_i32 s68, s{S_WV}, 14\n s_cmp_eq_u32 s{S_WV}, 3\n s_cselect_b32 s69, 1, 0\n s_sub_u32 s68, s68, s69")
    k(f"s_mul_i32 s70, s6, 216\n s_lshl_b32 s71, s68, 1\n s_add_u32 s70, s70, s71\n s_lshl_b32 s70, s70, 10\n s_add_u32 s70, s70, {WS_ACT}")
    residual_addr(k)
    k(f"s_lshr_b32 s64, s6, 1\n s_add_u32 s64, s64, 33\n s_lshl_b32 s64, s64, 7\n s_add_u32 s64, s64, {WS_SYNC}")
    stamp(k, "g2")
    poll_flags(k, SRD_WS, 64, 16, sleep=1)
    stamp(k); stamp(k, "g2")
    def issue(i):
        st = RING + 16*(i % NR)
        for Tl in range(2):
            k(f"s_add_u32 s71, s70, {Tl*108*1024 + i*2048}")
            if i == 13: k("s_add_u32 s71, s71, s77")
            k(f"buffer_load_dwordx4 v[{st+8*Tl}:{st+8*Tl+3}], v5, s[{SRD_WS}:{SRD_WS+3}], s71 offen sc1")
            k(f"buffer_load_dwordx4 v[{st+8*Tl+4}:{st+8*Tl+7}], v5, s[{SRD_WS}:{SRD_WS+3}], s71 offen offset:1024 sc1")
    for i in range(NR): issue(i)
    def issue_ops(i):
        st = RING + 16*(i % NR); ops = []
        for Tl in range(2):
            pre = f"s_add_u32 s{71+Tl}, s70, {Tl*108*1024 + i*2048}"
            if i == 13: pre += f"\n s_add_u32 s{71+Tl}, s{71+Tl}, s77"
            ops.append(pre + f"\n buffer_load_dwordx4 v[{st+8*Tl}:{st+8*Tl+3}], v5, s[{SRD_WS}:{SRD_WS+3}], s{71+Tl} offen sc1")
            ops.append(f"buffer_load_dwordx4 v[{st+8*Tl+4}:{st+8*Tl+7}], v5, s[{SRD_WS}:{SRD_WS+3}], s{71+Tl} offen offset:1024 sc1")
        return ops
    residual_issue(k)
    vm2 = [i for i in range(NR) for _ in range(4)] + [-1]*5
    def wait_swap2(i):
        last = max(j for j, e in enumerate(vm2) if e == i)
        k(f"s_waitcnt vmcnt({len(vm2) - 1 - last})")
        if i in (0, 1, 3, 6, 9, 13): stamp(k, "g2")
        st = RING + 16*(i % NR)
        for Tl in range(2):
            b0 = st + 8*Tl
            k(f"v_swap_b32 v{b0+2}, v{b0+4}\n v_swap_b32 v{b0+3}, v{b0+5}")
    wait_swap2(0)
    k("s_nop 0")
    for i in range(14):
        st = RING + 16*(i % NR)
        pend = issue_ops(i - 1 + NR) if (i >= 1 and i - 1 + NR < 14) else []
        n = 0
        for p in range(5):
            for tt in range(4):
                c = ACC + 4*(p*4+tt)
                cin = "0" if i == 0 else f"v[{c}:{c+3}]"
                k(f"v_mfma_f32_16x16x32_bf16 v[{c}:{c+3}], {w2_frag(i, p)}, v[{st+4*tt}:{st+4*tt+3}], {cin}")
                n += 1
                if pend and n in (1, 3, 5, 7):
                    k(pend.pop(0)); vm2.append(i - 1 + NR)
                if n == 14 and i + 1 < 14: wait_swap2(i + 1)
    stamp(k); stamp(k, "g2")
    k(f"s_mul_i32 s64, s{S_WV}, 20480\n v_add_u32 v18, s64, v5")
    k("s_nop 6")
    for tt in range(4):
        lab = k.newlab("skipw")
        k(f"s_cmp_eq_u32 s{S_WV}, {tt}\n s_cbranch_scc1 {lab}")
        for p in range(5):
            c = ACC + 4*(p*4+tt)
            k(f"ds_write_b128 v18, v[{c}:{c+3}] offset:{tt*5120 + p*1024}")
        k.label(lab)
    for tt in range(4):
        lab = k.newlab("skipm")
        k(f"s_cmp_lg_u32 s{S_WV}, {tt}\n s_cbranch_scc1 {lab}")
        for p in range(5):
            c = ACC + 4*(p*4+tt)
            k(f"v_pk_mov_b32 v[{104+4*p}:{105+4*p}], v[{c}:{c+1}], v[{c}:{c+1}] op_sel:[0,1]\n v_pk_mov_b32 v[{106+4*p}:{107+4*p}], v[{c+2}:{c+3}], v[{c+2}:{c+3}] op_sel:[0,1]")
        k.label(lab)
    k("s_waitcnt lgkmcnt(0)\n s_barrier")
    for j in range(1, 4):
        k(f"s_add_u32 s64, s{S_WV}, {j}\n s_and_b32 s64, s64, 3\n s_mul_i32 s64, s64, 20480\n s_mul_i32 s65, s{S_WV}, 5120\n s_add_u32 s64, s64, s65")
        k(f"v_add_u32 v18, s64, v5")
        for p in range(5):
            d = 124 + 20*(j-1) + 4*p
            k(f"ds_read_b128 v[{d}:{d+3}], v18 offset:{p*1024}")
    k("s_waitcnt lgkmcnt(0)")
    for j in range(3):
        for i in range(0, 20, 2):
            k(f"v_pk_add_f32 v[{104+i}:{105+i}], v[{104+i}:{105+i}], v[{124+20*j+i}:{125+20*j+i}]")
    for p in range(5):
        for h in range(2):
            k(f"v_lshlrev_b32 v18, 16, v{8+2*p+h}\n v_and_b32 v19, 0xffff0000, v{8+2*p+h}")
            k(f"v_pk_add_f32 v[{104+4*p+2*h}:{105+4*p+2*h}], v[{104+4*p+2*h}:{105+4*p+2*h}], v[18:19]")
    for p in range(5):
        k(f"v_cvt_pk_bf16_f32 v{24+2*p}, v{104+4*p}, v{105+4*p}\n v_cvt_pk_bf16_f32 v{25+2*p}, v{106+4*p}, v{107+4*p}")
    k(f"s_lshl_b32 s64, s6, 1\n s_lshr_b32 s65, s{S_WV}, 1\n s_add_u32 s64, s64, s65\n s_lshl_b32 s64, s64, 5\n s_and_b32 s65, s{S_WV}, 1\n s_add_u32 s64, s64, s65")
    k("s_mul_i32 s64, s64, 1280\n s_mul_i32 s65, s7, 160\n s_add_u32 s64, s64, s65")
    k(f"v_mul_u32_u24 v18, 2560, v{V_R}\n v_lshl_add_u32 v19, v{V_G}, 4, v18\n v_lshl_add_u32 v20, v{V_G}, 3, v18")
    import lib
    fl = lib.OUTFLAG
    k(f"buffer_store_dwordx4 v[24:27], v19, s[{SRD_OUT}:{SRD_OUT+3}], s64 offen {fl}")
    k(f"buffer_store_dwordx4 v[28:31], v19, s[{SRD_OUT}:{SRD_OUT+3}], s64 offen offset:64 {fl}")
    k(f"buffer_store_dwordx2 v[32:33], v20, s[{SRD_OUT}:{SRD_OUT+3}], s64 offen offset:128 {fl}")
```

```python
from mk_common import *

T_WAVE = 16896; T_SLOT = 8448; T_ROW = 528
KC_OFF = 67584; KC_CH = 1536
KEO_OFF = 73728; KEO_CH = 8320; O_REL = 4160
U_OFF = 107008; U_CH = 4608
YT_OFF = 73728; YT_CH = 10240

def pk_cmul_inplace(k, ar, ai, br, bi, t, t2):
    k(f"v_pk_mul_f32 v[{t}:{t+1}], v[{ar}:{ar+1}], v[{br}:{br+1}]")
    k(f"v_pk_mul_f32 v[{t2}:{t2+1}], v[{ar}:{ar+1}], v[{bi}:{bi+1}]")
    k(f"v_pk_fma_f32 v[{ar}:{ar+1}], v[{ai}:{ai+1}], v[{bi}:{bi+1}], v[{t}:{t+1}] neg_lo:[1,0,0] neg_hi:[1,0,0]")
    k(f"v_pk_fma_f32 v[{ai}:{ai+1}], v[{ai}:{ai+1}], v[{br}:{br+1}], v[{t2}:{t2+1}]")
def pk_cmul(k, dr, di, ar, ai, br, bi, t, t2):
    k(f"v_pk_mul_f32 v[{t}:{t+1}], v[{ar}:{ar+1}], v[{br}:{br+1}]")
    k(f"v_pk_mul_f32 v[{t2}:{t2+1}], v[{ar}:{ar+1}], v[{bi}:{bi+1}]")
    k(f"v_pk_fma_f32 v[{dr}:{dr+1}], v[{ai}:{ai+1}], v[{bi}:{bi+1}], v[{t}:{t+1}] neg_lo:[1,0,0] neg_hi:[1,0,0]")
    k(f"v_pk_fma_f32 v[{di}:{di+1}], v[{ai}:{ai+1}], v[{br}:{br+1}], v[{t2}:{t2+1}]")
def pk_csq(k, dr, di, ar, ai, t):
    k(f"v_pk_mul_f32 v[{t}:{t+1}], v[{ai}:{ai+1}], v[{ai}:{ai+1}]")
    k(f"v_pk_add_f32 v[{di}:{di+1}], v[{ar}:{ar+1}], v[{ar}:{ar+1}]")
    k(f"v_pk_fma_f32 v[{dr}:{dr+1}], v[{ar}:{ar+1}], v[{ar}:{ar+1}], v[{t}:{t+1}] neg_lo:[0,0,1] neg_hi:[0,0,1]")
    k(f"v_pk_mul_f32 v[{di}:{di+1}], v[{di}:{di+1}], v[{ai}:{ai+1}]")

def gen_conv(k):
    k.c("======== role A: K-gen + conv ========")
    import lib
    X = 8
    ST = 24
    P = 40
    if lib.XDIRECT: X, P = 40, 8
    k("s_lshl_b32 s5, s4, 3")
    k(f"s_add_u32 s64, s{P_LDT}, s5\n s_addc_u32 s65, s{P_LDT+1}, 0")
    k(f"s_add_u32 s66, s{P_DSK}, s5\n s_addc_u32 s67, s{P_DSK+1}, 0")
    k("s_load_dwordx2 s[68:69], s[64:65], 0")
    k("s_load_dwordx2 s[6:7], s[66:67], 0")
    k(f"s_lshl_b32 s70, s4, 2\n s_add_u32 s70, s70, s{S_WV}\n s_lshl_b32 s70, s70, 8")
    k(f"v_lshlrev_b32 v5, 2, v{V_LANE}\n v_add_u32 v5, s70, v5")
    for i, p in enumerate((P_ARE, P_AIM, P_BRE, P_BIM, P_CRE, P_CIM)):
        k(f"global_load_dword v{56+i}, v5, s[{p}:{p+1}]")
    k("v_mov_b32 v64, 0\n v_mov_b32 v65, 0\n v_mov_b32 v66, 0\n v_mov_b32 v67, 0")
    k(f"v_lshrrev_b32 v68, 5, v{V_TID}\n v_mul_u32_u24 v68, {U_CH}, v68\n v_and_b32 v69, 31, v{V_TID}\n v_lshl_add_u32 v68, v69, 4, v68\n v_add_u32 v68, {U_OFF}, v68")
    k(f"v_subrev_u32 v70, 128, v{V_TID}\n v_lshrrev_b32 v71, 4, v70\n v_mul_u32_u24 v71, {KEO_CH}, v71\n v_bfe_u32 v72, v70, 3, 1\n v_mul_u32_u24 v72, {O_REL}, v72\n v_add_u32 v71, v71, v72")
    k(f"v_and_b32 v72, 7, v70\n v_lshl_add_u32 v71, v72, 2, v71\n v_add_u32 v71, {KEO_OFF + 4096}, v71")
    k(f"s_cmp_ge_u32 s{S_WV}, 2\n s_cbranch_scc1 conv_z1")
    k("ds_write_b128 v68, v[64:67]")
    k.label("conv_z1")
    k(f"s_cmp_lg_u32 s{S_WV}, 2\n s_cbranch_scc1 conv_z2")
    k("ds_write_b32 v71, v64")
    k.label("conv_z2")
    for jq in range(2):
        for j in range(5):
            d = 8 + 5*jq + j
            k(f"v_lshlrev_b32 v22, 2, v{V_TID}")
            k(f"v_sub_u32 v22, {2047 - 1024*jq - j}, v22")
            k("v_cvt_f32_i32 v23, v22")
            k("v_cvt_pk_bf16_f32 v23, v23, v23")
            k("v_and_b32 v23, 0xffff, v23\n v_subrev_u32 v23, 17024, v23")
            k("v_cmp_gt_i32 vcc, 128, v22\n s_nop 1\n v_cndmask_b32 v23, v23, v22, vcc")
            if jq == 1 and j == 4:
                k("v_cmp_gt_i32 vcc, 0, v22\n v_mov_b32 v21, 641\n s_nop 0\n v_cndmask_b32 v23, v23, v21, vcc")
            k(f"v_lshlrev_b32 v{d}, 1, v23\n v_add_u32 v{d}, {KC_OFF}, v{d}")
    k(f"s_mul_i32 s70, s{S_WV}, {KC_CH}\n s_add_u32 s70, s70, {KC_OFF}")
    k(f"v_lshlrev_b32 v18, 5, v{V_R}\n v_lshl_add_u32 v18, v{V_G}, 3, v18\n v_add_u32 v18, s70, v18")
    k(f"v_lshlrev_b32 v19, 4, v{V_R}\n v_lshl_add_u32 v19, v{V_G}, 3, v19\n v_add_u32 v19, 512, v19")
    k(f"v_lshlrev_b32 v20, 3, v{V_R}\n v_lshl_add_u32 v20, v{V_G}, 7, v20\n v_add_u32 v20, 512, v20")
    k(f"v_cmp_gt_u32 vcc, 2, v{V_G}\n s_nop 1\n v_cndmask_b32 v19, v20, v19, vcc\n v_add_u32 v19, s70, v19")
    k(f"v_lshlrev_b32 v20, 2, v{V_R}\n v_lshl_add_u32 v20, v{V_G}, 7, v20\n v_add_u32 v20, 1024, v20\n v_add_u32 v20, s70, v20")
    k(f"s_mul_i32 s70, s{S_WV}, {T_WAVE}")
    k(f"v_lshlrev_b32 v106, 3, v{V_LANE}\n v_add_u32 v106, s70, v106")
    k(f"v_mul_u32_u24 v107, {T_ROW}, v{V_R}\n v_lshl_add_u32 v107, v{V_G}, 4, v107\n v_add_u32 v107, s70, v107")
    k("s_waitcnt lgkmcnt(0)")
    k(f"s_cmp_ge_u32 s{S_WV}, 2\n s_cselect_b32 s70, s69, s68\n s_and_b32 s71, s{S_WV}, 1\n s_lshl_b32 s71, s71, 4\n s_lshr_b32 s70, s70, s71\n s_lshl_b32 s70, s70, 16")
    k(f"v_mov_b32 v64, {LOG2E:#x}\n v_mul_f32 v64, s70, v64\n v_exp_f32 v64, v64\n s_nop 0")
    bf16_round(k, 64)
    k("v_mov_b32 v65, v64")
    k("s_waitcnt vmcnt(0)")
    stamp(k)
    xq = []
    if lib.XDIRECT:
        k(f"v_mul_u32_u24 v6, 2560, v{V_TID}")
        for jj in range(4):
            for par in range(2):
                xq.append(f"s_add_u32 s76, s5, {jj*256*2560}\n buffer_load_dwordx2 v[{X+4*jj+2*par}:{X+4*jj+2*par+1}], v6, s[{SRD_X}:{SRD_X+3}], s76 offen offset:{1280*par}")
        k(xq.pop(0))
    stamp(k, "kg")
    for i in range(6):
        k(f"v_lshlrev_b32 v{66+2*i}, 16, v{56+i}\n v_and_b32 v{67+2*i}, 0xffff0000, v{56+i}")
    k(f"s_mov_b32 s70, {LOG2E:#x}\n s_mov_b32 s72, {INV2PI:#x}")
    k("v_pk_mul_f32 v[66:67], v[66:67], v[64:65]\n v_pk_mul_f32 v[68:69], v[68:69], v[64:65]")
    k("v_pk_mul_f32 v[70:71], v[70:71], v[64:65]\n v_pk_mul_f32 v[72:73], v[72:73], v[64:65]")
    k("v_pk_mul_f32 v[66:67], v[66:67], s[70:71] op_sel_hi:[1,0]")
    k("v_pk_mul_f32 v[68:69], v[68:69], s[72:73] op_sel_hi:[1,0]")
    pk_cmul(k, 78, 80, 74, 76, 70, 72, 56, 58)
    def direct(dr, di, e):
        k(f"s_mov_b32 s74, {f2h(e)}")
        k("v_pk_mul_f32 v[56:57], v[66:67], s[74:75] op_sel_hi:[1,0]")
        k("v_pk_mul_f32 v[58:59], v[68:69], s[74:75] op_sel_hi:[1,0]")
        k("v_exp_f32 v56, v56\n v_exp_f32 v57, v57\n v_fract_f32 v58, v58\n v_fract_f32 v59, v59")
        k(f"v_cos_f32 v{dr}, v58\n v_cos_f32 v{dr+1}, v59\n v_sin_f32 v{di}, v58\n v_sin_f32 v{di+1}, v59\n s_nop 0")
        k(f"v_pk_mul_f32 v[{dr}:{dr+1}], v[{dr}:{dr+1}], v[56:57]\n v_pk_mul_f32 v[{di}:{di+1}], v[{di}:{di+1}], v[56:57]")
    Z1, Z16, Z256, Z2, Z4, Z8 = (82, 84), (86, 88), (90, 92), (94, 96), (98, 100), (102, 104)
    direct(*Z1, 1); direct(*Z16, 16); direct(*Z256, 256)
    pk_csq(k, *Z2, *Z1, 56); pk_csq(k, *Z4, *Z2, 56); pk_csq(k, *Z8, *Z4, 56)
    stamp(k, "kg")
    CR, CI = 78, 80
    pk = [108, 110, 112, 114]; cnt = [0]
    def put(slot, row, re, im, neg=False):
        p = pk[cnt[0] % 4]; cnt[0] += 1
        n = "-" if neg else ""
        k(f"v_cvt_pk_bf16_f32 v{p}, v{re}, {n}v{im}\n v_cvt_pk_bf16_f32 v{p+1}, v{re+1}, {n}v{im+1}")
        k(f"ds_write_b64 v106, v[{p}:{p+1}] offset:{slot*T_SLOT + row*T_ROW}")
    A1, A2 = (116, 118), (120, 122)
    T1, T2, T3, T4 = 56, 58, 60, 62
    def mov2(d, s):
        k(f"v_pk_mov_b32 v[{d[0]}:{d[0]+1}], v[{s[0]}:{s[0]+1}], v[{s[0]}:{s[0]+1}] op_sel:[0,1]")
        k(f"v_pk_mov_b32 v[{d[1]}:{d[1]+1}], v[{s[1]}:{s[1]+1}], v[{s[1]}:{s[1]+1}] op_sel:[0,1]")
    k(f"v_mov_b32 v{A1[0]}, 1.0\n v_mov_b32 v{A1[0]+1}, 1.0\n v_mov_b32 v{A1[1]}, 0\n v_mov_b32 v{A1[1]+1}, 0")
    put(0, 0, *A1, True)
    mov2(A1, Z16); mov2(A2, (CR, CI))
    put(0, 1, *A1, True); put(1, 0, *A2)
    def cvt2(re, im, neg=False):
        p = pk[cnt[0] % 4]; cnt[0] += 1
        n = "-" if neg else ""
        k(f"v_cvt_pk_bf16_f32 v{p}, v{re}, {n}v{im}\n v_cvt_pk_bf16_f32 v{p+1}, v{re+1}, {n}v{im+1}")
        return p
    def wr(p, slot, row): k(f"ds_write_b64 v106, v[{p}:{p+1}] offset:{slot*T_SLOT + row*T_ROW}")
    pend = None
    for i in range(1, 16):
        if xq and i in (2, 7, 12): k(xq.pop(0))
        pk_cmul_inplace(k, *A2, *Z1, T1, T2)
        if pend: wr(*pend); pend = None
        p = cvt2(*A2); pendA2 = (p, 1, i)
        if i >= 2:
            pk_cmul_inplace(k, *A1, *Z16, T3, T4)
            wr(*pendA2)
            p = cvt2(*A1, True); pend = (p, 0, i)
        else:
            wr(*pendA2)
    if pend: wr(*pend)
    stamp(k, "kg")
    OF = 128; AFa = 160; AFb = 192
    for ks in range(8): k(f"ds_read_b128 v[{OF+4*ks}:{OF+4*ks+3}], v107 offset:{64*ks}")
    for ks in range(8): k(f"ds_read_b128 v[{AFa+4*ks}:{AFa+4*ks+3}], v107 offset:{T_SLOT + 64*ks}")
    if xq: k(xq.pop(0))
    pk_cmul(k, *A1, CR, CI, *Z256, T1, T2)
    mov2(A2, A1)
    put(0, 0, *A2)
    for r in range(1, 8):
        pk_cmul_inplace(k, *A2, *Z2, T1, T2); put(0, r, *A2)
    if xq: k(xq.pop(0))
    for j in (2, 3):
        pk_cmul_inplace(k, *A1, *Z256, T3, T4)
        mov2(A2, A1)
        put(0, 8 + 4*(j-2), *A2)
        for r in range(1, 4):
            pk_cmul_inplace(k, *A2, *Z4, T1, T2); put(0, 8 + 4*(j-2) + r, *A2)
    if xq: k(xq.pop(0))
    for j in range(4):
        pk_cmul_inplace(k, *A1, *Z256, T3, T4)
        put(1, 2*j, *A1)
        pk_cmul(k, *A2, *A1, *Z8, T1, T2)
        put(1, 2*j+1, *A2)
    pk_cmul_inplace(k, *A1, *Z256, T3, T4)
    put(1, 8, *A1)
    while xq: k(xq.pop(0))
    k("v_mov_b32 v56, 0\n v_mov_b32 v57, 0")
    for r in range(9, 16): k(f"ds_write_b64 v106, v[56:57] offset:{T_SLOT + r*T_ROW}")
    stamp(k, "kg")
    D0, D1, D2 = 224, 228, 232
    k("s_waitcnt lgkmcnt(0)")
    for ks in range(8):
        k(f"v_mfma_f32_16x16x32_bf16 v[{D0}:{D0+3}], v[{AFa+4*ks}:{AFa+4*ks+3}], v[{OF+4*ks}:{OF+4*ks+3}], {'0' if ks == 0 else f'v[{D0}:{D0+3}]'}")
    for ks in range(8): k(f"ds_read_b128 v[{AFb+4*ks}:{AFb+4*ks+3}], v107 offset:{64*ks}")
    for ks in range(8): k(f"ds_read_b128 v[{AFa+4*ks}:{AFa+4*ks+3}], v107 offset:{T_SLOT + 64*ks}")
    k("s_waitcnt lgkmcnt(8)")
    for ks in range(8):
        k(f"v_mfma_f32_16x16x32_bf16 v[{D1}:{D1+3}], v[{AFb+4*ks}:{AFb+4*ks+3}], v[{OF+4*ks}:{OF+4*ks+3}], {'0' if ks == 0 else f'v[{D1}:{D1+3}]'}")
    k("s_waitcnt lgkmcnt(0)")
    for ks in range(8):
        k(f"v_mfma_f32_16x16x32_bf16 v[{D2}:{D2+3}], v[{AFa+4*ks}:{AFa+4*ks+3}], v[{OF+4*ks}:{OF+4*ks+3}], {'0' if ks == 0 else f'v[{D2}:{D2+3}]'}")
    k(f"v_lshlrev_b32 v122, 3, v{V_TID}\n v_add_u32 v122, {KEO_OFF}, v122\n s_nop 7")
    stamp(k, "kg")
    for t, Dt in enumerate((D0, D1, D2)):
        k(f"v_cvt_pk_bf16_f32 v{60+2*t}, v{Dt}, v{Dt+1}\n v_cvt_pk_bf16_f32 v{61+2*t}, v{Dt+2}, v{Dt+3}")
    k("ds_write_b64 v18, v[60:61]\n ds_write_b64 v19, v[62:63]\n ds_write_b32 v20, v64\n ds_write_b32 v20, v65 offset:64")
    k("s_waitcnt lgkmcnt(0)\n s_barrier")
    stamp(k)
    stamp(k, "kg")
    for c in range(4):
        for jq in range(2):
            for j in range(5): k(f"ds_read_u16 v{128+10*c+5*jq+j}, v{8+5*jq+j} offset:{c*KC_CH}")
    for c in range(4):
        k(f"s_waitcnt lgkmcnt({min(15, 30 - 10*c)})")
        for jq in range(2):
            b = 128 + 10*c + 5*jq; o = 168 + 8*c + 4*jq
            k(f"v_lshl_or_b32 v{o}, v{b+1}, 16, v{b}\n v_lshl_or_b32 v{o+1}, v{b+3}, 16, v{b+2}")
            k(f"v_lshl_or_b32 v{o+2}, v{b+2}, 16, v{b+1}\n v_lshl_or_b32 v{o+3}, v{b+4}, 16, v{b+3}")
    return X, ST, P

def gen_conv2(k, X, ST, P):
    import lib
    for c in range(4):
        for jq in range(2):
            o = 168 + 8*c + 4*jq
            k(f"ds_write_b64 v122, v[{o}:{o+1}] offset:{c*KEO_CH + 2048*jq}")
            k(f"ds_write_b64 v122, v[{o+2}:{o+3}] offset:{c*KEO_CH + O_REL + 2048*jq}")
    stamp(k, "kg")
    k(f"v_lshlrev_b32 v123, 1, v{V_R}\n v_sub_u32 v123, 4062, v123\n v_lshl_add_u32 v123, v{V_G}, 4, v123")
    k(f"v_and_b32 v124, 1, v{V_R}\n v_cmp_eq_u32 vcc, 0, v124\n v_mov_b32 v124, 4158\n s_nop 0\n v_cndmask_b32 v124, 0, v124, vcc\n v_add_u32 v123, v123, v124")
    k(f"s_mul_i32 s70, s{S_WV}, {KEO_CH}\n s_add_u32 s70, s70, {KEO_OFF}")
    AA = 124
    for p in range(4):
        k(f"s_sub_u32 s71, s70, {512*(2*p+1)}")
        k(f"v_add_u32 v{AA+p}, s71, v123")
    k(f"s_mul_i32 s70, s{S_WV}, {U_CH}\n s_add_u32 s70, s70, {U_OFF + 480}")
    k(f"v_lshlrev_b32 v119, 5, v{V_R}\n v_lshl_add_u32 v119, v{V_G}, 4, v119\n v_add_u32 v119, s70, v119")
    stamp(k); stamp(k, "kg")
    import lib
    if lib.S1DIRECT:
        k("s_mov_b32 s64, 0")
        poll_val(k, SRD_DBG, 64, 64, sleep=2)
    else:
        k("s_mov_b32 s64, 128")
        poll_val(k, SRD_DBG, 64, 1, sleep=1)
    stamp(k)
    k(f"v_lshlrev_b32 v6, 4, v{V_TID}")
    k(f"s_lshl_b32 s71, s4, 14\n s_add_u32 s71, s71, {WS_XB}")
    for jj in range(4):
        k(f"s_mov_b32 s70, {WS_STATS1 + jj*4096}")
        k(f"buffer_load_dwordx4 v[{ST+4*jj}:{ST+4*jj+3}], v6, s[{SRD_WS}:{SRD_WS+3}], s70 offen sc1")
        if not lib.XDIRECT:
            k(f"buffer_load_dwordx4 v[{X+4*jj}:{X+4*jj+3}], v6, s[{SRD_WS}:{SRD_WS+3}], s71 offen sc1")
            if jj < 3: k("s_add_u32 s71, s71, 4096")
    AF = 224
    def loadA0(a, h):
        p = a // 2; off = (128 if a % 2 == 0 else 0) + 2*h
        return f"ds_read2_b32 v[{AF+4*a+2*h}:{AF+4*a+2*h+1}], v{AA+p} offset0:{off} offset1:{off+1}"
    for a in range(6):
        k(loadA0(a, 0)); k(loadA0(a, 1))
    k(loadA0(6, 0))
    for p in range(3): k(f"v_subrev_u32 v{AA+p}, 64, v{AA+p}")
    dma_setup(k, 57)
    for i in range(32): k(f"v_mov_b32 v{128+i}, 0")
    k(f"v_lshlrev_b32 v7, 2, v{V_TID}\n v_add_u32 v7, {U_OFF + 512}, v7")
    for jj in range(4):
        k(f"s_waitcnt vmcnt({(3 - jj) if lib.XDIRECT else (6 - 2*jj)})")
        for par in range(2):
            m = ST + 4*jj + 2*par
            k(f"v_mul_f32 v{m}, -v{m}, v{m+1}")
        for par in range(2):
            for h in range(2):
                r = X + 4*jj + 2*par + h
                k(f"v_lshlrev_b32 v{56+4*par+2*h}, 16, v{r}\n v_and_b32 v{57+4*par+2*h}, 0xffff0000, v{r}")
        for par in range(2):
            m = ST + 4*jj + 2*par
            for h in range(2):
                d = 56 + 4*par + 2*h
                k(f"v_pk_fma_f32 v[{d}:{d+1}], v[{d}:{d+1}], v[{m}:{m+1}], v[{m}:{m+1}] op_sel:[0,1,0] op_sel_hi:[1,1,0]")
        for c in range(4):
            k(f"v_cvt_pk_bf16_f32 v{P+4*jj+c}, v{56+c}, v{60+c}")
            k(f"ds_write_b32 v7, v{P+4*jj+c} offset:{c*U_CH + 1024*jj}")
    k("s_waitcnt lgkmcnt(0)\n s_barrier")
    stamp(k)
    ACC = 128; BF = (160, 192); AF = 224; BA = 119
    def loadB(st, J): return f"ds_read_b128 v[{BF[st]+4*J}:{BF[st]+4*J+3}], v{BA} offset:{512*J}"
    def loadA(a, h):
        p = a // 2; off = (128 if a % 2 == 0 else 0) + 2*h
        return f"ds_read2_b32 v[{AF+4*a+2*h}:{AF+4*a+2*h+1}], v{AA+p} offset0:{off} offset1:{off+1}"
    def stepA(p): return f"v_subrev_u32 v{AA+p}, 64, v{AA+p}"
    for J in range(8): k(loadB(0, J))
    k(f"v_subrev_u32 v{BA}, 64, v{BA}")
    def iteration(st, dmas):
        fill = {g: [] for g in range(36)}
        fill[0].append(loadA(6, 1)); fill[1].append(loadA(7, 0)); fill[2].append(loadA(7, 1)); fill[3].append(stepA(3))
        for J in range(8): fill[J].append(loadB(1-st, J))
        fill[8].append(f"v_subrev_u32 v{BA}, 64, v{BA}")
        ends = {0: 8, 1: 15, 2: 21, 3: 26, 4: 30, 5: 33}
        for a, g in ends.items():
            fill[g].append(loadA(a, 0)); fill[g+1].append(loadA(a, 1))
        fill[17].append(stepA(0)); fill[28].append(stepA(1)); fill[35].append(stepA(2))
        fill[35].append(loadA(6, 0))
        slots = [11, 18, 23, 12]
        for i, d in enumerate(dmas): fill[slots[i]].append(d)
        g = 0
        k("s_waitcnt lgkmcnt(1)")
        for a in range(8):
            if a == 6: k("s_waitcnt lgkmcnt(12)")
            for J in range(a, 8):
                k(f"v_mfma_f32_16x16x32_bf16 v[{ACC+4*J}:{ACC+4*J+3}], v[{AF+4*a}:{AF+4*a+3}], v[{BF[st]+4*(J-a)}:{BF[st]+4*(J-a)+3}], v[{ACC+4*J}:{ACC+4*J+3}]")
                for f in fill[g]: k(f)
                g += 1
    import lib
    k("s_waitcnt lgkmcnt(0)")
    if lib.CONV_UNROLL:
        for L in range(3):
            dma_listA_step(k, L, 68)
            dma_kstep_setup(k, 68, 72, 73)
            iteration(0, [dma_op(u, 72, 73) for u in range(4)])
            iteration(1, [dma_op(u, 72, 73) for u in range(4, 7)])
    else:
        k("s_mov_b32 s70, 0")
        dma_listA_step(k, 0, 68)
        dma_kstep_setup(k, 68, 72, 73)
        k.label("conv_loop")
        iteration(0, [dma_op(u, 72, 73) for u in range(4)])
        iteration(1, [dma_op(u, 72, 73) for u in range(4, 7)])
        k(f"s_add_u32 s68, s{S_WV}, 4\n s_cmp_lt_u32 s{S_WV}, 2\n s_cselect_b32 s71, 8, 16\n s_add_u32 s71, s71, s{S_WV}\n s_cmp_eq_u32 s70, 0\n s_cselect_b32 s68, s68, s71")
        dma_kstep_setup(k, 68, 72, 73)
        k("s_add_u32 s70, s70, 1\n s_cmp_lt_u32 s70, 3\n s_cbranch_scc1 conv_loop")
    k(f"v_mov_b32 v81, 132\n buffer_load_dword v80, v81, s[{SRD_DBG}:{SRD_DBG+3}], 0 offen sc1")
    iteration(0, [])
    iteration(1, [])
    stamp(k)
    stamp(k, "s2")
    k(f"s_cmp_lg_u32 s{S_WV}, 1\n s_cbranch_scc1 conv_w1")
    k("s_waitcnt vmcnt(0)\n v_cmp_ne_u32 vcc, 0, v80\n s_cbranch_vccnz conv_wok")
    spin_flag(k, SRD_DBG, 132, 80)
    k.label("conv_wok")
    cb_issue(k, 82)
    k.label("conv_w1")
    k("s_waitcnt lgkmcnt(0)\n s_barrier")
    stamp(k, "s2")
    k(f"s_mul_i32 s70, s{S_WV}, {YT_CH}\n s_add_u32 s70, s70, {YT_OFF}")
    k(f"v_mul_u32_u24 v56, 80, v{V_R}\n v_lshl_add_u32 v56, v{V_G}, 4, v56\n v_add_u32 v56, s70, v56")
    k("s_nop 4")
    for J in range(8):
        k(f"ds_write_b128 v56, v[{ACC+4*J}:{ACC+4*J+3}] offset:{1280*J}")
    k("s_waitcnt lgkmcnt(0)\n s_barrier")
    k(f"v_lshrrev_b32 v56, 3, v{V_TID}\n v_lshlrev_b32 v56, 4, v56\n v_lshl_add_u32 v56, v{V_TID}, 3, v56\n v_add_u32 v56, {YT_OFF}, v56")
    for jj in range(4):
        for c in range(4):
            k(f"ds_read_b64 v[{128+8*jj+2*c}:{128+8*jj+2*c+1}], v56 offset:{c*YT_CH + jj*2560}")
    k("s_lshl_b32 s72, s6, 16\n s_and_b32 s73, s6, 0xffff0000\n s_lshl_b32 s74, s7, 16\n s_and_b32 s75, s7, 0xffff0000")
    k(f"v_lshrrev_b32 v57, 4, v{V_TID}\n v_mul_u32_u24 v57, 40960, v57\n v_and_b32 v58, 15, v{V_TID}\n v_lshl_add_u32 v57, v58, 4, v57")
    k("s_lshr_b32 s70, s4, 3\n s_lshl_b32 s70, s70, 11\n s_bfe_u32 s71, s4, 0x10002\n s_lshl_b32 s71, s71, 10\n s_add_u32 s70, s70, s71")
    k(f"s_and_b32 s71, s4, 3\n s_lshl_b32 s71, s71, 8\n s_add_u32 s70, s70, s71\n s_add_u32 s70, s70, {WS_HF}")
    for jj in range(4):
        k(f"s_waitcnt lgkmcnt({12 - 4*jj})")
        for par in range(2):
            for h in range(2):
                r = X + 4*jj + 2*par + h
                k(f"v_lshlrev_b32 v{64+4*par+2*h}, 16, v{r}\n v_and_b32 v{65+4*par+2*h}, 0xffff0000, v{r}")
        for c in range(4):
            k(f"v_lshlrev_b32 v{72+c}, 16, v{P+4*jj+c}\n v_and_b32 v{76+c}, 0xffff0000, v{P+4*jj+c}")
        for par in range(2):
            for c in range(4):
                y = 128 + 8*jj + 2*c + par
                k(f"v_fma_f32 v{72+4*par+c}, v{72+4*par+c}, s{72+c}, v{y}")
        for i in range(8): k(f"v_add_f32 v{64+i}, v{64+i}, v{72+i}")
        o = 160 + 4*jj
        for i in range(4): k(f"v_cvt_pk_bf16_f32 v{o+i}, v{64+2*i}, v{65+2*i}")
        k(f"buffer_store_dwordx4 v[{o}:{o+3}], v57, s[{SRD_WS}:{SRD_WS+3}], s70 offen sc1")
        if jj < 3: k(f"s_add_u32 s70, s70, {16*40960}")
    k(f"s_cmp_lg_u32 s{S_WV}, 1\n s_cbranch_scc1 conv_cb2")
    k("s_waitcnt vmcnt(4)")
    cb_write(k, 82)
    k.label("conv_cb2")
    stamp(k)
    k("s_and_b32 s79, s4, 15")
```

```python
from mk_common import *

def gen_prep(k):
    import lib
    k.c("======== role B: stats / colsum / w2 relayout ========")
    k("s_cmp_ge_u32 s4, 64")
    k("s_cbranch_scc1 prep_nostats")
    k(f"s_cmp_lg_u32 s4, 0\n s_cbranch_scc1 prep_nz\n s_cmp_lg_u32 s{S_WV}, 3\n s_cbranch_scc1 prep_nz")
    k(f"v_mov_b32 v64, 0\n v_mov_b32 v65, 0\n v_mov_b32 v66, 0\n v_mov_b32 v67, 0\n v_lshlrev_b32 v68, 4, v{V_LANE}\n s_mov_b32 s64, {WS_SYNC}")
    for i in range(12):
        k(f"buffer_store_dwordx4 v[64:67], v68, s[{SRD_WS}:{SRD_WS+3}], s64 offen sc1")
        if i < 11: k("s_add_u32 s64, s64, 1024")
    k.label("prep_nz")
    k(f"v_mul_u32_u24 v6, 1280, v{V_G}")
    k(f"v_lshl_add_u32 v6, v{V_R}, 4, v6")
    k(f"s_lshl_b32 s64, s4, 5\n s_lshl_b32 s65, s{S_WV}, 3\n s_add_u32 s64, s64, s65")
    k("s_mul_i32 s65, s64, 1280")
    k("s_add_u32 s66, s65, 5120")
    for rd in range(2):
        for j in range(5):
            b = 16 + 20*rd + 4*j
            k(f"buffer_load_dwordx4 v[{b}:{b+3}], v6, s[{SRD_X}:{SRD_X+3}], s{65+rd} offen offset:{256*j}")
    k("s_mov_b32 s67, 0x3f803f80")
    k(f"v_lshlrev_b32 v7, 3, v{V_G}")
    k(f"s_lshl_b32 s68, s64, 3\n s_add_u32 s68, s68, {WS_STATS1}")
    k(f"v_mul_u32_u24 v8, 1296, v{V_G}\n v_lshl_add_u32 v8, v{V_R}, 4, v8\n s_mul_i32 s69, s{S_WV}, {8*1296}\n v_add_u32 v8, s69, v8")
    k(f"v_mul_u32_u24 v10, 2592, v{V_R}\n v_lshl_add_u32 v10, v{V_G}, 3, v10\n s_mul_i32 s69, s{S_WV}, 320\n v_add_u32 v10, s69, v10")
    k(f"v_lshlrev_b32 v9, 14, v{V_G}\n v_lshl_add_u32 v9, v{V_R}, 4, v9")
    k(f"s_mul_i32 s69, s{S_WV}, {40*16384}\n s_lshl_b32 s70, s4, 8\n s_add_u32 s69, s69, s70\n s_add_u32 s69, s69, {WS_XB}")
    k(f"v_cmp_eq_u32 s[72:73], 0, v{V_R}")
    for i in range(8): k(f"v_mov_b32 v{60+i}, 0")
    for rd in range(2):
        k(f"s_waitcnt vmcnt({5 if rd == 0 else 0})")
        if rd == 0: stamp(k)
        stamp(k, "st")
        if not lib.XDIRECT:
            for j in range(5):
                b = 16 + 20*rd + 4*j
                k(f"ds_write_b128 v8, v[{b}:{b+3}] offset:{rd*4*1296 + j*256}")
    if not lib.XDIRECT:
        k("s_waitcnt lgkmcnt(0)\n s_barrier")
        stamp(k, "st")
        for q in range(10):
            k(f"ds_read2_b64 v[{72+4*q}:{75+4*q}], v10 offset0:{4*q} offset1:{162+4*q}")
    nst = 0
    for i in range(20):
        for rd in range(2):
            r = 16 + 20*rd + i
            k(f"v_dot2_f32_bf16 v{60+4*rd+(i&1)}, v{r}, s67, v{60+4*rd+(i&1)}")
            k(f"v_dot2_f32_bf16 v{62+4*rd+(i&1)}, v{r}, v{r}, v{62+4*rd+(i&1)}")
        if i % 2 == 1 and not lib.XDIRECT:
            q = nst; nst += 1
            k(f"s_waitcnt lgkmcnt({9-q})")
            k(f"buffer_store_dwordx4 v[{72+4*q}:{75+4*q}], v9, s[{SRD_WS}:{SRD_WS+3}], s69 offen sc1")
            if q < 9: k(f"s_add_u32 s69, s69, {4*16384}")
    stamp(k, "st")
    k("s_nop 1")
    k("v_add_f32 v60, v60, v61\n v_add_f32 v64, v64, v65\n v_add_f32 v61, v62, v63\n v_add_f32 v65, v66, v67\n s_nop 0")
    for (src, dst, ctl) in ((0, 2, "quad_perm:[1,0,3,2]"), (2, 0, "quad_perm:[2,3,0,1]"), (0, 2, "row_half_mirror"), (2, 0, "row_mirror")):
        for base in (60, 64):
            for o in range(2):
                k(f"v_add_f32_dpp v{base+dst+o}, v{base+src+o}, v{base+src+o} {ctl} row_mask:0xf bank_mask:0xf")
    M = (60, 64); Q = (61, 65); R = (63, 67)
    def both(f):
        for t in range(2): k(f(t))
    both(lambda t: f"v_mul_f32 v{M[t]}, 0x3acccccd, v{M[t]}")
    both(lambda t: f"v_mul_f32 v{Q[t]}, 0x3acccccd, v{Q[t]}")
    both(lambda t: f"v_fma_f32 v{Q[t]}, -v{M[t]}, v{M[t]}, v{Q[t]}")
    both(lambda t: f"v_max_f32 v{Q[t]}, 0, v{Q[t]}")
    both(lambda t: f"v_cvt_pk_bf16_f32 v{Q[t]}, v{Q[t]}, v{Q[t]}")
    both(lambda t: f"v_lshlrev_b32 v{Q[t]}, 16, v{Q[t]}")
    both(lambda t: f"v_add_f32 v{Q[t]}, 0x3727c5ac, v{Q[t]}")
    both(lambda t: f"v_cvt_pk_bf16_f32 v{Q[t]}, v{Q[t]}, v{Q[t]}")
    both(lambda t: f"v_lshlrev_b32 v{Q[t]}, 16, v{Q[t]}")
    both(lambda t: f"v_sqrt_f32 v{Q[t]}, v{Q[t]}")
    both(lambda t: f"v_cvt_pk_bf16_f32 v{M[t]}, v{M[t]}, v{M[t]}")
    both(lambda t: f"v_cvt_pk_bf16_f32 v{Q[t]}, v{Q[t]}, v{Q[t]}")
    both(lambda t: f"v_lshlrev_b32 v{M[t]+2}, 16, v{M[t]}")
    both(lambda t: f"v_lshlrev_b32 v{Q[t]}, 16, v{Q[t]}")
    both(lambda t: f"v_rcp_f32 v{R[t]}, v{Q[t]}")
    k("s_and_saveexec_b64 s[70:71], s[72:73]")
    k(f"buffer_store_dwordx2 v[62:63], v7, s[{SRD_WS}:{SRD_WS+3}], s68 offen sc1")
    k(f"buffer_store_dwordx2 v[66:67], v7, s[{SRD_WS}:{SRD_WS+3}], s68 offen offset:32 sc1")
    k("s_mov_b64 exec, s[70:71]")
    stamp(k, "st")
    k("s_waitcnt vmcnt(0)")
    stamp(k, "st")
    k("s_mov_b32 s64, 0")
    arrive_go(k, SRD_DBG, 64, 64, 128)
    stamp(k, "st")
    stamp(k)
    k("s_cmp_ge_u32 s4, 56\n s_cbranch_scc1 prep_fill")
    k("s_mul_i32 s64, s4, 4682\n s_lshr_b32 s64, s64, 16\n s_mul_i32 s65, s64, 14\n s_sub_u32 s65, s4, s65")
    k(f"s_mul_i32 s66, s64, 160\n s_mul_i32 s67, s{S_WV}, 40\n s_add_u32 s66, s66, s67\n s_mul_i32 s66, s66, 3456\n s_lshl_b32 s67, s65, 8\n s_add_u32 s66, s66, s67")
    k(f"v_lshlrev_b32 v6, 2, v{V_LANE}")
    for i in range(40):
        k(f"buffer_load_dword v{16+i}, v6, s[{SRD_W1}:{SRD_W1+3}], s66 offen")
        if i < 39: k("s_add_u32 s66, s66, 3456")
    k("s_mov_b32 s67, 0x00003f80\n s_mov_b32 s68, 0x3f800000")
    for i in range(4): k(f"v_mov_b32 v{60+i}, 0")
    for i in range(40):
        if i % 10 == 0: k(f"s_waitcnt vmcnt({30 - i})")
        k(f"v_dot2_f32_bf16 v{60+2*(i&1)}, v{16+i}, s67, v{60+2*(i&1)}")
        k(f"v_dot2_f32_bf16 v{61+2*(i&1)}, v{16+i}, s68, v{61+2*(i&1)}")
    k("s_nop 2\n v_add_f32 v60, v60, v62\n v_add_f32 v61, v61, v63")
    k(f"v_lshlrev_b32 v7, 3, v{V_TID}")
    k("ds_write_b64 v7, v[60:61] offset:49152")
    k("s_waitcnt lgkmcnt(0)\n s_barrier")
    k(f"v_lshlrev_b32 v7, 3, v{V_LANE}")
    for q in range(4):
        k(f"ds_read_b64 v[{62+2*q}:{63+2*q}], v7 offset:{49152 + 512*q}")
    k("s_waitcnt lgkmcnt(0)")
    k("v_add_f32 v62, v62, v64\n v_add_f32 v63, v63, v65\n v_add_f32 v66, v66, v68\n v_add_f32 v67, v67, v69")
    k("v_add_f32 v62, v62, v66\n v_add_f32 v63, v63, v67")
    k(f"s_mul_i32 s66, s64, 7168\n s_lshl_b32 s67, s65, 9\n s_add_u32 s66, s66, s67\n s_add_u32 s66, s66, {WS_CS1}")
    k(f"s_cmp_lg_u32 s{S_WV}, 0\n s_cbranch_scc1 prep_fill")
    k(f"buffer_store_dwordx2 v[62:63], v7, s[{SRD_WS}:{SRD_WS+3}], s66 offen sc1")
    k("s_branch prep_fill")
    k.label("prep_nostats")
    srd(k, SRD_T, P_W2, P_W2+1, F*D*2)
    k("s_sub_u32 s5, s4, 64")
    k(f"v_lshlrev_b32 v15, 4, v{V_LANE}")
    k(f"s_mul_i32 s64, s5, 40960\n s_mul_i32 s65, s{S_WV}, 10240\n s_add_u32 s64, s64, s65")
    k("s_cmp_lt_u32 s5, 22\n s_cselect_b32 s66, 0, 0x40000000")
    k(f"s_add_u32 s67, s64, {32*40960}\n s_add_u32 s67, s67, s66")
    for a_ in range(2):
        for u in range(10):
            k(f"s_add_u32 m0, s65, {a_*40960 + u*1024}\n s_add_u32 s68, s{64 if a_ == 0 else 67}, {u*1024}\n buffer_load_dwordx4 v15, s[{SRD_T}:{SRD_T+3}], s68 offen lds")
    k(f"v_lshrrev_b32 v12, 2, v{V_LANE}\n v_mul_u32_u24 v12, 1280, v12\n s_mul_i32 s68, s{S_WV}, 320\n v_add_u32 v12, s68, v12\n v_and_b32 v14, 3, v{V_LANE}")
    k("v_lshl_add_u32 v13, v14, 3, v12\n v_lshl_add_u32 v12, v14, 4, v12")
    for a_ in range(2):
        k(f"s_waitcnt vmcnt({10 if a_ == 0 else 10})")
        k("s_barrier")
        if a_ == 1: k("s_cmp_ge_u32 s5, 22\n s_cbranch_scc1 prep_fill")
        for jj in range(10):
            p = jj % 5
            col = 160*(jj >= 5) + 2*((32*(p >> 1) + 4*(p & 1)) if p < 4 else 64)
            reg = 12 if p < 4 else 13
            d = 16 + 4*jj
            k(f"ds_read_b64_tr_b16 v[{d}:{d+1}], v{reg} offset:{a_*40960 + col}")
            k(f"ds_read_b64_tr_b16 v[{d+2}:{d+3}], v{reg} offset:{a_*40960 + col + 20480}")
        k(f"s_mul_i32 s68, s{S_WV}, {10*55296}\n s_add_u32 s69, s5, {32*a_}\n s_lshl_b32 s69, s69, 10\n s_add_u32 s68, s68, s69\n s_add_u32 s68, s68, {WS_WF2}")
        for jj in range(10):
            k(f"s_waitcnt lgkmcnt({min(15, 2*(9-jj))})")
            d = 16 + 4*jj
            k(f"buffer_store_dwordx4 v[{d}:{d+3}], v15, s[{SRD_WS}:{SRD_WS+3}], s68 offen sc1")
            if jj < 9: k("s_add_u32 s68, s68, 55296")
    k.label("prep_fill")
    srd(k, SRD_T, P_WS, P_WS+1, WS_ACT)
    k(f"v_mov_b32 v64, -1\n v_mov_b32 v65, -1\n v_mov_b32 v66, -1\n v_mov_b32 v67, -1\n v_lshlrev_b32 v68, 4, v{V_LANE}")
    k(f"s_lshl_b32 s64, s4, 2\n s_add_u32 s64, s64, s{S_WV}\n s_mul_i32 s64, s64, 7168\n s_add_u32 s64, s64, {WS_HF}")
    for i in range(7):
        k(f"buffer_store_dwordx4 v[64:67], v68, s[{SRD_T}:{SRD_T+3}], s64 offen sc1")
        if i < 6: k("s_add_u32 s64, s64, 1024")
    k.label("prep_done")
    stamp(k)
    k("s_mov_b32 s64, 64")
    arrive_go(k, SRD_DBG, 64, 96, 132)
    stamp(k)
    k("s_lshr_b32 s64, s4, 3")
    k(f"s_lshl_b32 s65, s64, 2\n s_add_u32 s65, s65, s{S_WV}")
    k(f"v_lshlrev_b32 v6, 4, v{V_LANE}")
    dma_setup(k)
    for L in range(3):
        dma_listA_step(k, L, 68)
        dma_kstep_setup(k, 68, 69, 70)
        for u in range(7): k(dma_op(u, 69, 70))
    dma_listB(k, all4=True)
    k(f"s_mul_i32 s66, s65, {6*3456}\n s_and_b32 s67, s4, 1\n s_mul_i32 s67, s67, 1792\n s_add_u32 s66, s66, s67\n s_add_u32 s66, s66, {320*3456}")
    for i in range(6):
        k(f"buffer_load_dwordx4 v[{128+8*i}:{131+8*i}], v6, s[{SRD_W1}:{SRD_W1+3}], s66 offen")
        k(f"buffer_load_dwordx4 v[{132+8*i}:{135+8*i}], v6, s[{SRD_W1}:{SRD_W1+3}], s66 offen offset:1024")
        if i < 5: k("s_add_u32 s66, s66, 3456")
    stamp(k)
    k("s_mov_b32 s64, 132")
    poll_val(k, SRD_DBG, 64, 1, sleep=8)
    k("s_mov_b32 s64, 128")
    poll_val(k, SRD_DBG, 64, 1, sleep=8)
    k(f"s_cmp_lg_u32 s{S_WV}, 1\n s_cbranch_scc1 prep_cb")
    cb_issue(k, 82)
    k("s_waitcnt vmcnt(0)")
    cb_write(k, 82)
    k.label("prep_cb")
    stamp(k)
    k(f"s_mul_i32 s66, s65, 23040\n s_and_b32 s67, s4, 1\n s_mul_i32 s67, s67, {20*54*1024}\n s_add_u32 s66, s66, s67\n s_add_u32 s66, s66, {WS_WF2}")
    for i in range(23):
        k(f"buffer_load_dwordx4 v[{128+4*i}:{131+4*i}], v6, s[{SRD_WS}:{SRD_WS+3}], s66 offen sc1")
        if i < 22: k("s_add_u32 s66, s66, 1024")
    stamp(k)
```

```python
from lib import *
from layout import *
import struct
LOG2E = 0x3fb8aa3b
INV2PI = 0x3e22f983
def f2h(x): return "0x%08x" % struct.unpack("<I", struct.pack("<f", float(x)))[0]

S_WG = 2
S_WV = 3
SRD_WS = 8
SRD_DBG = 12
SRD_X = 16
SRD_OUT = 20
SRD_W1 = 24
SRD_T = 28
P_X=32; P_ARE=34; P_AIM=36; P_BRE=38; P_BIM=40; P_CRE=42; P_CIM=44; P_LDT=46
P_DSK=48; P_BX=50; P_W1=52; P_B1=54; P_W2=56; P_OUT=58; P_DBG=60; P_WS=62
V_TID=0; V_LANE=1; V_R=2; V_G=3

SPIN_MAX = 400000

def arrive_simple(k, srd_, s_off):
    lab = k.newlab("arr")
    k("s_waitcnt vmcnt(0)")
    k("s_barrier")
    k(f"s_cmp_lg_u32 s{S_WV}, 0")
    k(f"s_cbranch_scc1 {lab}")
    k("v_mov_b32 v4, 1\n v_mov_b32 v7, 0\n s_mov_b64 exec, 1")
    k(f"buffer_atomic_add v4, v7, s[{srd_}:{srd_+3}], s{s_off} offen")
    k("s_mov_b64 exec, -1")
    k.label(lab)

def arrive_go(k, srd_, s_off, count, go_off_imm, join=False, s_go=None):
    lab = k.newlab("arr")
    k("s_waitcnt vmcnt(0)")
    k("s_barrier")
    k(f"s_cmp_lg_u32 s{S_WV}, 0")
    k(f"s_cbranch_scc1 {lab}")
    k("v_mov_b32 v4, 1\n v_mov_b32 v7, 0\n s_mov_b64 exec, 1")
    k(f"buffer_atomic_add v4, v7, s[{srd_}:{srd_+3}], s{s_off} offen sc0")
    k("s_waitcnt vmcnt(0)")
    k("v_readfirstlane_b32 s67, v4")
    k(f"s_cmp_lg_u32 s67, {count-1}")
    k(f"s_cbranch_scc1 {lab}_x")
    if s_go is None:
        k(f"v_mov_b32 v4, 1\n s_mov_b32 s66, {go_off_imm}")
        k(f"buffer_store_dword v4, v7, s[{srd_}:{srd_+3}], s66 offen sc1")
    else:
        k(f"v_mov_b32 v4, 1\n s_nop 3")
        k(f"buffer_store_dword v4, v7, s[{srd_}:{srd_+3}], s{s_go} offen sc1")
    k.label(lab + "_x")
    k("s_mov_b64 exec, -1")
    k.label(lab)
    if join: k("s_barrier")

def arrive_s2(k, s_shard):
    lab = k.newlab("arr2")
    W = f"s[{SRD_WS}:{SRD_WS+3}]"
    stamp(k, "s2")
    k("s_waitcnt vmcnt(0)")
    stamp(k, "s2")
    k("s_barrier")
    stamp(k, "s2")
    k(f"s_cmp_lg_u32 s{S_WV}, 0\n s_cbranch_scc1 {lab}\n s_cmp_eq_u32 s{s_shard}, -1\n s_cbranch_scc1 {lab}")
    k(f"s_lshl_b32 s66, s{s_shard}, 7\n s_add_u32 s66, s66, {WS_SYNC}")
    k("v_mov_b32 v4, 1\n v_mov_b32 v7, 0\n s_mov_b64 exec, 1")
    k(f"buffer_atomic_add v4, v7, {W}, s66 offen sc0\n s_waitcnt vmcnt(0)\n v_readfirstlane_b32 s67, v4")
    k(f"s_cmp_lg_u32 s67, 9\n s_cbranch_scc1 {lab}_x")
    k(f"s_mov_b32 s66, {WS_SYNC + 16*128}\n v_mov_b32 v4, 1")
    k(f"buffer_atomic_add v4, v7, {W}, s66 offen sc0\n s_waitcnt vmcnt(0)\n v_readfirstlane_b32 s67, v4")
    k(f"s_cmp_lg_u32 s67, 15\n s_cbranch_scc1 {lab}_x")
    k(f"s_mov_b64 exec, 0xffff\n v_lshlrev_b32 v7, 7, v{V_LANE}\n v_mov_b32 v4, 1\n s_mov_b32 s66, {WS_SYNC + 17*128}")
    k(f"buffer_store_dword v4, v7, {W}, s66 offen sc1")
    k.label(lab + "_x")
    k("s_mov_b64 exec, -1")
    k.label(lab)
    k("s_barrier")

def poll_val(k, srd_, s_off, target, sleep=2, pre_wait=False, barrier=True):
    lab = k.newlab("poll"); done = k.newlab("polled"); skip = k.newlab("pskip")
    k(f"s_cmp_lg_u32 s{S_WV}, 0")
    k(f"s_cbranch_scc1 {skip}")
    k("v_mov_b32 v7, 0\n s_mov_b64 exec, 1\n s_mov_b32 s66, 0")
    k.label(lab)
    k(f"buffer_load_dword v4, v7, s[{srd_}:{srd_+3}], s{s_off} offen sc1")
    k("s_add_u32 s66, s66, 1")
    k("s_waitcnt vmcnt(0)")
    k(f"v_cmp_gt_u32 vcc, {target}, v4")
    k(f"s_cmp_gt_u32 s66, {SPIN_MAX}")
    k(f"s_cbranch_scc1 {done}")
    k(f"s_cbranch_vccz {done}")
    k(f"s_sleep {sleep}")
    k(f"s_branch {lab}")
    k.label(done)
    k("s_mov_b64 exec, -1")
    k.label(skip)
    if pre_wait: k("s_waitcnt vmcnt(0)")
    if barrier: k("s_barrier")

def bf16_round(k, v):
    k(f"v_cvt_pk_bf16_f32 v{v}, v{v}, v{v}")
    k(f"v_lshlrev_b32 v{v}, 16, v{v}")

def ln_finish(k, v_mean, v_var, v_r):
    k(f"v_max_f32 v{v_var}, 0, v{v_var}")
    bf16_round(k, v_var)
    k(f"v_add_f32 v{v_var}, 0x3727c5ac, v{v_var}")
    bf16_round(k, v_var)
    k(f"v_sqrt_f32 v{v_var}, v{v_var}")
    k("s_nop 0")
    bf16_round(k, v_var)
    k(f"v_rcp_f32 v{v_r}, v{v_var}")
    bf16_round(k, v_mean)

S_MB = 50; S_FT0 = 51; V_DMA = 100
def gemm1_mapping(k):
    b = S_WG
    k(f"s_and_b32 s{S_MB}, s{b}, 7\n s_lshr_b32 s{S_MB}, s{S_MB}, 1\n s_lshl_b32 s{S_MB}, s{S_MB}, 2\n s_lshr_b32 s64, s{b}, 3\n s_and_b32 s64, s64, 3\n s_add_u32 s{S_MB}, s{S_MB}, s64")
    k(f"s_and_b32 s{S_FT0}, s{b}, 1\n s_lshl_b32 s{S_FT0}, s{S_FT0}, 3\n s_lshr_b32 s64, s{b}, 5\n s_add_u32 s{S_FT0}, s{S_FT0}, s64\n s_mul_i32 s{S_FT0}, s{S_FT0}, 7\n s_min_u32 s{S_FT0}, s{S_FT0}, 101")
def dma_setup(k, t=8):
    a, b, c = t, t+1, t+2
    for u in range(7):
        k(f"v_add_u32 v{a}, {64*u}, v{V_LANE}\n v_mul_u32_u24 v{b}, 4682, v{a}\n v_lshrrev_b32 v{b}, 16, v{b}")
        k(f"v_mul_u32_u24 v{c}, 14, v{b}\n v_sub_u32 v{a}, v{a}, v{c}")
        k(f"v_mul_u32_u24 v{b}, 3456, v{b}\n v_lshl_add_u32 v{V_DMA+u}, v{a}, 4, v{b}")
def dma_kstep_setup(k, s_step, s_src, s_lds):
    k(f"s_mul_i32 s{s_src}, s{s_step}, 110592\n s_lshl_b32 s{s_lds}, s{S_FT0}, 5\n s_add_u32 s{s_src}, s{s_src}, s{s_lds}\n s_mul_i32 s{s_lds}, s{s_step}, 7168")
def dma_op(u, s_src, s_lds):
    return f"s_add_u32 m0, s{s_lds}, {u*1024}\n s_nop 0\n buffer_load_dwordx4 v{V_DMA+u}, s[{SRD_W1}:{SRD_W1+3}], s{s_src} offen lds"
def dma_listA_step(k, L, s_step):
    k(f"s_add_u32 s{s_step}, s{S_WV}, {4*L}")

CB_OFF = 162816
def cb_issue(k, vd):
    srd(k, SRD_T, P_B1, P_B1+1, F*2)
    k(f"v_lshlrev_b32 v{vd+9}, 3, v{V_LANE}\n v_lshlrev_b32 v{vd+10}, 2, v{V_LANE}")
    k(f"s_lshl_b32 s66, s{S_FT0}, 6\n s_add_u32 s66, s66, {WS_CS1}\n s_lshl_b32 s67, s{S_FT0}, 5")
    for q in range(4):
        k(f"buffer_load_dwordx2 v[{vd+2*q}:{vd+2*q+1}], v{vd+9}, s[{SRD_WS}:{SRD_WS+3}], s66 offen sc1")
        if q < 3: k("s_add_u32 s66, s66, 7168")
    k(f"buffer_load_dword v{vd+8}, v{vd+10}, s[{SRD_T}:{SRD_T+3}], s67 offen")
def cb_write(k, vd):
    for o in range(2):
        k(f"v_add_f32 v{vd+o}, v{vd+o}, v{vd+2+o}\n v_add_f32 v{vd+4+o}, v{vd+4+o}, v{vd+6+o}\n v_add_f32 v{vd+o}, v{vd+o}, v{vd+4+o}")
    k(f"v_and_b32 v{vd+3}, 0xffff0000, v{vd+8}\n v_lshlrev_b32 v{vd+2}, 16, v{vd+8}\n v_add_u32 v{vd+9}, {CB_OFF}, v{vd+9}")
    k("s_mov_b32 exec_lo, -1\n s_mov_b32 exec_hi, 0x00ffffff")
    k(f"ds_write_b64 v{vd+9}, v[{vd}:{vd+1}]\n ds_write_b64 v{vd+9}, v[{vd+2}:{vd+3}] offset:448")
    k("s_mov_b64 exec, -1")
def spin_flag(k, srd_, off_imm, vt, sleep=2):
    lab = k.newlab("spin"); done = k.newlab("spun")
    k(f"v_mov_b32 v{vt+1}, {off_imm}\n s_mov_b32 s66, 0")
    k.label(lab)
    k(f"buffer_load_dword v{vt}, v{vt+1}, s[{srd_}:{srd_+3}], 0 offen sc1\n s_add_u32 s66, s66, 1\n s_waitcnt vmcnt(0)")
    k(f"v_cmp_eq_u32 vcc, 0, v{vt}\n s_cmp_gt_u32 s66, {SPIN_MAX}\n s_cbranch_scc1 {done}\n s_cbranch_vccz {done}\n s_sleep {sleep}\n s_branch {lab}")
    k.label(done)

def poll_flags(k, srd_, s_off, n, sleep=1):
    lab = k.newlab("pf"); done = k.newlab("pfd"); skip = k.newlab("pfs")
    k(f"s_cmp_lg_u32 s{S_WV}, 0\n s_cbranch_scc1 {skip}")
    k(f"v_lshlrev_b32 v7, 2, v{V_LANE}\n s_mov_b64 exec, {(1<<n)-1}\n s_mov_b32 s66, 0")
    k.label(lab)
    k(f"buffer_load_dword v4, v7, s[{srd_}:{srd_+3}], s{s_off} offen sc1\n s_add_u32 s66, s66, 1\n s_waitcnt vmcnt(0)")
    k(f"v_cmp_eq_u32 vcc, 0, v4\n s_cmp_gt_u32 s66, {SPIN_MAX}\n s_cbranch_scc1 {done}\n s_cbranch_vccz {done}\n s_sleep {sleep}\n s_branch {lab}")
    k.label(done)
    k("s_mov_b64 exec, -1")
    k.label(skip)
    k("s_barrier")

def dma_listB(k):
    k(f"s_add_u32 s68, s{S_WV}, 15")
    dma_kstep_setup(k, 68, 69, 70)
    for u in range(7): k(dma_op(u, 69, 70))
    k("s_mov_b32 s68, 19")
    dma_kstep_setup(k, 68, 69, 70)
    for w in range(4):
        lab = k.newlab("lb19")
        k(f"s_cmp_lg_u32 s{S_WV}, {w}\n s_cbranch_scc1 {lab}")
        for u in (w, w + 4):
            if u < 7: k(dma_op(u, 69, 70))
        k.label(lab)

def w1_convert(k, s_blk, vtr, vlin, tmp=128):
    a, b = tmp + 28, tmp + 29
    k(f"v_add_u32 v{a}, s{s_blk}, v{vtr}\n v_add_u32 v{b}, s{s_blk}, v{vlin}")
    for ftl in range(7):
        for hh in range(2):
            k(f"ds_read_b64_tr_b16 v[{tmp+4*ftl+2*hh}:{tmp+4*ftl+2*hh+1}], v{a} offset:{ftl*32 + 3584*hh}")
    k("s_waitcnt lgkmcnt(0)")
    for ftl in range(7):
        k(f"ds_write_b128 v{b}, v[{tmp+4*ftl}:{tmp+4*ftl+3}] offset:{ftl*1024}")
```

```python
from mk_common import *

T_WAVE = 16896; T_SLOT = 8448; T_ROW = 528
KC_OFF = 67584; KC_CH = 1536
KEO_OFF = 112128; KEO_CH = 8320; O_REL = 4160
U_OFF = 145408; U_CH = 4608
YT_OFF = 112128; YT_CH = 10240

def pk_cmul_inplace(k, ar, ai, br, bi, t, t2):
    k(f"v_pk_mul_f32 v[{t}:{t+1}], v[{ar}:{ar+1}], v[{br}:{br+1}]")
    k(f"v_pk_mul_f32 v[{t2}:{t2+1}], v[{ar}:{ar+1}], v[{bi}:{bi+1}]")
    k(f"v_pk_fma_f32 v[{ar}:{ar+1}], v[{ai}:{ai+1}], v[{bi}:{bi+1}], v[{t}:{t+1}] neg_lo:[1,0,0] neg_hi:[1,0,0]")
    k(f"v_pk_fma_f32 v[{ai}:{ai+1}], v[{ai}:{ai+1}], v[{br}:{br+1}], v[{t2}:{t2+1}]")
def pk_cmul(k, dr, di, ar, ai, br, bi, t, t2):
    k(f"v_pk_mul_f32 v[{t}:{t+1}], v[{ar}:{ar+1}], v[{br}:{br+1}]")
    k(f"v_pk_mul_f32 v[{t2}:{t2+1}], v[{ar}:{ar+1}], v[{bi}:{bi+1}]")
    k(f"v_pk_fma_f32 v[{dr}:{dr+1}], v[{ai}:{ai+1}], v[{bi}:{bi+1}], v[{t}:{t+1}] neg_lo:[1,0,0] neg_hi:[1,0,0]")
    k(f"v_pk_fma_f32 v[{di}:{di+1}], v[{ai}:{ai+1}], v[{br}:{br+1}], v[{t2}:{t2+1}]")
def pk_csq(k, dr, di, ar, ai, t):
    k(f"v_pk_mul_f32 v[{t}:{t+1}], v[{ai}:{ai+1}], v[{ai}:{ai+1}]")
    k(f"v_pk_add_f32 v[{di}:{di+1}], v[{ar}:{ar+1}], v[{ar}:{ar+1}]")
    k(f"v_pk_fma_f32 v[{dr}:{dr+1}], v[{ar}:{ar+1}], v[{ar}:{ar+1}], v[{t}:{t+1}] neg_lo:[0,0,1] neg_hi:[0,0,1]")
    k(f"v_pk_mul_f32 v[{di}:{di+1}], v[{di}:{di+1}], v[{ai}:{ai+1}]")

def gen_conv(k):
    k.c("======== role A: K-gen + conv ========")
    import lib
    X = 8
    ST = 24
    P = 40
    if lib.XDIRECT: X, P = 40, 8
    k("s_lshl_b32 s5, s4, 3")
    k(f"s_add_u32 s64, s{P_LDT}, s5\n s_addc_u32 s65, s{P_LDT+1}, 0")
    k(f"s_add_u32 s66, s{P_DSK}, s5\n s_addc_u32 s67, s{P_DSK+1}, 0")
    k("s_load_dwordx2 s[68:69], s[64:65], 0")
    k("s_load_dwordx2 s[6:7], s[66:67], 0")
    k(f"s_lshl_b32 s70, s4, 2\n s_add_u32 s70, s70, s{S_WV}\n s_lshl_b32 s70, s70, 8")
    k(f"v_lshlrev_b32 v5, 2, v{V_LANE}\n v_add_u32 v5, s70, v5")
    for i, p in enumerate((P_ARE, P_AIM, P_BRE, P_BIM, P_CRE, P_CIM)):
        k(f"global_load_dword v{56+i}, v5, s[{p}:{p+1}]")
    k("v_mov_b32 v64, 0\n v_mov_b32 v65, 0\n v_mov_b32 v66, 0\n v_mov_b32 v67, 0")
    k(f"v_lshrrev_b32 v68, 5, v{V_TID}\n v_mul_u32_u24 v68, {U_CH}, v68\n v_and_b32 v69, 31, v{V_TID}\n v_lshl_add_u32 v68, v69, 4, v68\n v_add_u32 v68, {U_OFF}, v68")
    k(f"v_subrev_u32 v70, 128, v{V_TID}\n v_lshrrev_b32 v71, 4, v70\n v_mul_u32_u24 v71, {KEO_CH}, v71\n v_bfe_u32 v72, v70, 3, 1\n v_mul_u32_u24 v72, {O_REL}, v72\n v_add_u32 v71, v71, v72")
    k(f"v_and_b32 v72, 7, v70\n v_lshl_add_u32 v71, v72, 2, v71\n v_add_u32 v71, {KEO_OFF + 4096}, v71")
    k(f"s_cmp_ge_u32 s{S_WV}, 2\n s_cbranch_scc1 conv_z1")
    k("ds_write_b128 v68, v[64:67]")
    k.label("conv_z1")
    k(f"s_cmp_lg_u32 s{S_WV}, 2\n s_cbranch_scc1 conv_z2")
    k("ds_write_b32 v71, v64")
    k.label("conv_z2")
    for jq in range(2):
        for j in range(5):
            d = 8 + 5*jq + j
            k(f"v_lshlrev_b32 v22, 2, v{V_TID}")
            k(f"v_sub_u32 v22, {2047 - 1024*jq - j}, v22")
            k("v_cvt_f32_i32 v23, v22")
            k("v_cvt_pk_bf16_f32 v23, v23, v23")
            k("v_and_b32 v23, 0xffff, v23\n v_subrev_u32 v23, 17024, v23")
            k("v_cmp_gt_i32 vcc, 128, v22\n s_nop 1\n v_cndmask_b32 v23, v23, v22, vcc")
            if jq == 1 and j == 4:
                k("v_cmp_gt_i32 vcc, 0, v22\n v_mov_b32 v21, 641\n s_nop 0\n v_cndmask_b32 v23, v23, v21, vcc")
            k(f"v_lshlrev_b32 v{d}, 1, v23\n v_add_u32 v{d}, {KC_OFF}, v{d}")
    k(f"s_mul_i32 s70, s{S_WV}, {KC_CH}\n s_add_u32 s70, s70, {KC_OFF}")
    k(f"v_lshlrev_b32 v18, 5, v{V_R}\n v_lshl_add_u32 v18, v{V_G}, 3, v18\n v_add_u32 v18, s70, v18")
    k(f"v_lshlrev_b32 v19, 4, v{V_R}\n v_lshl_add_u32 v19, v{V_G}, 3, v19\n v_add_u32 v19, 512, v19")
    k(f"v_lshlrev_b32 v20, 3, v{V_R}\n v_lshl_add_u32 v20, v{V_G}, 7, v20\n v_add_u32 v20, 512, v20")
    k(f"v_cmp_gt_u32 vcc, 2, v{V_G}\n s_nop 1\n v_cndmask_b32 v19, v20, v19, vcc\n v_add_u32 v19, s70, v19")
    k(f"v_lshlrev_b32 v20, 2, v{V_R}\n v_lshl_add_u32 v20, v{V_G}, 7, v20\n v_add_u32 v20, 1024, v20\n v_add_u32 v20, s70, v20")
    k(f"s_mul_i32 s70, s{S_WV}, {T_WAVE}")
    k(f"v_lshlrev_b32 v106, 3, v{V_LANE}\n v_add_u32 v106, s70, v106")
    k(f"v_mul_u32_u24 v107, {T_ROW}, v{V_R}\n v_lshl_add_u32 v107, v{V_G}, 4, v107\n v_add_u32 v107, s70, v107")
    k("s_waitcnt lgkmcnt(0)")
    k(f"s_cmp_ge_u32 s{S_WV}, 2\n s_cselect_b32 s70, s69, s68\n s_and_b32 s71, s{S_WV}, 1\n s_lshl_b32 s71, s71, 4\n s_lshr_b32 s70, s70, s71\n s_lshl_b32 s70, s70, 16")
    k(f"v_mov_b32 v64, {LOG2E:#x}\n v_mul_f32 v64, s70, v64\n v_exp_f32 v64, v64\n s_nop 0")
    bf16_round(k, 64)
    k("v_mov_b32 v65, v64")
    k("s_waitcnt vmcnt(0)")
    stamp(k)
    xq = []
    if lib.XDIRECT:
        k(f"v_mul_u32_u24 v6, 2560, v{V_TID}")
        for jj in range(4):
            for par in range(2):
                xq.append(f"s_add_u32 s76, s5, {jj*256*2560}\n buffer_load_dwordx2 v[{X+4*jj+2*par}:{X+4*jj+2*par+1}], v6, s[{SRD_X}:{SRD_X+3}], s76 offen offset:{1280*par}")
        k(xq.pop(0))
    stamp(k, "kg")
    for i in range(6):
        k(f"v_lshlrev_b32 v{66+2*i}, 16, v{56+i}\n v_and_b32 v{67+2*i}, 0xffff0000, v{56+i}")
    k(f"s_mov_b32 s70, {LOG2E:#x}\n s_mov_b32 s72, {INV2PI:#x}")
    k("v_pk_mul_f32 v[66:67], v[66:67], v[64:65]\n v_pk_mul_f32 v[68:69], v[68:69], v[64:65]")
    k("v_pk_mul_f32 v[70:71], v[70:71], v[64:65]\n v_pk_mul_f32 v[72:73], v[72:73], v[64:65]")
    k("v_pk_mul_f32 v[66:67], v[66:67], s[70:71] op_sel_hi:[1,0]")
    k("v_pk_mul_f32 v[68:69], v[68:69], s[72:73] op_sel_hi:[1,0]")
    pk_cmul(k, 78, 80, 74, 76, 70, 72, 56, 58)
    def direct(dr, di, e):
        k(f"s_mov_b32 s74, {f2h(e)}")
        k("v_pk_mul_f32 v[56:57], v[66:67], s[74:75] op_sel_hi:[1,0]")
        k("v_pk_mul_f32 v[58:59], v[68:69], s[74:75] op_sel_hi:[1,0]")
        k("v_exp_f32 v56, v56\n v_exp_f32 v57, v57\n v_fract_f32 v58, v58\n v_fract_f32 v59, v59")
        k(f"v_cos_f32 v{dr}, v58\n v_cos_f32 v{dr+1}, v59\n v_sin_f32 v{di}, v58\n v_sin_f32 v{di+1}, v59\n s_nop 0")
        k(f"v_pk_mul_f32 v[{dr}:{dr+1}], v[{dr}:{dr+1}], v[56:57]\n v_pk_mul_f32 v[{di}:{di+1}], v[{di}:{di+1}], v[56:57]")
    Z1, Z16, Z256, Z2, Z4, Z8 = (82, 84), (86, 88), (90, 92), (94, 96), (98, 100), (102, 104)
    direct(*Z1, 1); direct(*Z16, 16); direct(*Z256, 256)
    pk_csq(k, *Z2, *Z1, 56); pk_csq(k, *Z4, *Z2, 56); pk_csq(k, *Z8, *Z4, 56)
    stamp(k, "kg")
    CR, CI = 78, 80
    pk = [108, 110, 112, 114]; cnt = [0]
    def put(slot, row, re, im, neg=False):
        p = pk[cnt[0] % 4]; cnt[0] += 1
        n = "-" if neg else ""
        k(f"v_cvt_pk_bf16_f32 v{p}, v{re}, {n}v{im}\n v_cvt_pk_bf16_f32 v{p+1}, v{re+1}, {n}v{im+1}")
        k(f"ds_write_b64 v106, v[{p}:{p+1}] offset:{slot*T_SLOT + row*T_ROW}")
    A1, A2 = (116, 118), (120, 122)
    T1, T2, T3, T4 = 56, 58, 60, 62
    def mov2(d, s):
        k(f"v_pk_mov_b32 v[{d[0]}:{d[0]+1}], v[{s[0]}:{s[0]+1}], v[{s[0]}:{s[0]+1}] op_sel:[0,1]")
        k(f"v_pk_mov_b32 v[{d[1]}:{d[1]+1}], v[{s[1]}:{s[1]+1}], v[{s[1]}:{s[1]+1}] op_sel:[0,1]")
    k(f"v_mov_b32 v{A1[0]}, 1.0\n v_mov_b32 v{A1[0]+1}, 1.0\n v_mov_b32 v{A1[1]}, 0\n v_mov_b32 v{A1[1]+1}, 0")
    put(0, 0, *A1, True)
    mov2(A1, Z16); mov2(A2, (CR, CI))
    put(0, 1, *A1, True); put(1, 0, *A2)
    def cvt2(re, im, neg=False):
        p = pk[cnt[0] % 4]; cnt[0] += 1
        n = "-" if neg else ""
        k(f"v_cvt_pk_bf16_f32 v{p}, v{re}, {n}v{im}\n v_cvt_pk_bf16_f32 v{p+1}, v{re+1}, {n}v{im+1}")
        return p
    def wr(p, slot, row): k(f"ds_write_b64 v106, v[{p}:{p+1}] offset:{slot*T_SLOT + row*T_ROW}")
    pend = None
    for i in range(1, 16):
        if xq and i in (2, 7, 12): k(xq.pop(0))
        pk_cmul_inplace(k, *A2, *Z1, T1, T2)
        if pend: wr(*pend); pend = None
        p = cvt2(*A2); pendA2 = (p, 1, i)
        if i >= 2:
            pk_cmul_inplace(k, *A1, *Z16, T3, T4)
            wr(*pendA2)
            p = cvt2(*A1, True); pend = (p, 0, i)
        else:
            wr(*pendA2)
    if pend: wr(*pend)
    stamp(k, "kg")
    OF = 128; AFa = 160; AFb = 192
    for ks in range(8): k(f"ds_read_b128 v[{OF+4*ks}:{OF+4*ks+3}], v107 offset:{64*ks}")
    for ks in range(8): k(f"ds_read_b128 v[{AFa+4*ks}:{AFa+4*ks+3}], v107 offset:{T_SLOT + 64*ks}")
    if xq: k(xq.pop(0))
    pk_cmul(k, *A1, CR, CI, *Z256, T1, T2)
    mov2(A2, A1)
    put(0, 0, *A2)
    for r in range(1, 8):
        pk_cmul_inplace(k, *A2, *Z2, T1, T2); put(0, r, *A2)
    if xq: k(xq.pop(0))
    for j in (2, 3):
        pk_cmul_inplace(k, *A1, *Z256, T3, T4)
        mov2(A2, A1)
        put(0, 8 + 4*(j-2), *A2)
        for r in range(1, 4):
            pk_cmul_inplace(k, *A2, *Z4, T1, T2); put(0, 8 + 4*(j-2) + r, *A2)
    if xq: k(xq.pop(0))
    for j in range(4):
        pk_cmul_inplace(k, *A1, *Z256, T3, T4)
        put(1, 2*j, *A1)
        pk_cmul(k, *A2, *A1, *Z8, T1, T2)
        put(1, 2*j+1, *A2)
    pk_cmul_inplace(k, *A1, *Z256, T3, T4)
    put(1, 8, *A1)
    while xq: k(xq.pop(0))
    k("v_mov_b32 v56, 0\n v_mov_b32 v57, 0")
    for r in range(9, 16): k(f"ds_write_b64 v106, v[56:57] offset:{T_SLOT + r*T_ROW}")
    stamp(k, "kg")
    D0, D1, D2 = 224, 228, 232
    k("s_waitcnt lgkmcnt(0)")
    for ks in range(8):
        k(f"v_mfma_f32_16x16x32_bf16 v[{D0}:{D0+3}], v[{AFa+4*ks}:{AFa+4*ks+3}], v[{OF+4*ks}:{OF+4*ks+3}], {'0' if ks == 0 else f'v[{D0}:{D0+3}]'}")
    for ks in range(8): k(f"ds_read_b128 v[{AFb+4*ks}:{AFb+4*ks+3}], v107 offset:{64*ks}")
    for ks in range(8): k(f"ds_read_b128 v[{AFa+4*ks}:{AFa+4*ks+3}], v107 offset:{T_SLOT + 64*ks}")
    k("s_waitcnt lgkmcnt(8)")
    for ks in range(8):
        k(f"v_mfma_f32_16x16x32_bf16 v[{D1}:{D1+3}], v[{AFb+4*ks}:{AFb+4*ks+3}], v[{OF+4*ks}:{OF+4*ks+3}], {'0' if ks == 0 else f'v[{D1}:{D1+3}]'}")
    k("s_waitcnt lgkmcnt(0)")
    for ks in range(8):
        k(f"v_mfma_f32_16x16x32_bf16 v[{D2}:{D2+3}], v[{AFa+4*ks}:{AFa+4*ks+3}], v[{OF+4*ks}:{OF+4*ks+3}], {'0' if ks == 0 else f'v[{D2}:{D2+3}]'}")
    k(f"v_lshlrev_b32 v122, 3, v{V_TID}\n v_add_u32 v122, {KEO_OFF}, v122\n s_nop 7")
    stamp(k, "kg")
    for t, Dt in enumerate((D0, D1, D2)):
        k(f"v_cvt_pk_bf16_f32 v{60+2*t}, v{Dt}, v{Dt+1}\n v_cvt_pk_bf16_f32 v{61+2*t}, v{Dt+2}, v{Dt+3}")
    k("ds_write_b64 v18, v[60:61]\n ds_write_b64 v19, v[62:63]\n ds_write_b32 v20, v64\n ds_write_b32 v20, v65 offset:64")
    k("s_waitcnt lgkmcnt(0)\n s_barrier")
    stamp(k)
    stamp(k, "kg")
    for c in range(4):
        for jq in range(2):
            for j in range(5): k(f"ds_read_u16 v{128+10*c+5*jq+j}, v{8+5*jq+j} offset:{c*KC_CH}")
    for c in range(4):
        k(f"s_waitcnt lgkmcnt({min(15, 30 - 10*c)})")
        for jq in range(2):
            b = 128 + 10*c + 5*jq; o = 168 + 8*c + 4*jq
            k(f"v_lshl_or_b32 v{o}, v{b+1}, 16, v{b}\n v_lshl_or_b32 v{o+1}, v{b+3}, 16, v{b+2}")
            k(f"v_lshl_or_b32 v{o+2}, v{b+2}, 16, v{b+1}\n v_lshl_or_b32 v{o+3}, v{b+4}, 16, v{b+3}")
    return X, ST, P

def gen_conv2(k, X, ST, P):
    import lib
    for c in range(4):
        for jq in range(2):
            o = 168 + 8*c + 4*jq
            k(f"ds_write_b64 v122, v[{o}:{o+1}] offset:{c*KEO_CH + 2048*jq}")
            k(f"ds_write_b64 v122, v[{o+2}:{o+3}] offset:{c*KEO_CH + O_REL + 2048*jq}")
    stamp(k, "kg")
    k(f"v_lshlrev_b32 v123, 1, v{V_R}\n v_sub_u32 v123, 4062, v123\n v_lshl_add_u32 v123, v{V_G}, 4, v123")
    k(f"v_and_b32 v124, 1, v{V_R}\n v_cmp_eq_u32 vcc, 0, v124\n v_mov_b32 v124, 4158\n s_nop 0\n v_cndmask_b32 v124, 0, v124, vcc\n v_add_u32 v123, v123, v124")
    k(f"s_mul_i32 s70, s{S_WV}, {KEO_CH}\n s_add_u32 s70, s70, {KEO_OFF}")
    AA = 124
    for p in range(4):
        k(f"s_sub_u32 s71, s70, {512*(2*p+1)}")
        k(f"v_add_u32 v{AA+p}, s71, v123")
    k(f"s_mul_i32 s70, s{S_WV}, {U_CH}\n s_add_u32 s70, s70, {U_OFF + 480}")
    k(f"v_lshlrev_b32 v119, 5, v{V_R}\n v_lshl_add_u32 v119, v{V_G}, 4, v119\n v_add_u32 v119, s70, v119")
    stamp(k); stamp(k, "kg")
    import lib
    if lib.S1DIRECT:
        k("s_mov_b32 s64, 0")
        poll_val(k, SRD_DBG, 64, 64, sleep=2)
    else:
        k("s_mov_b32 s64, 128")
        poll_val(k, SRD_DBG, 64, 1, sleep=1)
    stamp(k)
    k(f"v_lshlrev_b32 v6, 4, v{V_TID}")
    k(f"s_lshl_b32 s71, s4, 14\n s_add_u32 s71, s71, {WS_XB}")
    for jj in range(4):
        k(f"s_mov_b32 s70, {WS_STATS1 + jj*4096}")
        k(f"buffer_load_dwordx4 v[{ST+4*jj}:{ST+4*jj+3}], v6, s[{SRD_WS}:{SRD_WS+3}], s70 offen sc1")
        if not lib.XDIRECT:
            k(f"buffer_load_dwordx4 v[{X+4*jj}:{X+4*jj+3}], v6, s[{SRD_WS}:{SRD_WS+3}], s71 offen sc1")
            if jj < 3: k("s_add_u32 s71, s71, 4096")
    AF = 224
    def loadA0(a, h):
        p = a // 2; off = (128 if a % 2 == 0 else 0) + 2*h
        return f"ds_read2_b32 v[{AF+4*a+2*h}:{AF+4*a+2*h+1}], v{AA+p} offset0:{off} offset1:{off+1}"
    for a in range(6):
        k(loadA0(a, 0)); k(loadA0(a, 1))
    k(loadA0(6, 0))
    for p in range(3): k(f"v_subrev_u32 v{AA+p}, 64, v{AA+p}")
    dma_setup(k, 57)
    for i in range(32): k(f"v_mov_b32 v{128+i}, 0")
    k(f"v_lshlrev_b32 v7, 2, v{V_TID}\n v_add_u32 v7, {U_OFF + 512}, v7")
    for jj in range(4):
        k(f"s_waitcnt vmcnt({(3 - jj) if lib.XDIRECT else (6 - 2*jj)})")
        for par in range(2):
            m = ST + 4*jj + 2*par
            k(f"v_mul_f32 v{m}, -v{m}, v{m+1}")
        for par in range(2):
            for h in range(2):
                r = X + 4*jj + 2*par + h
                k(f"v_lshlrev_b32 v{56+4*par+2*h}, 16, v{r}\n v_and_b32 v{57+4*par+2*h}, 0xffff0000, v{r}")
        for par in range(2):
            m = ST + 4*jj + 2*par
            for h in range(2):
                d = 56 + 4*par + 2*h
                k(f"v_pk_fma_f32 v[{d}:{d+1}], v[{d}:{d+1}], v[{m}:{m+1}], v[{m}:{m+1}] op_sel:[0,1,0] op_sel_hi:[1,1,0]")
        for c in range(4):
            k(f"v_cvt_pk_bf16_f32 v{P+4*jj+c}, v{56+c}, v{60+c}")
            k(f"ds_write_b32 v7, v{P+4*jj+c} offset:{c*U_CH + 1024*jj}")
    k("s_waitcnt lgkmcnt(0)\n s_barrier")
    stamp(k)
    ACC = 128; BF = (160, 192); AF = 224; BA = 119
    def loadB(st, J): return f"ds_read_b128 v[{BF[st]+4*J}:{BF[st]+4*J+3}], v{BA} offset:{512*J}"
    def loadA(a, h):
        p = a // 2; off = (128 if a % 2 == 0 else 0) + 2*h
        return f"ds_read2_b32 v[{AF+4*a+2*h}:{AF+4*a+2*h+1}], v{AA+p} offset0:{off} offset1:{off+1}"
    def stepA(p): return f"v_subrev_u32 v{AA+p}, 64, v{AA+p}"
    for J in range(8): k(loadB(0, J))
    k(f"v_subrev_u32 v{BA}, 64, v{BA}")
    def iteration(st, dmas, extra=()):
        fill = {g: [] for g in range(36)}
        fill[0].append(loadA(6, 1)); fill[1].append(loadA(7, 0)); fill[2].append(loadA(7, 1)); fill[3].append(stepA(3))
        for J in range(8): fill[J].append(loadB(1-st, J))
        fill[8].append(f"v_subrev_u32 v{BA}, 64, v{BA}")
        ends = {0: 8, 1: 15, 2: 21, 3: 26, 4: 30, 5: 33}
        for a, g in ends.items():
            fill[g].append(loadA(a, 0)); fill[g+1].append(loadA(a, 1))
        fill[17].append(stepA(0)); fill[28].append(stepA(1)); fill[35].append(stepA(2))
        fill[35].append(loadA(6, 0))
        slots = [11, 18, 23, 12]
        for i, d in enumerate(dmas): fill[slots[i]].append(d)
        extra = list(extra)
        for idx, e in enumerate(extra): fill[idx * 36 // len(extra)].append(e)
        g = 0
        k("s_waitcnt lgkmcnt(1)")
        for a in range(8):
            if a == 6: k("s_waitcnt lgkmcnt(12)")
            for J in range(a, 8):
                k(f"v_mfma_f32_16x16x32_bf16 v[{ACC+4*J}:{ACC+4*J+3}], v[{AF+4*a}:{AF+4*a+3}], v[{BF[st]+4*(J-a)}:{BF[st]+4*(J-a)+3}], v[{ACC+4*J}:{ACC+4*J+3}]")
                for f in fill[g]: k(f)
                g += 1
    import lib
    k("s_waitcnt lgkmcnt(0)")
    if lib.CONV_UNROLL:
        for L in range(3):
            dma_listA_step(k, L, 68)
            dma_kstep_setup(k, 68, 72, 73)
            iteration(0, [dma_op(u, 72, 73) for u in range(4)])
            iteration(1, [dma_op(u, 72, 73) for u in range(4, 7)])
    else:
        k("s_mov_b32 s70, 0")
        dma_listA_step(k, 0, 68)
        dma_kstep_setup(k, 68, 72, 73)
        k.label("conv_loop")
        iteration(0, [dma_op(u, 72, 73) for u in range(4)])
        iteration(1, [dma_op(u, 72, 73) for u in range(4, 7)])
        k("s_add_u32 s68, s68, 4\n s_cmp_ge_u32 s68, 15\n s_cselect_b32 s68, 11, s68")
        dma_kstep_setup(k, 68, 72, 73)
        k("s_add_u32 s70, s70, 1\n s_cmp_lt_u32 s70, 3\n s_cbranch_scc1 conv_loop")
    k(f"v_mov_b32 v81, 132\n buffer_load_dword v80, v81, s[{SRD_DBG}:{SRD_DBG+3}], 0 offen sc1")
    k("s_lshl_b32 s74, s6, 16\n s_and_b32 s75, s6, 0xffff0000\n s_lshl_b32 s76, s7, 16\n s_and_b32 s77, s7, 0xffff0000")
    def BASE(jj, c): return (56 + 8*jj + 2*c) if jj < 3 else (108 + 2*c)
    ex = []
    for jj in range(4):
        for c in range(4):
            for par in range(2):
                xr = X + 4*jj + 2*par + (c >> 1); ur = P + 4*jj + c; d = BASE(jj, c) + par
                t = 116 + 2*((2*c + par) % 1)
                ex.append(f"v_lshlrev_b32 v{d}, 16, v{xr}" if c % 2 == 0 else f"v_and_b32 v{d}, 0xffff0000, v{xr}")
                ex.append(f"v_lshlrev_b32 v{116+par}, 16, v{ur}" if par == 0 else f"v_and_b32 v{116+par}, 0xffff0000, v{ur}")
                ex.append(f"v_fma_f32 v{d}, v{116+par}, s{74+c}, v{d}")
    iteration(0, [dma_op(u, 72, 73) for u in range(4)], ex[:48])
    iteration(1, [dma_op(u, 72, 73) for u in range(4, 7)], ex[48:])
    stamp(k)
    stamp(k, "s2")
    k(f"s_cmp_lg_u32 s{S_WV}, 1\n s_cbranch_scc1 conv_w1")
    k("s_waitcnt vmcnt(7)\n v_cmp_ne_u32 vcc, 0, v80\n s_cbranch_vccnz conv_wok")
    spin_flag(k, SRD_DBG, 132, 80)
    k.label("conv_wok")
    cb_issue(k, 82)
    k.label("conv_w1")
    k("s_waitcnt lgkmcnt(0)\n s_barrier")
    stamp(k, "s2")
    k(f"s_mul_i32 s70, s{S_WV}, {YT_CH}\n s_add_u32 s70, s70, {YT_OFF}")
    k(f"v_mul_u32_u24 v94, 80, v{V_R}\n v_lshl_add_u32 v94, v{V_G}, 4, v94\n v_add_u32 v94, s70, v94")
    k("s_nop 4")
    for J in range(8):
        k(f"ds_write_b128 v94, v[{ACC+4*J}:{ACC+4*J+3}] offset:{1280*J}")
    k("s_waitcnt lgkmcnt(0)\n s_barrier")
    k(f"v_lshrrev_b32 v95, 3, v{V_TID}\n v_lshlrev_b32 v95, 4, v95\n v_lshl_add_u32 v95, v{V_TID}, 3, v95\n v_add_u32 v95, {YT_OFF}, v95")
    for jj in range(4):
        for c in range(4):
            k(f"ds_read_b64 v[{128+8*jj+2*c}:{128+8*jj+2*c+1}], v95 offset:{c*YT_CH + jj*2560}")
    k(f"v_lshrrev_b32 v96, 4, v{V_TID}\n v_mul_u32_u24 v96, 40960, v96\n v_and_b32 v97, 15, v{V_TID}\n v_lshl_add_u32 v96, v97, 4, v96")
    k("s_lshr_b32 s70, s4, 3\n s_lshl_b32 s70, s70, 11\n s_bfe_u32 s71, s4, 0x10002\n s_lshl_b32 s71, s71, 10\n s_add_u32 s70, s70, s71")
    k(f"s_and_b32 s71, s4, 3\n s_lshl_b32 s71, s71, 8\n s_add_u32 s70, s70, s71\n s_add_u32 s70, s70, {WS_HF}")
    for jj in range(4):
        k(f"s_waitcnt lgkmcnt({12 - 4*jj})")
        for c in range(4):
            y = 128 + 8*jj + 2*c; b_ = BASE(jj, c)
            k(f"v_pk_add_f32 v[{y}:{y+1}], v[{y}:{y+1}], v[{b_}:{b_+1}]")
        o = 160 + 4*jj
        for par in range(2):
            for h in range(2):
                k(f"v_cvt_pk_bf16_f32 v{o+2*par+h}, v{128+8*jj+4*h+par}, v{128+8*jj+4*h+2+par}")
        k(f"buffer_store_dwordx4 v[{o}:{o+3}], v96, s[{SRD_WS}:{SRD_WS+3}], s70 offen sc1")
        if jj < 3: k(f"s_add_u32 s70, s70, {16*40960}")
    k(f"s_cmp_lg_u32 s{S_WV}, 1\n s_cbranch_scc1 conv_cb2")
    k("s_waitcnt vmcnt(4)")
    cb_write(k, 82)
    k.label("conv_cb2")
    stamp(k)
    k("s_mov_b32 s79, s4")
```

```python
from mk_common import *

def gen_prep(k):
    import lib
    k.c("======== role B: stats / colsum / w2 relayout ========")
    k("s_cmp_ge_u32 s4, 64")
    k("s_cbranch_scc1 prep_nostats")
    k(f"s_cmp_lg_u32 s4, 0\n s_cbranch_scc1 prep_nz\n s_cmp_lg_u32 s{S_WV}, 3\n s_cbranch_scc1 prep_nz")
    k(f"v_mov_b32 v64, 0\n v_mov_b32 v65, 0\n v_mov_b32 v66, 0\n v_mov_b32 v67, 0\n v_lshlrev_b32 v68, 4, v{V_LANE}\n s_mov_b32 s64, {WS_SYNC}")
    for i in range(13):
        k(f"buffer_store_dwordx4 v[64:67], v68, s[{SRD_WS}:{SRD_WS+3}], s64 offen sc1")
        if i < 12: k("s_add_u32 s64, s64, 1024")
    k.label("prep_nz")
    k(f"v_mul_u32_u24 v6, 1280, v{V_G}")
    k(f"v_lshl_add_u32 v6, v{V_R}, 4, v6")
    k(f"s_lshl_b32 s64, s4, 5\n s_lshl_b32 s65, s{S_WV}, 3\n s_add_u32 s64, s64, s65")
    k("s_mul_i32 s65, s64, 1280")
    k("s_add_u32 s66, s65, 5120")
    for rd in range(2):
        for j in range(5):
            b = 16 + 20*rd + 4*j
            k(f"buffer_load_dwordx4 v[{b}:{b+3}], v6, s[{SRD_X}:{SRD_X+3}], s{65+rd} offen offset:{256*j}")
    k("s_mov_b32 s67, 0x3f803f80")
    k(f"v_lshlrev_b32 v7, 3, v{V_G}")
    k(f"s_lshl_b32 s68, s64, 3\n s_add_u32 s68, s68, {WS_STATS1}")
    k(f"v_mul_u32_u24 v8, 1296, v{V_G}\n v_lshl_add_u32 v8, v{V_R}, 4, v8\n s_mul_i32 s69, s{S_WV}, {8*1296}\n v_add_u32 v8, s69, v8")
    k(f"v_mul_u32_u24 v10, 2592, v{V_R}\n v_lshl_add_u32 v10, v{V_G}, 3, v10\n s_mul_i32 s69, s{S_WV}, 320\n v_add_u32 v10, s69, v10")
    k(f"v_lshlrev_b32 v9, 14, v{V_G}\n v_lshl_add_u32 v9, v{V_R}, 4, v9")
    k(f"s_mul_i32 s69, s{S_WV}, {40*16384}\n s_lshl_b32 s70, s4, 8\n s_add_u32 s69, s69, s70\n s_add_u32 s69, s69, {WS_XB}")
    k(f"v_cmp_eq_u32 s[72:73], 0, v{V_R}")
    for i in range(8): k(f"v_mov_b32 v{60+i}, 0")
    for rd in range(2):
        k(f"s_waitcnt vmcnt({5 if rd == 0 else 0})")
        if rd == 0: stamp(k)
        stamp(k, "st")
        if not lib.XDIRECT:
            for j in range(5):
                b = 16 + 20*rd + 4*j
                k(f"ds_write_b128 v8, v[{b}:{b+3}] offset:{rd*4*1296 + j*256}")
    if not lib.XDIRECT:
        k("s_waitcnt lgkmcnt(0)\n s_barrier")
        stamp(k, "st")
        for q in range(10):
            k(f"ds_read2_b64 v[{72+4*q}:{75+4*q}], v10 offset0:{4*q} offset1:{162+4*q}")
    nst = 0
    for i in range(20):
        for rd in range(2):
            r = 16 + 20*rd + i
            k(f"v_dot2_f32_bf16 v{60+4*rd+(i&1)}, v{r}, s67, v{60+4*rd+(i&1)}")
            k(f"v_dot2_f32_bf16 v{62+4*rd+(i&1)}, v{r}, v{r}, v{62+4*rd+(i&1)}")
        if i % 2 == 1 and not lib.XDIRECT:
            q = nst; nst += 1
            k(f"s_waitcnt lgkmcnt({9-q})")
            k(f"buffer_store_dwordx4 v[{72+4*q}:{75+4*q}], v9, s[{SRD_WS}:{SRD_WS+3}], s69 offen sc1")
            if q < 9: k(f"s_add_u32 s69, s69, {4*16384}")
    stamp(k, "st")
    k("s_nop 1")
    k("v_add_f32 v60, v60, v61\n v_add_f32 v64, v64, v65\n v_add_f32 v61, v62, v63\n v_add_f32 v65, v66, v67\n s_nop 0")
    for (src, dst, ctl) in ((0, 2, "quad_perm:[1,0,3,2]"), (2, 0, "quad_perm:[2,3,0,1]"), (0, 2, "row_half_mirror"), (2, 0, "row_mirror")):
        for base in (60, 64):
            for o in range(2):
                k(f"v_add_f32_dpp v{base+dst+o}, v{base+src+o}, v{base+src+o} {ctl} row_mask:0xf bank_mask:0xf")
    M = (60, 64); Q = (61, 65); R = (63, 67)
    def both(f):
        for t in range(2): k(f(t))
    both(lambda t: f"v_mul_f32 v{M[t]}, 0x3acccccd, v{M[t]}")
    both(lambda t: f"v_mul_f32 v{Q[t]}, 0x3acccccd, v{Q[t]}")
    both(lambda t: f"v_fma_f32 v{Q[t]}, -v{M[t]}, v{M[t]}, v{Q[t]}")
    both(lambda t: f"v_max_f32 v{Q[t]}, 0, v{Q[t]}")
    both(lambda t: f"v_cvt_pk_bf16_f32 v{Q[t]}, v{Q[t]}, v{Q[t]}")
    both(lambda t: f"v_lshlrev_b32 v{Q[t]}, 16, v{Q[t]}")
    both(lambda t: f"v_add_f32 v{Q[t]}, 0x3727c5ac, v{Q[t]}")
    both(lambda t: f"v_cvt_pk_bf16_f32 v{Q[t]}, v{Q[t]}, v{Q[t]}")
    both(lambda t: f"v_lshlrev_b32 v{Q[t]}, 16, v{Q[t]}")
    both(lambda t: f"v_sqrt_f32 v{Q[t]}, v{Q[t]}")
    both(lambda t: f"v_cvt_pk_bf16_f32 v{M[t]}, v{M[t]}, v{M[t]}")
    both(lambda t: f"v_cvt_pk_bf16_f32 v{Q[t]}, v{Q[t]}, v{Q[t]}")
    both(lambda t: f"v_lshlrev_b32 v{M[t]+2}, 16, v{M[t]}")
    both(lambda t: f"v_lshlrev_b32 v{Q[t]}, 16, v{Q[t]}")
    both(lambda t: f"v_rcp_f32 v{R[t]}, v{Q[t]}")
    k("s_and_saveexec_b64 s[70:71], s[72:73]")
    k(f"buffer_store_dwordx2 v[62:63], v7, s[{SRD_WS}:{SRD_WS+3}], s68 offen sc1")
    k(f"buffer_store_dwordx2 v[66:67], v7, s[{SRD_WS}:{SRD_WS+3}], s68 offen offset:32 sc1")
    k("s_mov_b64 exec, s[70:71]")
    stamp(k, "st")
    k("s_waitcnt vmcnt(0)")
    stamp(k, "st")
    k("s_mov_b32 s64, 0")
    arrive_go(k, SRD_DBG, 64, 64, 128)
    stamp(k, "st")
    stamp(k)
    k("s_cmp_ge_u32 s4, 56\n s_cbranch_scc1 prep_fill")
    k("s_mul_i32 s64, s4, 4682\n s_lshr_b32 s64, s64, 16\n s_mul_i32 s65, s64, 14\n s_sub_u32 s65, s4, s65")
    k(f"s_mul_i32 s66, s64, 160\n s_mul_i32 s67, s{S_WV}, 40\n s_add_u32 s66, s66, s67\n s_mul_i32 s66, s66, 3456\n s_lshl_b32 s67, s65, 8\n s_add_u32 s66, s66, s67")
    k(f"v_lshlrev_b32 v6, 2, v{V_LANE}")
    for i in range(40):
        k(f"buffer_load_dword v{16+i}, v6, s[{SRD_W1}:{SRD_W1+3}], s66 offen")
        if i < 39: k("s_add_u32 s66, s66, 3456")
    k("s_mov_b32 s67, 0x00003f80\n s_mov_b32 s68, 0x3f800000")
    for i in range(4): k(f"v_mov_b32 v{60+i}, 0")
    for i in range(40):
        if i % 10 == 0: k(f"s_waitcnt vmcnt({30 - i})")
        k(f"v_dot2_f32_bf16 v{60+2*(i&1)}, v{16+i}, s67, v{60+2*(i&1)}")
        k(f"v_dot2_f32_bf16 v{61+2*(i&1)}, v{16+i}, s68, v{61+2*(i&1)}")
    k("s_nop 2\n v_add_f32 v60, v60, v62\n v_add_f32 v61, v61, v63")
    k(f"v_lshlrev_b32 v7, 3, v{V_TID}")
    k("ds_write_b64 v7, v[60:61] offset:49152")
    k("s_waitcnt lgkmcnt(0)\n s_barrier")
    k(f"v_lshlrev_b32 v7, 3, v{V_LANE}")
    for q in range(4):
        k(f"ds_read_b64 v[{62+2*q}:{63+2*q}], v7 offset:{49152 + 512*q}")
    k("s_waitcnt lgkmcnt(0)")
    k("v_add_f32 v62, v62, v64\n v_add_f32 v63, v63, v65\n v_add_f32 v66, v66, v68\n v_add_f32 v67, v67, v69")
    k("v_add_f32 v62, v62, v66\n v_add_f32 v63, v63, v67")
    k(f"s_mul_i32 s66, s64, 7168\n s_lshl_b32 s67, s65, 9\n s_add_u32 s66, s66, s67\n s_add_u32 s66, s66, {WS_CS1}")
    k(f"s_cmp_lg_u32 s{S_WV}, 0\n s_cbranch_scc1 prep_fill")
    k(f"buffer_store_dwordx2 v[62:63], v7, s[{SRD_WS}:{SRD_WS+3}], s66 offen sc1")
    k("s_branch prep_fill")
    k.label("prep_nostats")
    srd(k, SRD_T, P_W2, P_W2+1, F*D*2)
    k("s_sub_u32 s5, s4, 64")
    k(f"v_lshlrev_b32 v15, 4, v{V_LANE}")
    k(f"s_mul_i32 s64, s5, 40960\n s_mul_i32 s65, s{S_WV}, 10240\n s_add_u32 s64, s64, s65")
    k("s_cmp_lt_u32 s5, 22\n s_cselect_b32 s66, 0, 0x40000000")
    k(f"s_add_u32 s67, s64, {32*40960}\n s_add_u32 s67, s67, s66")
    for a_ in range(2):
        for u in range(10):
            k(f"s_add_u32 m0, s65, {a_*40960 + u*1024}\n s_add_u32 s68, s{64 if a_ == 0 else 67}, {u*1024}\n buffer_load_dwordx4 v15, s[{SRD_T}:{SRD_T+3}], s68 offen lds")
    k(f"v_lshrrev_b32 v12, 2, v{V_LANE}\n v_mul_u32_u24 v12, 1280, v12\n s_mul_i32 s68, s{S_WV}, 320\n v_add_u32 v12, s68, v12\n v_and_b32 v14, 3, v{V_LANE}")
    k("v_lshl_add_u32 v13, v14, 3, v12\n v_lshl_add_u32 v12, v14, 4, v12")
    for a_ in range(2):
        k(f"s_waitcnt vmcnt({10 if a_ == 0 else 10})")
        k("s_barrier")
        if a_ == 1: k("s_cmp_ge_u32 s5, 22\n s_cbranch_scc1 prep_fill")
        for jj in range(10):
            p = jj % 5
            col = 160*(jj >= 5) + 2*((32*(p >> 1) + 4*(p & 1)) if p < 4 else 64)
            reg = 12 if p < 4 else 13
            d = 16 + 4*jj
            k(f"ds_read_b64_tr_b16 v[{d}:{d+1}], v{reg} offset:{a_*40960 + col}")
            k(f"ds_read_b64_tr_b16 v[{d+2}:{d+3}], v{reg} offset:{a_*40960 + col + 20480}")
        k(f"s_mul_i32 s68, s{S_WV}, {10*55296}\n s_add_u32 s69, s5, {32*a_}\n s_lshl_b32 s69, s69, 10\n s_add_u32 s68, s68, s69\n s_add_u32 s68, s68, {WS_WF2}")
        for jj in range(10):
            k(f"s_waitcnt lgkmcnt({min(15, 2*(9-jj))})")
            d = 16 + 4*jj
            k(f"buffer_store_dwordx4 v[{d}:{d+3}], v15, s[{SRD_WS}:{SRD_WS+3}], s68 offen sc1")
            if jj < 9: k("s_add_u32 s68, s68, 55296")
    k.label("prep_fill")
    srd(k, SRD_T, P_WS, P_WS+1, WS_ACT)
    k(f"v_mov_b32 v64, -1\n v_mov_b32 v65, -1\n v_mov_b32 v66, -1\n v_mov_b32 v67, -1\n v_lshlrev_b32 v68, 4, v{V_LANE}")
    k(f"s_lshl_b32 s64, s4, 2\n s_add_u32 s64, s64, s{S_WV}\n s_mul_i32 s64, s64, 7168\n s_add_u32 s64, s64, {WS_HF}")
    for i in range(7):
        k(f"buffer_store_dwordx4 v[64:67], v68, s[{SRD_T}:{SRD_T+3}], s64 offen sc1")
        if i < 6: k("s_add_u32 s64, s64, 1024")
    k.label("prep_done")
    stamp(k)
    k("s_mov_b32 s64, 64")
    arrive_go(k, SRD_DBG, 64, 96, 132)
    stamp(k)
    k("s_lshr_b32 s64, s4, 3")
    k(f"s_lshl_b32 s65, s64, 2\n s_add_u32 s65, s65, s{S_WV}")
    k(f"v_lshlrev_b32 v6, 4, v{V_LANE}")
    dma_setup(k)
    for L in range(5):
        dma_listA_step(k, L, 68)
        dma_kstep_setup(k, 68, 69, 70)
        for u in range(7): k(dma_op(u, 69, 70))
    k(f"s_mul_i32 s66, s65, {4*3456}\n s_and_b32 s67, s4, 1\n s_mul_i32 s67, s67, 1792\n s_add_u32 s66, s66, s67\n s_add_u32 s66, s66, {480*3456}")
    for i in range(4):
        k(f"buffer_load_dwordx4 v[{128+8*i}:{131+8*i}], v6, s[{SRD_W1}:{SRD_W1+3}], s66 offen")
        k(f"buffer_load_dwordx4 v[{132+8*i}:{135+8*i}], v6, s[{SRD_W1}:{SRD_W1+3}], s66 offen offset:1024")
        if i < 3: k("s_add_u32 s66, s66, 3456")
    stamp(k)
    k("s_mov_b32 s64, 132")
    poll_val(k, SRD_DBG, 64, 1, sleep=8)
    k("s_mov_b32 s64, 128")
    poll_val(k, SRD_DBG, 64, 1, sleep=8)
    k(f"s_cmp_lg_u32 s{S_WV}, 1\n s_cbranch_scc1 prep_cb")
    cb_issue(k, 82)
    k("s_waitcnt vmcnt(0)")
    cb_write(k, 82)
    k.label("prep_cb")
    stamp(k)
    k(f"s_mul_i32 s66, s65, 23040\n s_and_b32 s67, s4, 1\n s_mul_i32 s67, s67, {20*54*1024}\n s_add_u32 s66, s66, s67\n s_add_u32 s66, s66, {WS_WF2}")
    for i in range(23):
        k(f"buffer_load_dwordx4 v[{128+4*i}:{131+4*i}], v6, s[{SRD_WS}:{SRD_WS+3}], s66 offen sc1")
        if i < 22: k("s_add_u32 s66, s66, 1024")
    stamp(k)
```
